```python
import torch

def _softmax(x, axis=-1):
    return torch.softmax(x, dim=axis)
def _gelu(x):
    return torch.nn.functional.gelu(x, approximate="tanh")
def _silu(x):
    return torch.nn.functional.silu(x)
def _sigmoid(x):
    return torch.sigmoid(x)
def _layernorm(x, axis=-1, eps=1e-5):
    m = x.mean(dim=axis, keepdim=True)
    v = x.var(dim=axis, keepdim=True, unbiased=False)
    return (x - m) / torch.sqrt(v + eps)
def _scatter_add(tgt, idx, src, axis=0):
    return tgt.clone().index_add_(axis, idx, src)
def _segment_sum(src, seg, n):
    out = torch.zeros((n,) + src.shape[1:], dtype=src.dtype)
    return out.index_add_(0, seg, src)
def _pad(x, pw):
    flat = tuple(v for pair in reversed(pw) for v in pair)
    return torch.nn.functional.pad(x, flat)

kernel_name = 'standalone__mha_block_cached__sampling'

def setup_inputs():

    _w = (lambda a: (lambda t: t.to(torch.bfloat16) if t.is_floating_point() else t)(torch.as_tensor(a)))
    B, Sq, D = 8, 1, 640
    H, Sk, Dh = 32, 4096, 192
    return {
        "x": _w((lambda *s: torch.randn(*s, dtype=torch.bfloat16) * 0.8)(B, Sq, D)),
        "k_cache": _w((lambda *s: torch.randn(*s, dtype=torch.bfloat16) * 0.8)(B, H, Sk, Dh)),
        "v_cache": _w((lambda *s: torch.randn(*s, dtype=torch.bfloat16) * 0.05)(B, H, Sk, Dh)),
        "wq": _w((lambda *s: torch.randn(*s, dtype=torch.bfloat16) * 0.8)(D, H * Dh) * (D ** -0.5)),
        "wo": _w((lambda *s: torch.randn(*s, dtype=torch.bfloat16) * 0.05)(H * Dh, D) * ((H * Dh) ** -0.5)),
    }

def reference(x, k_cache, v_cache, wq, wo):
    B, Sq, D = x.shape
    H, Dh = 32, 192
    q = (lambda x, *d: x.permute(*d))((x @ wq).reshape(B, Sq, H, Dh), 0, 2, 1, 3)
    scores = torch.einsum("bhqd,bhkd->bhqk", q, k_cache) * (Dh ** -0.5)
    p = _softmax(scores, axis=-1)
    o = torch.einsum("bhqk,bhkd->bhqd", p, v_cache)
    return (lambda x, *d: x.permute(*d))(o, 0, 2, 1, 3).reshape(B, Sq, H * Dh) @ wo
```

```python
import json
import math
import struct
import sys

NAME = "standalone__mha_block_cached__sampling_kernel"

HEADER = """; Kernarg layout for this problem (64 bytes, ptrs only, base s[0:1]):
; @launch grid=(256,1,1) block=(512,1,1) lds={lds}
.amdgcn_target "amdgcn-amd-amdhsa--gfx950"
.text
.globl {name}
.p2align 8
.type {name},@function
{name}:
"""
FOOTER = """
.section .rodata,"a"
.p2align 6
.amdhsa_kernel {name}
  .amdhsa_next_free_vgpr 256
  .amdhsa_next_free_sgpr 96
  .amdhsa_accum_offset 256
  .amdhsa_group_segment_fixed_size 0
  .amdhsa_kernarg_size 64
  .amdhsa_user_sgpr_count 2
  .amdhsa_user_sgpr_kernarg_segment_ptr 1
  .amdhsa_system_sgpr_workgroup_id_x 1
  .amdhsa_float_denorm_mode_32 3
.end_amdhsa_kernel
"""

BH = 1572864
UNIT = 3072
RS = 4


def f32bits(x):
    return struct.unpack("<I", struct.pack("<f", x))[0]


def gen(R=7, R0=7, NSLOT=47, W=12, wo_r0=12, wo_k=2, hint=3, stamps=0, stag=0, wpol="nt", prio=3):
    L = []

    def a(s):
        L.append("    " + s)

    def lab(s):
        L.append(s + ":")

    def c(s):
        L.append("    ; " + s)

    RING = NSLOT * UNIT
    SC = RING
    MISC = SC + 16384
    Q = MISC
    MX = MISC + 384
    LS = MISC + 416
    LDS = MISC + 512
    QP = SC + 8192
    OP = SC
    OPS = 400
    assert LDS <= 163840

    N0 = NSLOT - 2 * RS
    while (N0 - R) % RS:
        N0 -= 1
    assert N0 <= 42
    L0 = N0 - R
    NB = (1024 - L0) // RS + 1
    ndouble = L0 // RS
    steps = [0, 1] + [2] * ndouble + [1] * (NB - 2 - ndouble)
    assert sum(steps) == 256 and len(steps) == NB
    cons = 0
    for j, s in enumerate(steps):
        assert min(1024, N0 + (j + 1) * RS) - NSLOT <= cons
        cons += RS * s
        assert cons <= L0 + RS * j

    sW, sH, sB, sJ = 20, 21, 22, 23
    KV, WQ, WO, XS, YS, OS = 24, 28, 32, 36, 40, 44
    sVlo, sVhi = 48, 49
    t0, t1, t2, t3 = 50, 51, 52, 53
    stamp_reg = {k: 64 + 2 * k for k in range(14)}

    def stamp(k):
        if stamps:
            a("s_memrealtime s[%d:%d]" % (stamp_reg[k], stamp_reg[k] + 1))

    def flush_stamps(ks):
        if not stamps:
            return
        a("s_waitcnt lgkmcnt(0)")
        a("s_lshl_b32 s%d, s2, 7" % t0)
        a("s_add_u32 s%d, s%d, 0x4000000" % (t0, t0))
        a("v_mov_b32 v1, s%d" % t0)
        for k in ks:
            a("v_mov_b32 v2, s%d" % stamp_reg[k])
            a("v_mov_b32 v3, s%d" % (stamp_reg[k] + 1))
            a("global_store_dwordx2 v1, v[2:3], s[18:19] offset:%d" % (8 * k))
            a("s_nop 1")

    def srd(d, lo, hi, off_sreg, nbytes):
        a("s_add_u32 s%d, s%d, s%d" % (d, lo, off_sreg))
        a("s_addc_u32 s%d, s%d, 0" % (d + 1, hi))
        if isinstance(nbytes, int):
            a("s_mov_b32 s%d, %d" % (d + 2, nbytes))
        else:
            a(nbytes % (d + 2))
        a("s_mov_b32 s%d, 0x20000" % (d + 3))

    def masks(base, tmp):
        c("lane-constant masks: element (lane & 7) of an 8 x bf16 operand")
        a("v_and_b32 v%d, 1, v0" % tmp)
        a("v_lshlrev_b32 v%d, 4, v%d" % (tmp, tmp))
        a("v_mov_b32 v%d, 0xffff" % (tmp + 1))
        a("v_lshlrev_b32 v%d, v%d, v%d" % (tmp, tmp, tmp + 1))
        a("v_bfe_u32 v%d, v0, 1, 2" % (tmp + 1))
        for j in range(4):
            a("v_cmp_eq_u32 vcc, %d, v%d" % (j, tmp + 1))
            a("s_nop 1")
            a("v_cndmask_b32 v%d, 0, v%d, vcc" % (base + j, tmp))

    def useful_lane_offset(dst, tmp, esize, rowstride):
        c("byte offset of this lane's 4 accumulator values: half * rowstride + (8*(n&7) + 4*(q&1)) * esize")
        a("v_and_b32 v%d, 7, v0" % dst)
        a("v_bfe_u32 v%d, v0, 4, 1" % tmp)
        a("v_lshl_add_u32 v%d, v%d, 1, v%d" % (dst, dst, tmp))
        a("v_mul_u32_u24 v%d, %d, v%d" % (dst, 4 * esize, dst))
        a("v_lshrrev_b32 v%d, 5, v0" % tmp)
        a("v_mul_u32_u24 v%d, %d, v%d" % (tmp, rowstride, tmp))
        a("v_add_u32 v%d, v%d, v%d" % (dst, dst, tmp))

    def set_useful_exec():
        a("s_mov_b32 exec_lo, 0x00ff00ff")
        a("s_mov_b32 exec_hi, 0xff00ff00")

    stamp(0)
    a("s_cmp_ge_u32 s2, 256")
    a("s_cbranch_scc1 L_end")
    a("s_load_dwordx16 s[4:19], s[0:1], 0")
    a("v_lshrrev_b32 v1, 6, v0")
    a("v_and_b32 v0, 63, v0")
    a("s_and_b32 s%d, s2, 7" % t0)
    a("v_readfirstlane_b32 s%d, v1" % sW)
    a("s_lshr_b32 s%d, s2, 3" % sJ)
    a("s_lshl_b32 s%d, s%d, 2" % (t0, t0))
    a("s_and_b32 s%d, s%d, 3" % (t1, sJ))
    a("s_add_u32 s%d, s%d, s%d" % (sH, t0, t1))
    a("s_lshr_b32 s%d, s%d, 2" % (sB, sJ))
    a("s_cmp_ge_u32 s%d, 3" % sW)
    a("s_cbranch_scc1 L_holder")
    a("s_cmp_ge_u32 s%d, 1" % sW)
    a("s_cbranch_scc1 L_consumer")

    c("======== loader ========")
    sM, sOff, sN, sCnt, sBar, sBlk, sMod = 54, 55, 56, 57, 58, 59, 60
    vOff, vA, vB = 4, 5, 6
    if prio:
        a("s_setprio %d" % prio)
    a("s_lshl_b32 s%d, s%d, 5" % (t0, sB))
    a("s_add_u32 s%d, s%d, s%d" % (t0, t0, sH))
    a("s_mul_i32 s%d, s%d, %d" % (t0, t0, BH))
    c("lane -> 4 keys of the low sub-stream (lanes 0-31), 4 keys of the high one (lanes 32-63)")
    a("v_bfe_u32 v1, v0, 3, 2")
    a("v_mul_u32_u24 v1, 384, v1")
    a("v_and_b32 v2, 7, v0")
    a("v_lshl_add_u32 v1, v2, 4, v1")
    a("v_lshrrev_b32 v2, 5, v0")
    a("v_mul_u32_u24 v3, %d, v2" % (172 * 384))
    a("v_add_u32 v%d, v1, v3" % vA)
    a("v_mul_u32_u24 v3, %d, v2" % (168 * 384))
    a("v_add_u32 v%d, v1, v3" % vB)
    a("s_mov_b32 s%d, 0" % sM)
    a("s_mov_b32 s%d, 0" % sN)
    a("s_mov_b32 s%d, 0" % sBlk)
    if stag:
        c("start block = (stag * (wg >> 3)) mod 12")
        a("s_mul_i32 s%d, s%d, %d" % (t1, sJ, stag))
        a("s_mul_hi_u32 s%d, s%d, %d" % (t2, t1, -(-(1 << 32) // 12)))
        a("s_mul_i32 s%d, s%d, 12" % (t2, t2))
        a("s_sub_u32 s%d, s%d, s%d" % (t1, t1, t2))
        a("s_mul_hi_u32 s%d, s%d, %d" % (t2, t1, -(-(1 << 32) // 3)))
        a("s_mul_i32 s%d, s%d, 3" % (t3, t2))
        a("s_sub_u32 s%d, s%d, s%d" % (sMod, t1, t3))
        a("s_mul_i32 s%d, s%d, 393216" % (t2, t2))
        a("s_mul_i32 s%d, s%d, 132096" % (t3, sMod))
        a("s_add_u32 s%d, s%d, s%d" % (sOff, t2, t3))
        a("s_cmp_eq_u32 s%d, 2" % sMod)
        a("s_cselect_b32 s%d, 42, 43" % sCnt)
        a("s_cselect_b64 vcc, -1, 0")
        a("v_cndmask_b32 v%d, v%d, v%d, vcc" % (vOff, vA, vB))
    else:
        a("s_mov_b32 s%d, 0" % sOff)
        a("s_mov_b32 s%d, 0" % sMod)
        a("s_mov_b32 s%d, 43" % sCnt)
        a("v_mov_b32 v%d, v%d" % (vOff, vA))
    a("s_waitcnt lgkmcnt(0)")
    a("s_add_u32 s%d, s8, s%d" % (sVlo, t0))
    a("s_addc_u32 s%d, s9, 0" % sVhi)
    srd(KV, 6, 7, t0, BH)

    def issue():
        a("s_mov_b32 m0, s%d" % sM)
        a("s_add_u32 s%d, s%d, 1" % (sN, sN))
        a("buffer_load_dwordx4 v%d, s[%d:%d], s%d offen nt lds" % (vOff, KV, KV + 3, sOff))
        a("s_add_u32 m0, s%d, 896" % sM)
        a("s_sub_u32 s%d, s%d, 1" % (sCnt, sCnt))
        a("buffer_load_dwordx4 v%d, s[%d:%d], s%d offen offset:128 nt lds" % (vOff, KV, KV + 3, sOff))
        a("s_add_u32 m0, s%d, 1792" % sM)
        a("s_add_u32 s%d, s%d, %d" % (sM, sM, UNIT))
        a("buffer_load_dwordx4 v%d, s[%d:%d], s%d offen offset:256 nt lds" % (vOff, KV, KV + 3, sOff))
        a("s_add_u32 s%d, s%d, 1536" % (sOff, sOff))

    lab("L_ld_fill")
    a("s_waitcnt vmcnt(%d)" % (3 * (R0 - 1)))
    issue()
    a("s_cmp_lt_u32 s%d, %d" % (sN, N0 - 1))
    a("s_cbranch_scc1 L_ld_fill")
    a("s_mov_b32 s%d, 1" % sBar)
    stamp(1)
    lab("L_ld")
    a("s_waitcnt vmcnt(%d)" % (3 * (R - 1)))
    issue()
    a("s_cmp_eq_u32 s%d, %d" % (sM, RING))
    a("s_cselect_b32 s%d, 0, s%d" % (sM, sM))
    a("s_cmp_eq_u32 s%d, 0" % sCnt)
    a("s_cbranch_scc1 L_ld_block")
    lab("L_ld_cont")
    a("s_sub_u32 s%d, s%d, 1" % (sBar, sBar))
    a("s_cmp_lg_u32 s%d, 0" % sBar)
    a("s_cbranch_scc1 L_ld")
    a("s_barrier")
    a("s_mov_b32 s%d, %d" % (sBar, RS))
    a("s_branch L_ld")
    lab("L_ld_block")
    c("end of a block of two sub-streams: skip the high one, pick the next block's shape")
    a("s_cmp_eq_u32 s%d, 2" % sMod)
    a("s_cselect_b32 s%d, 0, 1536" % t0)
    a("s_add_u32 s%d, s%d, %d" % (t0, t0, 168 * 384))
    a("s_add_u32 s%d, s%d, s%d" % (sOff, sOff, t0))
    a("s_cmp_ge_u32 s%d, %d" % (sOff, BH))
    a("s_cselect_b32 s%d, 0, s%d" % (sOff, sOff))
    a("s_add_u32 s%d, s%d, 1" % (sMod, sMod))
    a("s_cmp_eq_u32 s%d, 3" % sMod)
    a("s_cselect_b32 s%d, 0, s%d" % (sMod, sMod))
    a("s_cmp_eq_u32 s%d, 2" % sMod)
    a("s_cselect_b32 s%d, 42, 43" % sCnt)
    a("s_cselect_b64 vcc, -1, 0")
    a("v_cndmask_b32 v%d, v%d, v%d, vcc" % (vOff, vA, vB))
    a("s_add_u32 s%d, s%d, 1" % (sBlk, sBlk))
    a("s_cmp_eq_u32 s%d, 12" % sBlk)
    a("s_cselect_b32 s%d, s%d, s%d" % (KV, sVlo, KV))
    a("s_cselect_b32 s%d, s%d, s%d" % (KV + 1, sVhi, KV + 1))
    a("s_cmp_lg_u32 s%d, 24" % sBlk)
    a("s_cbranch_scc1 L_ld_cont")
    stamp(2)
    jdone = (1023 - N0) // RS
    for j in range(jdone + 1, NB):
        a("s_waitcnt vmcnt(%d)" % (3 * (1024 - (L0 + RS * j))))
        a("s_barrier")
    stamp(3)
    flush_stamps([0, 1, 2, 3])
    a("s_endpgm")

    c("======== consumers ========")
    lab("L_consumer")
    sC, sA0, sA1, sSc, sRound, sIn, sScale = 54, 55, 56, 57, 58, 59, 60
    sOne = 62
    vL16, vAd0, vAd1, vSA, vM, vLsum, vMc = 4, 5, 6, 7, 8, 9, 10
    vS = 12
    vT = 14
    vMask = 16
    vQ = 20
    vAcc = 32
    vAop = 44
    vD = 52
    a("s_sub_u32 s%d, s%d, 1" % (sC, sW))
    a("v_lshlrev_b32 v%d, 4, v0" % vL16)
    masks(vMask, vT)
    a("s_mul_i32 s%d, s%d, %d" % (sA0, sC, 2 * UNIT))
    a("s_add_u32 s%d, s%d, %d" % (sA1, sA0, UNIT))
    a("v_lshrrev_b32 v%d, 3, v0" % vSA)
    a("v_lshlrev_b32 v%d, 3, v%d" % (vSA, vSA))
    a("s_lshl_b32 s%d, s%d, 6" % (t0, sC))
    a("s_add_u32 s%d, s%d, %d" % (t0, t0, SC))
    a("v_add_u32 v%d, s%d, v%d" % (vSA, t0, vSA))
    a("v_mov_b32 v%d, 0xff800000" % vM)
    a("v_mov_b32 v%d, 0" % vLsum)
    for i in range(12):
        a("v_mov_b32 v%d, 0" % (vAcc + i))
    a("s_mov_b32 s%d, 0x01010101" % sOne)
    a("s_mov_b32 s%d, 0x01010101" % (sOne + 1))
    a("s_mov_b32 s%d, 0x%08x" % (sScale, f32bits(192 ** -0.5 * math.log2(math.e))))
    a("s_waitcnt lgkmcnt(0)")
    a("s_barrier")
    c("round 0: wave 1 sums the ten q partials and rounds q to bf16")
    a("s_cmp_lg_u32 s%d, 0" % sC)
    a("s_cbranch_scc1 L_c_q")
    a("v_min_u32 v%d, 47, v0" % vT)
    a("v_lshlrev_b32 v%d, 4, v%d" % (vAd0, vT))
    a("v_add_u32 v%d, %d, v%d" % (vAd0, QP, vAd0))
    for r in range(10):
        a("ds_read_b128 v[%d:%d], v%d offset:%d" % (vD + 4 * r, vD + 4 * r + 3, vAd0, 768 * r))
    a("v_lshlrev_b32 v%d, 3, v%d" % (vAd1, vT))
    a("v_add_u32 v%d, %d, v%d" % (vAd1, Q, vAd1))
    for r in range(1, 10):
        a("s_waitcnt lgkmcnt(%d)" % (9 - r))
        for i in range(4):
            a("v_add_f32 v%d, v%d, v%d" % (vD + i, vD + i, vD + 4 * r + i))
    a("v_cvt_pk_bf16_f32 v%d, v%d, v%d" % (vS, vD, vD + 1))
    a("v_cvt_pk_bf16_f32 v%d, v%d, v%d" % (vS + 1, vD + 2, vD + 3))
    a("ds_write_b64 v%d, v[%d:%d]" % (vAd1, vS, vS + 1))
    a("s_waitcnt lgkmcnt(0)")
    lab("L_c_q")
    a("s_barrier")
    a("v_and_b32 v%d, 7, v0" % vT)
    a("v_lshlrev_b32 v%d, 4, v%d" % (vT, vT))
    a("v_add_u32 v%d, %d, v%d" % (vT, Q, vT))
    for i in range(3):
        a("ds_read_b128 v[%d:%d], v%d offset:%d" % (vQ + 4 * i, vQ + 4 * i + 3, vT, 128 * i))
    a("s_mov_b32 s%d, 1" % sRound)
    a("s_mov_b32 s%d, 1" % sIn)
    a("s_mov_b32 s%d, 0" % sSc)

    def data_reads():
        a("v_add_u32 v%d, s%d, v%d" % (vAd0, sA0, vL16))
        a("v_add_u32 v%d, s%d, v%d" % (vAd1, sA1, vL16))
        for u, ad in ((0, vAd0), (1, vAd1)):
            for i in range(3):
                r = vD + 12 * u + 4 * i
                a("ds_read_b128 v[%d:%d], v%d offset:%d" % (r, r + 3, ad, 1024 * i))
        for s in (sA0, sA1):
            a("s_add_u32 s%d, s%d, %d" % (s, s, RS * UNIT))
            a("s_cmp_ge_u32 s%d, %d" % (s, RING))
            a("s_cselect_b32 s%d, %d, 0" % (t0, RING))
            a("s_sub_u32 s%d, s%d, s%d" % (s, s, t0))

    lab("L_c_k")
    data_reads()
    for u in range(2):
        for i in range(3):
            a("s_waitcnt lgkmcnt(%d)" % (5 - 3 * u - i))
            for k in range(4):
                src = "0" if (i == 0 and k == 0) else "v%d" % (vS + u)
                a("v_dot2_f32_bf16 v%d, v%d, v%d, %s" % (vS + u, vD + 12 * u + 4 * i + k, vQ + 4 * i + k, src))
    for step, ctl in enumerate(("quad_perm:[1,0,3,2]", "quad_perm:[2,3,0,1]", "row_half_mirror")):
        a("v_add_f32_dpp v%d, v%d, v%d %s row_mask:0xf bank_mask:0xf" % (vS, vS, vS, ctl))
        a("s_nop %d" % (1 if step == 0 else 0))
        a("v_add_f32_dpp v%d, v%d, v%d %s row_mask:0xf bank_mask:0xf" % (vS + 1, vS + 1, vS + 1, ctl))
    a("s_add_u32 s%d, s%d, 1" % (sSc, sSc))
    a("v_max3_f32 v%d, v%d, v%d, v%d" % (vM, vM, vS, vS + 1))
    a("s_mov_b64 exec, s[%d:%d]" % (sOne, sOne + 1))
    a("ds_write_b64 v%d, v[%d:%d]" % (vSA, vS, vS + 1))
    a("s_mov_b64 exec, -1")
    a("v_add_u32 v%d, 128, v%d" % (vSA, vSA))
    a("s_cmp_eq_u32 s%d, 128" % sSc)
    a("s_cbranch_scc1 L_c_kdone")
    a("s_sub_u32 s%d, s%d, 1" % (sIn, sIn))
    a("s_cmp_lg_u32 s%d, 0" % sIn)
    a("s_cbranch_scc1 L_c_k")
    a("s_add_u32 s%d, s%d, 1" % (sRound, sRound))
    a("s_cmp_lt_u32 s%d, %d" % (sRound, 2 + ndouble))
    a("s_cselect_b32 s%d, 2, 1" % sIn)
    a("s_barrier")
    a("s_branch L_c_k")
    lab("L_c_kdone")
    assert 1 + 2 * ndouble < 128
    c("exact row max over all 4096 scores, shared through LDS")
    a("s_nop 1")
    a("v_max_f32_dpp v%d, v%d, v%d row_ror:8 row_mask:0xf bank_mask:0xf" % (vM, vM, vM))
    a("v_lshrrev_b32 v%d, 4, v0" % vT)
    a("v_lshlrev_b32 v%d, 2, v%d" % (vT, vT))
    a("s_lshl_b32 s%d, s%d, 4" % (t0, sC))
    a("v_add_u32 v%d, s%d, v%d" % (vT + 1, t0, vT))
    a("v_add_u32 v%d, %d, v%d" % (vT + 1, MX, vT + 1))
    a("ds_write_b32 v%d, v%d" % (vT + 1, vM))
    a("v_subrev_u32 v%d, %d, v%d" % (vSA, 16384, vSA))
    a("s_waitcnt lgkmcnt(0)")
    a("s_barrier")
    a("v_mov_b32 v%d, %d" % (vT, MX))
    a("ds_read_b128 v[%d:%d], v%d" % (vAop, vAop + 3, vT))
    a("ds_read_b128 v[%d:%d], v%d offset:16" % (vAop + 4, vAop + 7, vT))
    a("s_waitcnt lgkmcnt(0)")
    a("v_max3_f32 v%d, v%d, v%d, v%d" % (vM, vAop, vAop + 1, vAop + 2))
    a("v_max3_f32 v%d, v%d, v%d, v%d" % (vM, vM, vAop + 3, vAop + 4))
    a("v_max3_f32 v%d, v%d, v%d, v%d" % (vM, vM, vAop + 5, vAop + 6))
    a("v_max_f32 v%d, v%d, v%d" % (vM, vM, vAop + 7))
    a("v_mul_f32 v%d, s%d, v%d" % (vMc, sScale, vM))
    a("s_mov_b32 s%d, 0" % sSc)
    lab("L_c_v")
    a("ds_read_b64 v[%d:%d], v%d" % (vS, vS + 1, vSA))
    data_reads()
    a("v_add_u32 v%d, 128, v%d" % (vSA, vSA))
    a("s_waitcnt lgkmcnt(6)")
    a("v_fma_f32 v%d, v%d, s%d, -v%d" % (vS, vS, sScale, vMc))
    a("v_fma_f32 v%d, v%d, s%d, -v%d" % (vS + 1, vS + 1, sScale, vMc))
    a("v_exp_f32 v%d, v%d" % (vS, vS))
    a("v_exp_f32 v%d, v%d" % (vS + 1, vS + 1))
    a("s_add_u32 s%d, s%d, 1" % (sSc, sSc))
    a("v_cvt_pk_bf16_f32 v%d, v%d, v%d" % (vT, vS, vS))
    a("v_cvt_pk_bf16_f32 v%d, v%d, v%d" % (vT + 1, vS + 1, vS + 1))
    for u in range(2):
        for j in range(4):
            a("v_and_b32 v%d, v%d, v%d" % (vAop + 4 * u + j, vMask + j, vT + u))
    a("v_add_f32 v%d, v%d, v%d" % (vLsum, vLsum, vS))
    a("v_add_f32 v%d, v%d, v%d" % (vLsum, vLsum, vS + 1))
    for u in range(2):
        for i in range(3):
            a("s_waitcnt lgkmcnt(%d)" % (5 - 3 * u - i))
            r = vD + 12 * u + 4 * i
            a("v_mfma_f32_16x16x32_bf16 v[%d:%d], v[%d:%d], v[%d:%d], v[%d:%d]" % (
                vAcc + 4 * i, vAcc + 4 * i + 3, vAop + 4 * u, vAop + 4 * u + 3, r, r + 3, vAcc + 4 * i, vAcc + 4 * i + 3))
    a("s_cmp_eq_u32 s%d, 128" % sSc)
    a("s_cbranch_scc1 L_c_vdone")
    a("s_barrier")
    a("s_branch L_c_v")
    lab("L_c_vdone")
    c("publish the unnormalised o partials (bf16) and the weight sums")
    a("v_add_f32_dpp v%d, v%d, v%d row_ror:8 row_mask:0xf bank_mask:0xf" % (vLsum, vLsum, vLsum))
    a("v_lshrrev_b32 v%d, 4, v0" % vT)
    a("v_lshlrev_b32 v%d, 2, v%d" % (vT, vT))
    a("s_lshl_b32 s%d, s%d, 4" % (t0, sC))
    a("s_add_u32 s%d, s%d, %d" % (t0, t0, LS))
    a("v_add_u32 v%d, s%d, v%d" % (vT, t0, vT))
    a("ds_write_b32 v%d, v%d" % (vT, vLsum))
    useful_lane_offset(vAd0, vT, 2, OPS)
    a("s_mul_i32 s%d, s%d, %d" % (t0, sC, 2 * OPS))
    a("s_add_u32 s%d, s%d, %d" % (t0, t0, OP))
    a("v_add_u32 v%d, s%d, v%d" % (vAd0, t0, vAd0))
    for i in range(3):
        a("v_cvt_pk_bf16_f32 v%d, v%d, v%d" % (vD + 2 * i, vAcc + 4 * i, vAcc + 4 * i + 1))
        a("v_cvt_pk_bf16_f32 v%d, v%d, v%d" % (vD + 2 * i + 1, vAcc + 4 * i + 2, vAcc + 4 * i + 3))
    set_useful_exec()
    for i in range(3):
        a("ds_write_b64 v%d, v[%d:%d] offset:%d" % (vAd0, vD + 2 * i, vD + 2 * i + 1, 128 * i))
    a("s_waitcnt lgkmcnt(0)")
    a("s_barrier")
    a("s_endpgm")

    c("======== holders ========")
    lab("L_holder")
    sHj, sO, sSelLo, sSelHi, sLoop, sTry = 54, 55, 56, 57, 58, 59
    sPlo, sPhi = 60, 61
    vWq, vWo, vY, vTmp = 4, 5, 6, 7
    vHM = 12
    vX = 16
    vHA = 24
    blk = lambda k: 32 + 32 * k
    a("s_sub_u32 s%d, s%d, 3" % (sHj, sW))
    a("v_lshrrev_b32 v1, 3, v0")
    a("v_and_b32 v2, 7, v0")
    a("v_mul_u32_u24 v3, 160, v1")
    a("s_lshl_b32 s%d, s%d, 5" % (t0, sHj))
    a("v_add_u32 v3, s%d, v3" % t0)
    a("v_mul_u32_u24 v%d, %d, v1" % (vWq, 80 * 12288))
    a("v_lshl_add_u32 v%d, v2, 4, v%d" % (vWq, vWq))
    a("s_mul_i32 s%d, s%d, %d" % (sO, sHj, 16 * 12288))
    a("s_mul_i32 s%d, s%d, 384" % (t0, sH))
    a("s_mul_i32 s%d, s%d, 1280" % (t1, sB))
    a("s_waitcnt lgkmcnt(0)")
    srd(XS, 4, 5, t1, 1280)
    srd(WQ, 10, 11, t0, "s_sub_u32 s%%d, 7864320, s%d" % t0)
    a("buffer_load_dwordx4 v[%d:%d], v3, s[%d:%d], 0 offen" % (vX, vX + 3, XS, XS + 3))
    a("buffer_load_dwordx4 v[%d:%d], v3, s[%d:%d], 0 offen offset:16" % (vX + 4, vX + 7, XS, XS + 3))

    def wq_load(u):
        for i in range(3):
            r = blk(0) + 12 * u + 4 * i
            a("buffer_load_dwordx4 v[%d:%d], v%d, s[%d:%d], s%d offen offset:%d %s" % (r, r + 3, vWq, WQ, WQ + 3, sO, 128 * i, wpol))
        a("s_add_u32 s%d, s%d, 12288" % (sO, sO))

    wu = min(16, W // 3)
    for u in range(wu):
        wq_load(u)
    srd(OS, 14, 15, t1, 1280)
    a("s_mul_i32 s%d, s%d, 245760" % (t0, sH))
    srd(WO, 12, 13, t0, 245760)
    a("s_mul_i32 s%d, s%d, 81920" % (t0, sB))
    srd(YS, 18, 19, t0, 81920)
    masks(vHM, 8)
    a("s_mov_b32 s%d, 0x01000100" % sSelLo)
    a("s_mov_b32 s%d, 0x03020302" % sSelHi)
    qacc = blk(6)
    for u in range(16):
        issued = min(16, wu + u)
        a("s_waitcnt vmcnt(%d)" % (3 * (issued - u - 1)))
        A = vHA + 4 * (u % 2)
        a("v_perm_b32 v%d, v%d, v%d, s%d" % (vTmp, vX + u // 2, vX + u // 2, sSelHi if u % 2 else sSelLo))
        for j in range(4):
            a("v_and_b32 v%d, v%d, v%d" % (A + j, vHM + j, vTmp))
        if wu + u < 16:
            wq_load(wu + u)
        else:
            a("s_nop 1")
        for i in range(3):
            r = blk(0) + 12 * u + 4 * i
            srcc = "0" if u == 0 else "v[%d:%d]" % (qacc + 4 * i, qacc + 4 * i + 3)
            a("v_mfma_f32_16x16x32_bf16 v[%d:%d], v[%d:%d], v[%d:%d], %s" % (qacc + 4 * i, qacc + 4 * i + 3, A, A + 3, r, r + 3, srcc))
    useful_lane_offset(8, 9, 4, 768)
    a("s_mul_i32 s%d, s%d, 1536" % (t0, sHj))
    a("s_add_u32 s%d, s%d, %d" % (t0, t0, QP))
    a("v_add_u32 v8, s%d, v8" % t0)
    set_useful_exec()
    for i in range(3):
        a("ds_write_b128 v8, v[%d:%d] offset:%d" % (qacc + 4 * i, qacc + 4 * i + 3, 256 * i))
    a("s_mov_b64 exec, -1")
    stamp(4)
    c("addresses for wo and for this wave's part of the y hand-off buffer")
    a("v_lshrrev_b32 v1, 4, v0")
    a("v_and_b32 v2, 15, v0")
    a("v_mul_u32_u24 v%d, 10240, v1" % vWo)
    a("v_lshl_add_u32 v%d, v2, 4, v%d" % (vWo, vWo))
    a("s_lshl_b32 s%d, s%d, 8" % (t0, sHj))
    a("v_add_u32 v%d, s%d, v%d" % (vWo, t0, vWo))
    a("s_lshl_b32 s%d, s%d, 14" % (t0, sHj))
    a("s_lshl_b32 s%d, s%d, 9" % (t1, sH))
    a("s_add_u32 s%d, s%d, s%d" % (t0, t0, t1))
    a("v_lshlrev_b32 v%d, 4, v0" % vY)
    a("v_add_u32 v%d, s%d, v%d" % (vY, t0, vY))
    a("s_mov_b32 s%d, 0x05040100" % sPlo)
    a("s_mov_b32 s%d, 0x07060302" % sPhi)
    a("s_waitcnt lgkmcnt(0)")
    a("s_barrier")
    nb = 1

    def idle(n):
        if n <= 0:
            return
        if n <= 2:
            for _ in range(n):
                a("s_barrier")
            return
        name = "L_h_idle%d" % len(L)
        a("s_mov_b32 s%d, %d" % (sLoop, n))
        lab(name)
        a("s_barrier")
        a("s_sub_u32 s%d, s%d, 1" % (sLoop, sLoop))
        a("s_cmp_lg_u32 s%d, 0" % sLoop)
        a("s_cbranch_scc1 %s" % name)

    c("mark this wave's hand-off slot empty")
    for i in range(4):
        a("v_mov_b32 v%d, -1" % (8 + i))
    a("s_mov_b32 exec_hi, 0")
    a("buffer_store_dwordx4 v[8:11], v%d, s[%d:%d], 0 offen sc1" % (vY, YS, YS + 3))
    a("s_mov_b64 exec, -1")
    idle(wo_r0)
    nb += wo_r0
    n = 0
    while n < 48:
        for _ in range(wo_k):
            ks, i = divmod(n, 8)
            if i % 4 == 0:
                a("s_mov_b32 s%d, %d" % (sO, ks * 40960 + (i // 4) * 5120))
            r = blk(ks + 1) + 4 * i
            a("buffer_load_dwordx4 v[%d:%d], v%d, s[%d:%d], s%d offen offset:%d %s" % (r, r + 3, vWo, WO, WO + 3, sO, (i % 4) * 1280, wpol))
            n += 1
        a("s_barrier")
        nb += 1
    idle(8)
    nb += 8
    a("s_waitcnt vmcnt(0)")
    c("transpose each 8x8 block in place of the previous one: 8 rows x 8 columns -> 8 columns x 8 rows")
    for ks in range(6):
        src, dst = blk(ks + 1), blk(ks)
        for col in range(8):
            for p in range(4):
                a("v_perm_b32 v%d, v%d, v%d, s%d" % (dst + 4 * col + p, src + 4 * (2 * p + 1) + col // 2, src + 4 * (2 * p) + col // 2, sPhi if col % 2 else sPlo))
        a("s_barrier")
        nb += 1
    a("v_and_b32 v1, 3, v0")
    a("v_mul_u32_u24 v1, %d, v1" % OPS)
    a("v_lshrrev_b32 v2, 4, v0")
    a("v_lshl_add_u32 v1, v2, 4, v1")
    a("v_add_u32 v1, %d, v1" % OP)
    a("v_mov_b32 v2, %d" % LS)
    a("s_lshl_b32 s%d, s%d, 2" % (t0, sB))
    a("v_mov_b32 v3, s%d" % t0)
    a("v_mov_b32 v%d, 1" % vTmp)
    idle(NB - hint - nb)
    nb = NB - hint
    c("arrival count of this batch row: all slots of the row are marked empty once it reaches 32")
    a("s_cmp_lg_u32 s%d, 0" % sHj)
    a("s_cbranch_scc1 L_h_nohint")
    a("s_mov_b64 exec, 1")
    a("global_atomic_add v3, v%d, s[16:17] sc1" % vTmp)
    a("s_mov_b64 exec, -1")
    lab("L_h_nohint")
    for _ in range(hint + 1):
        a("s_barrier")
    stamp(5)
    oacc = blk(6)
    for ks in range(6):
        a("ds_read_b128 v[%d:%d], v1 offset:%d" % (8 + 4 * ks, 11 + 4 * ks, 64 * ks))
    a("global_load_dword v%d, v3, s[16:17] sc1" % vTmp)
    for ks in range(6):
        a("s_waitcnt lgkmcnt(%d)" % (5 - ks))
        for col in range(8):
            r = blk(ks) + 4 * col
            srcc = "0" if ks == 0 else "v[%d:%d]" % (oacc + 4 * col, oacc + 4 * col + 3)
            a("v_mfma_f32_16x16x32_bf16 v[%d:%d], v[%d:%d], v[%d:%d], %s" % (oacc + 4 * col, oacc + 4 * col + 3, 8 + 4 * ks, 11 + 4 * ks, r, r + 3, srcc))
        if ks == 1:
            a("ds_read_b128 v[8:11], v2")
            a("ds_read_b128 v[12:15], v2 offset:16")
        if ks == 4:
            a("s_waitcnt lgkmcnt(0)")
            a("v_add_f32 v8, v8, v9")
            a("v_add_f32 v10, v10, v11")
            a("v_add_f32 v12, v12, v13")
            a("v_add_f32 v14, v14, v15")
            a("v_add_f32 v8, v8, v10")
            a("v_add_f32 v12, v12, v14")
            a("v_add_f32 v8, v8, v12")
            a("v_rcp_f32 v9, v8")
            a("s_nop 0")
            a("v_fma_f32 v10, -v8, v9, 1.0")
            a("v_fma_f32 v9, v10, v9, v9")
    for col in range(8):
        r = oacc + 4 * col
        if col == 0:
            a("s_nop 0")
        a("v_add_f32 v%d, v%d, v%d" % (r, r, r + 1))
        a("v_add_f32 v%d, v%d, v%d" % (r + 2, r + 2, r + 3))
        a("v_add_f32 v%d, v%d, v%d" % (r, r, r + 2))
        a("v_mul_f32 v%d, v9, v%d" % (16 + col, r))
        a("v_min_u32 v%d, -2, v%d" % (16 + col, 16 + col))
    a("s_mov_b64 exec, 0xffff")
    a("buffer_store_dwordx4 v[16:19], v%d, s[%d:%d], 0 offen sc1" % (vY, YS, YS + 3))
    a("buffer_store_dwordx4 v[20:23], v%d, s[%d:%d], 0 offen offset:256 sc1" % (vY, YS, YS + 3))
    a("s_mov_b64 exec, -1")
    stamp(6)
    c("the wave whose index equals the head sums its 128 columns over the 32 heads")
    a("s_cmp_lg_u32 s%d, s%d" % (sHj, sH))
    a("s_cbranch_scc1 L_h_done")
    a("s_mov_b32 s%d, 0" % sTry)
    a("s_waitcnt vmcnt(2)")
    lab("L_r_count")
    a("v_readfirstlane_b32 s%d, v%d" % (t0, vTmp))
    a("s_cmp_ge_u32 s%d, 32" % t0)
    a("s_cbranch_scc1 L_r_ready")
    a("s_add_u32 s%d, s%d, 1" % (sTry, sTry))
    a("s_cmp_ge_u32 s%d, 0x100000" % sTry)
    a("s_cbranch_scc1 L_r_ready")
    a("global_load_dword v%d, v3, s[16:17] sc1" % vTmp)
    a("s_waitcnt vmcnt(0)")
    a("s_branch L_r_count")
    lab("L_r_ready")
    a("v_lshlrev_b32 v1, 4, v0")
    a("s_lshl_b32 s%d, s%d, 14" % (sO, sHj))
    a("s_add_u32 s%d, s%d, 4096" % (t1, sO))
    a("s_add_u32 s%d, s%d, 8192" % (t2, sO))
    a("s_add_u32 s%d, s%d, 12288" % (t3, sO))
    G = blk(0)
    lab("L_r_poll")
    for k in range(16):
        so = (sO, t1, t2, t3)[k // 4]
        a("buffer_load_dwordx4 v[%d:%d], v1, s[%d:%d], s%d offen offset:%d sc1" % (G + 4 * k, G + 4 * k + 3, YS, YS + 3, so, 1024 * (k % 4)))
    for k in range(1, 16):
        a("s_waitcnt vmcnt(%d)" % (15 - k))
        for i in range(4):
            a("v_add_f32 v%d, v%d, v%d" % (8 + i, G + i if k == 1 else 8 + i, G + 4 * k + i))
    a("v_cmp_u_f32 vcc, v8, v9")
    a("v_cmp_u_f32 s[62:63], v10, v11")
    a("s_nop 1")
    a("s_or_b64 vcc, vcc, s[62:63]")
    a("s_cbranch_vccz L_r_sum")
    c("a NaN sum: either an empty slot (poll again) or a NaN in the data")
    a("v_max3_u32 v12, v%d, v%d, v%d" % (G, G + 1, G + 2))
    for k in range(3, 63, 2):
        a("v_max3_u32 v12, v12, v%d, v%d" % (G + k, G + k + 1))
    a("v_max_u32 v12, v12, v%d" % (G + 63))
    a("v_cmp_eq_u32 vcc, -1, v12")
    a("s_add_u32 s%d, s%d, 1" % (sTry, sTry))
    a("s_cbranch_vccz L_r_sum")
    a("s_cmp_lt_u32 s%d, 0x100000" % sTry)
    a("s_cbranch_scc1 L_r_poll")
    lab("L_r_sum")
    for i in range(4):
        a("v_mov_b32 v%d, v%d" % (12 + i, 8 + i))
    a("v_and_b32 v2, 15, v0")
    a("v_bfe_u32 v3, v0, 4, 1")
    for i in range(4):
        a("v_permlane32_swap_b32 v%d, v%d" % (8 + i, 12 + i))
    a("v_lshlrev_b32 v2, 4, v2")
    a("v_lshl_add_u32 v2, v3, 3, v2")
    for i in range(4):
        a("v_add_f32 v%d, v%d, v%d" % (8 + i, 8 + i, 12 + i))
    a("s_lshl_b32 s%d, s%d, 8" % (t0, sHj))
    a("v_cvt_pk_bf16_f32 v8, v8, v9")
    a("v_cvt_pk_bf16_f32 v9, v10, v11")
    a("s_mov_b32 exec_hi, 0")
    a("buffer_store_dwordx2 v[8:9], v2, s[%d:%d], s%d offen" % (OS, OS + 3, t0))
    a("s_mov_b64 exec, -1")
    lab("L_h_done")
    if stamps:
        a("s_waitcnt vmcnt(0)")
        stamp(7)
        a("s_min_u32 s%d, s%d, 4" % (t1, sH))
        a("s_cmp_lg_u32 s%d, s%d" % (sHj, t1))
        a("s_cbranch_scc1 L_end")
        flush_stamps([4, 5, 6, 7])
    lab("L_end")
    a("s_endpgm")
    return HEADER.format(lds=LDS, name=NAME) + "\n".join(L) + FOOTER.format(name=NAME)


if __name__ == "__main__":
    spec = json.loads(sys.argv[1])
    names = []
    for cfg in spec:
        cfg = dict(cfg)
        out = cfg.pop("out", None)
        name = out or ("work/k_" + "_".join("%s%s" % (k, str(v).replace(" ", "")) for k, v in cfg.items()) + ".s")
        open("code/" + name, "w").write(gen(**cfg))
        names.append(name)
    print(" ".join(names))
```

```python
import json
import math
import struct
import sys

NAME = "standalone__mha_block_cached__sampling_kernel"

HEADER = """; Kernarg layout for this problem (64 bytes, ptrs only, base s[0:1]):
; @launch grid=(256,1,1) block=(512,1,1) lds={lds}
.amdgcn_target "amdgcn-amd-amdhsa--gfx950"
.text
.globl {name}
.p2align 8
.type {name},@function
{name}:
"""
FOOTER = """
.section .rodata,"a"
.p2align 6
.amdhsa_kernel {name}
  .amdhsa_next_free_vgpr 256
  .amdhsa_next_free_sgpr 96
  .amdhsa_accum_offset 256
  .amdhsa_group_segment_fixed_size 0
  .amdhsa_kernarg_size 64
  .amdhsa_user_sgpr_count 2
  .amdhsa_user_sgpr_kernarg_segment_ptr 1
  .amdhsa_system_sgpr_workgroup_id_x 1
  .amdhsa_float_denorm_mode_32 3
.end_amdhsa_kernel
"""

BH = 1572864
UNIT = 3072
RS = 4


def f32bits(x):
    return struct.unpack("<I", struct.pack("<f", x))[0]


def gen(R=7, R0=7, NSLOT=47, W=12, wo_r0=12, wo_k=2, hint=8, stamps=0, stag=0, wpol="nt", prio=3, sleep=4):
    L = []

    def a(s):
        L.append("    " + s)

    def lab(s):
        L.append(s + ":")

    def c(s):
        L.append("    ; " + s)

    RING = NSLOT * UNIT
    SC = RING
    MISC = SC + 16384
    Q = MISC
    MX = MISC + 384
    LS = MISC + 416
    LDS = MISC + 512
    QP = SC + 8192
    OP = SC
    OPS = 400
    assert LDS <= 163840

    N0 = NSLOT - 2 * RS
    while (N0 - R) % RS:
        N0 -= 1
    assert N0 <= 42
    L0 = N0 - R
    NB = (1024 - L0) // RS + 1
    ndouble = L0 // RS
    steps = [0, 1] + [2] * ndouble + [1] * (NB - 2 - ndouble)
    assert sum(steps) == 256 and len(steps) == NB
    cons = 0
    for j, s in enumerate(steps):
        assert min(1024, N0 + (j + 1) * RS) - NSLOT <= cons
        cons += RS * s
        assert cons <= L0 + RS * j

    sW, sH, sB, sJ = 20, 21, 22, 23
    KV, WQ, WO, XS, YS, OS = 24, 28, 32, 36, 40, 44
    sVlo, sVhi = 48, 49
    t0, t1, t2, t3 = 50, 51, 52, 53
    stamp_reg = {k: 64 + 2 * k for k in range(14)}

    def stamp(k):
        if stamps:
            a("s_memrealtime s[%d:%d]" % (stamp_reg[k], stamp_reg[k] + 1))

    def flush_stamps(ks):
        if not stamps:
            return
        a("s_waitcnt lgkmcnt(0)")
        a("s_lshl_b32 s%d, s2, 7" % t0)
        a("s_add_u32 s%d, s%d, 0x4000000" % (t0, t0))
        a("v_mov_b32 v1, s%d" % t0)
        for k in ks:
            a("v_mov_b32 v2, s%d" % stamp_reg[k])
            a("v_mov_b32 v3, s%d" % (stamp_reg[k] + 1))
            a("global_store_dwordx2 v1, v[2:3], s[18:19] offset:%d" % (8 * k))
            a("s_nop 1")

    def srd(d, lo, hi, off_sreg, nbytes):
        a("s_add_u32 s%d, s%d, s%d" % (d, lo, off_sreg))
        a("s_addc_u32 s%d, s%d, 0" % (d + 1, hi))
        if isinstance(nbytes, int):
            a("s_mov_b32 s%d, %d" % (d + 2, nbytes))
        else:
            a(nbytes % (d + 2))
        a("s_mov_b32 s%d, 0x20000" % (d + 3))

    def masks(base, tmp):
        c("lane-constant masks: element (lane & 7) of an 8 x bf16 operand")
        a("v_and_b32 v%d, 1, v0" % tmp)
        a("v_lshlrev_b32 v%d, 4, v%d" % (tmp, tmp))
        a("v_mov_b32 v%d, 0xffff" % (tmp + 1))
        a("v_lshlrev_b32 v%d, v%d, v%d" % (tmp, tmp, tmp + 1))
        a("v_bfe_u32 v%d, v0, 1, 2" % (tmp + 1))
        for j in range(4):
            a("v_cmp_eq_u32 vcc, %d, v%d" % (j, tmp + 1))
            a("s_nop 1")
            a("v_cndmask_b32 v%d, 0, v%d, vcc" % (base + j, tmp))

    def useful_lane_offset(dst, tmp, esize, rowstride):
        c("byte offset of this lane's 4 accumulator values: half * rowstride + (8*(n&7) + 4*(q&1)) * esize")
        a("v_and_b32 v%d, 7, v0" % dst)
        a("v_bfe_u32 v%d, v0, 4, 1" % tmp)
        a("v_lshl_add_u32 v%d, v%d, 1, v%d" % (dst, dst, tmp))
        a("v_mul_u32_u24 v%d, %d, v%d" % (dst, 4 * esize, dst))
        a("v_lshrrev_b32 v%d, 5, v0" % tmp)
        a("v_mul_u32_u24 v%d, %d, v%d" % (tmp, rowstride, tmp))
        a("v_add_u32 v%d, v%d, v%d" % (dst, dst, tmp))

    def set_useful_exec():
        a("s_mov_b32 exec_lo, 0x00ff00ff")
        a("s_mov_b32 exec_hi, 0xff00ff00")

    stamp(0)
    a("s_cmp_ge_u32 s2, 256")
    a("s_cbranch_scc1 L_end")
    a("s_load_dwordx16 s[4:19], s[0:1], 0")
    a("v_lshrrev_b32 v1, 6, v0")
    a("v_and_b32 v0, 63, v0")
    a("s_and_b32 s%d, s2, 7" % t0)
    a("v_readfirstlane_b32 s%d, v1" % sW)
    a("s_lshr_b32 s%d, s2, 3" % sJ)
    a("s_lshl_b32 s%d, s%d, 2" % (t0, t0))
    a("s_and_b32 s%d, s%d, 3" % (t1, sJ))
    a("s_add_u32 s%d, s%d, s%d" % (sH, t0, t1))
    a("s_lshr_b32 s%d, s%d, 2" % (sB, sJ))
    a("s_cmp_ge_u32 s%d, 3" % sW)
    a("s_cbranch_scc1 L_holder")
    a("s_cmp_ge_u32 s%d, 1" % sW)
    a("s_cbranch_scc1 L_consumer")

    c("======== loader ========")
    sM, sOff, sN, sCnt, sBar, sBlk, sMod = 54, 55, 56, 57, 58, 59, 60
    vOff, vA, vB = 4, 5, 6
    if prio:
        a("s_setprio %d" % prio)
    a("s_lshl_b32 s%d, s%d, 5" % (t0, sB))
    a("s_add_u32 s%d, s%d, s%d" % (t0, t0, sH))
    a("s_mul_i32 s%d, s%d, %d" % (t0, t0, BH))
    c("lane -> 4 keys of the low sub-stream (lanes 0-31), 4 keys of the high one (lanes 32-63)")
    a("v_bfe_u32 v1, v0, 3, 2")
    a("v_mul_u32_u24 v1, 384, v1")
    a("v_and_b32 v2, 7, v0")
    a("v_lshl_add_u32 v1, v2, 4, v1")
    a("v_lshrrev_b32 v2, 5, v0")
    a("v_mul_u32_u24 v3, %d, v2" % (172 * 384))
    a("v_add_u32 v%d, v1, v3" % vA)
    a("v_mul_u32_u24 v3, %d, v2" % (168 * 384))
    a("v_add_u32 v%d, v1, v3" % vB)
    a("s_mov_b32 s%d, 0" % sM)
    a("s_mov_b32 s%d, 0" % sN)
    a("s_mov_b32 s%d, 0" % sBlk)
    if stag:
        c("start block = (stag * (wg >> 3)) mod 12")
        a("s_mul_i32 s%d, s%d, %d" % (t1, sJ, stag))
        a("s_mul_hi_u32 s%d, s%d, %d" % (t2, t1, -(-(1 << 32) // 12)))
        a("s_mul_i32 s%d, s%d, 12" % (t2, t2))
        a("s_sub_u32 s%d, s%d, s%d" % (t1, t1, t2))
        a("s_mul_hi_u32 s%d, s%d, %d" % (t2, t1, -(-(1 << 32) // 3)))
        a("s_mul_i32 s%d, s%d, 3" % (t3, t2))
        a("s_sub_u32 s%d, s%d, s%d" % (sMod, t1, t3))
        a("s_mul_i32 s%d, s%d, 393216" % (t2, t2))
        a("s_mul_i32 s%d, s%d, 132096" % (t3, sMod))
        a("s_add_u32 s%d, s%d, s%d" % (sOff, t2, t3))
        a("s_cmp_eq_u32 s%d, 2" % sMod)
        a("s_cselect_b32 s%d, 42, 43" % sCnt)
        a("s_cselect_b64 vcc, -1, 0")
        a("v_cndmask_b32 v%d, v%d, v%d, vcc" % (vOff, vA, vB))
    else:
        a("s_mov_b32 s%d, 0" % sOff)
        a("s_mov_b32 s%d, 0" % sMod)
        a("s_mov_b32 s%d, 43" % sCnt)
        a("v_mov_b32 v%d, v%d" % (vOff, vA))
    a("s_waitcnt lgkmcnt(0)")
    a("s_add_u32 s%d, s8, s%d" % (sVlo, t0))
    a("s_addc_u32 s%d, s9, 0" % sVhi)
    srd(KV, 6, 7, t0, BH)

    def issue():
        a("s_mov_b32 m0, s%d" % sM)
        a("s_add_u32 s%d, s%d, 1" % (sN, sN))
        a("buffer_load_dwordx4 v%d, s[%d:%d], s%d offen nt lds" % (vOff, KV, KV + 3, sOff))
        a("s_add_u32 m0, s%d, 896" % sM)
        a("s_sub_u32 s%d, s%d, 1" % (sCnt, sCnt))
        a("buffer_load_dwordx4 v%d, s[%d:%d], s%d offen offset:128 nt lds" % (vOff, KV, KV + 3, sOff))
        a("s_add_u32 m0, s%d, 1792" % sM)
        a("s_add_u32 s%d, s%d, %d" % (sM, sM, UNIT))
        a("buffer_load_dwordx4 v%d, s[%d:%d], s%d offen offset:256 nt lds" % (vOff, KV, KV + 3, sOff))
        a("s_add_u32 s%d, s%d, 1536" % (sOff, sOff))

    lab("L_ld_fill")
    a("s_waitcnt vmcnt(%d)" % (3 * (R0 - 1)))
    issue()
    a("s_cmp_lt_u32 s%d, %d" % (sN, N0 - 1))
    a("s_cbranch_scc1 L_ld_fill")
    a("s_mov_b32 s%d, 1" % sBar)
    stamp(1)
    lab("L_ld")
    a("s_waitcnt vmcnt(%d)" % (3 * (R - 1)))
    issue()
    a("s_cmp_eq_u32 s%d, %d" % (sM, RING))
    a("s_cselect_b32 s%d, 0, s%d" % (sM, sM))
    a("s_cmp_eq_u32 s%d, 0" % sCnt)
    a("s_cbranch_scc1 L_ld_block")
    lab("L_ld_cont")
    a("s_sub_u32 s%d, s%d, 1" % (sBar, sBar))
    a("s_cmp_lg_u32 s%d, 0" % sBar)
    a("s_cbranch_scc1 L_ld")
    a("s_barrier")
    a("s_mov_b32 s%d, %d" % (sBar, RS))
    a("s_branch L_ld")
    lab("L_ld_block")
    c("end of a block of two sub-streams: skip the high one, pick the next block's shape")
    a("s_cmp_eq_u32 s%d, 2" % sMod)
    a("s_cselect_b32 s%d, 0, 1536" % t0)
    a("s_add_u32 s%d, s%d, %d" % (t0, t0, 168 * 384))
    a("s_add_u32 s%d, s%d, s%d" % (sOff, sOff, t0))
    a("s_cmp_ge_u32 s%d, %d" % (sOff, BH))
    a("s_cselect_b32 s%d, 0, s%d" % (sOff, sOff))
    a("s_add_u32 s%d, s%d, 1" % (sMod, sMod))
    a("s_cmp_eq_u32 s%d, 3" % sMod)
    a("s_cselect_b32 s%d, 0, s%d" % (sMod, sMod))
    a("s_cmp_eq_u32 s%d, 2" % sMod)
    a("s_cselect_b32 s%d, 42, 43" % sCnt)
    a("s_cselect_b64 vcc, -1, 0")
    a("v_cndmask_b32 v%d, v%d, v%d, vcc" % (vOff, vA, vB))
    a("s_add_u32 s%d, s%d, 1" % (sBlk, sBlk))
    a("s_cmp_eq_u32 s%d, 12" % sBlk)
    a("s_cselect_b32 s%d, s%d, s%d" % (KV, sVlo, KV))
    a("s_cselect_b32 s%d, s%d, s%d" % (KV + 1, sVhi, KV + 1))
    if stamps:
        for k, bn in ((8, 1), (9, 3), (10, 6), (11, 12), (12, 18)):
            a("s_cmp_lg_u32 s%d, %d" % (sBlk, bn))
            a("s_cbranch_scc1 L_st%d" % k)
            stamp(k)
            lab("L_st%d" % k)
    a("s_cmp_lg_u32 s%d, 24" % sBlk)
    a("s_cbranch_scc1 L_ld_cont")
    stamp(2)
    jdone = (1023 - N0) // RS
    for j in range(jdone + 1, NB):
        a("s_waitcnt vmcnt(%d)" % (3 * (1024 - (L0 + RS * j))))
        a("s_barrier")
    stamp(3)
    flush_stamps([0, 1, 2, 3, 8, 9, 10, 11, 12])
    a("s_endpgm")

    c("======== consumers ========")
    lab("L_consumer")
    sC, sA0, sA1, sSc, sRound, sIn, sScale = 54, 55, 56, 57, 58, 59, 60
    sOne = 62
    vL16, vAd0, vAd1, vSA, vM, vLsum, vMc = 4, 5, 6, 7, 8, 9, 10
    vS = 12
    vT = 14
    vMask = 16
    vQ = 20
    vAcc = 32
    vAop = 44
    vD = 52
    a("s_sub_u32 s%d, s%d, 1" % (sC, sW))
    a("v_lshlrev_b32 v%d, 4, v0" % vL16)
    masks(vMask, vT)
    a("s_mul_i32 s%d, s%d, %d" % (sA0, sC, 2 * UNIT))
    a("s_add_u32 s%d, s%d, %d" % (sA1, sA0, UNIT))
    a("v_lshrrev_b32 v%d, 3, v0" % vSA)
    a("v_lshlrev_b32 v%d, 3, v%d" % (vSA, vSA))
    a("s_lshl_b32 s%d, s%d, 6" % (t0, sC))
    a("s_add_u32 s%d, s%d, %d" % (t0, t0, SC))
    a("v_add_u32 v%d, s%d, v%d" % (vSA, t0, vSA))
    a("v_mov_b32 v%d, 0xff800000" % vM)
    a("v_mov_b32 v%d, 0" % vLsum)
    for i in range(12):
        a("v_mov_b32 v%d, 0" % (vAcc + i))
    a("s_mov_b32 s%d, 0x01010101" % sOne)
    a("s_mov_b32 s%d, 0x01010101" % (sOne + 1))
    a("s_mov_b32 s%d, 0x%08x" % (sScale, f32bits(192 ** -0.5 * math.log2(math.e))))
    a("s_waitcnt lgkmcnt(0)")
    a("s_barrier")
    c("round 0: wave 1 sums the ten q partials and rounds q to bf16")
    a("s_cmp_lg_u32 s%d, 0" % sC)
    a("s_cbranch_scc1 L_c_q")
    a("v_min_u32 v%d, 47, v0" % vT)
    a("v_lshlrev_b32 v%d, 4, v%d" % (vAd0, vT))
    a("v_add_u32 v%d, %d, v%d" % (vAd0, QP, vAd0))
    for r in range(10):
        a("ds_read_b128 v[%d:%d], v%d offset:%d" % (vD + 4 * r, vD + 4 * r + 3, vAd0, 768 * r))
    a("v_lshlrev_b32 v%d, 3, v%d" % (vAd1, vT))
    a("v_add_u32 v%d, %d, v%d" % (vAd1, Q, vAd1))
    for r in range(1, 10):
        a("s_waitcnt lgkmcnt(%d)" % (9 - r))
        for i in range(4):
            a("v_add_f32 v%d, v%d, v%d" % (vD + i, vD + i, vD + 4 * r + i))
    a("v_cvt_pk_bf16_f32 v%d, v%d, v%d" % (vS, vD, vD + 1))
    a("v_cvt_pk_bf16_f32 v%d, v%d, v%d" % (vS + 1, vD + 2, vD + 3))
    a("ds_write_b64 v%d, v[%d:%d]" % (vAd1, vS, vS + 1))
    a("s_waitcnt lgkmcnt(0)")
    lab("L_c_q")
    a("s_barrier")
    a("v_and_b32 v%d, 7, v0" % vT)
    a("v_lshlrev_b32 v%d, 4, v%d" % (vT, vT))
    a("v_add_u32 v%d, %d, v%d" % (vT, Q, vT))
    for i in range(3):
        a("ds_read_b128 v[%d:%d], v%d offset:%d" % (vQ + 4 * i, vQ + 4 * i + 3, vT, 128 * i))
    a("s_mov_b32 s%d, 1" % sRound)
    a("s_mov_b32 s%d, 1" % sIn)
    a("s_mov_b32 s%d, 0" % sSc)

    def data_reads():
        a("v_add_u32 v%d, s%d, v%d" % (vAd0, sA0, vL16))
        a("v_add_u32 v%d, s%d, v%d" % (vAd1, sA1, vL16))
        for u, ad in ((0, vAd0), (1, vAd1)):
            for i in range(3):
                r = vD + 12 * u + 4 * i
                a("ds_read_b128 v[%d:%d], v%d offset:%d" % (r, r + 3, ad, 1024 * i))
        for s in (sA0, sA1):
            a("s_add_u32 s%d, s%d, %d" % (s, s, RS * UNIT))
            a("s_cmp_ge_u32 s%d, %d" % (s, RING))
            a("s_cselect_b32 s%d, %d, 0" % (t0, RING))
            a("s_sub_u32 s%d, s%d, s%d" % (s, s, t0))

    lab("L_c_k")
    data_reads()
    for u in range(2):
        for i in range(3):
            a("s_waitcnt lgkmcnt(%d)" % (5 - 3 * u - i))
            for k in range(4):
                src = "0" if (i == 0 and k == 0) else "v%d" % (vS + u)
                a("v_dot2_f32_bf16 v%d, v%d, v%d, %s" % (vS + u, vD + 12 * u + 4 * i + k, vQ + 4 * i + k, src))
    for step, ctl in enumerate(("quad_perm:[1,0,3,2]", "quad_perm:[2,3,0,1]", "row_half_mirror")):
        a("v_add_f32_dpp v%d, v%d, v%d %s row_mask:0xf bank_mask:0xf" % (vS, vS, vS, ctl))
        a("s_nop %d" % (1 if step == 0 else 0))
        a("v_add_f32_dpp v%d, v%d, v%d %s row_mask:0xf bank_mask:0xf" % (vS + 1, vS + 1, vS + 1, ctl))
    a("s_add_u32 s%d, s%d, 1" % (sSc, sSc))
    a("v_max3_f32 v%d, v%d, v%d, v%d" % (vM, vM, vS, vS + 1))
    a("s_mov_b64 exec, s[%d:%d]" % (sOne, sOne + 1))
    a("ds_write_b64 v%d, v[%d:%d]" % (vSA, vS, vS + 1))
    a("s_mov_b64 exec, -1")
    a("v_add_u32 v%d, 128, v%d" % (vSA, vSA))
    a("s_cmp_eq_u32 s%d, 128" % sSc)
    a("s_cbranch_scc1 L_c_kdone")
    a("s_sub_u32 s%d, s%d, 1" % (sIn, sIn))
    a("s_cmp_lg_u32 s%d, 0" % sIn)
    a("s_cbranch_scc1 L_c_k")
    a("s_add_u32 s%d, s%d, 1" % (sRound, sRound))
    a("s_cmp_lt_u32 s%d, %d" % (sRound, 2 + ndouble))
    a("s_cselect_b32 s%d, 2, 1" % sIn)
    a("s_barrier")
    a("s_branch L_c_k")
    lab("L_c_kdone")
    assert 1 + 2 * ndouble < 128
    c("exact row max over all 4096 scores, shared through LDS")
    a("s_nop 1")
    a("v_max_f32_dpp v%d, v%d, v%d row_ror:8 row_mask:0xf bank_mask:0xf" % (vM, vM, vM))
    a("v_lshrrev_b32 v%d, 4, v0" % vT)
    a("v_lshlrev_b32 v%d, 2, v%d" % (vT, vT))
    a("s_lshl_b32 s%d, s%d, 4" % (t0, sC))
    a("v_add_u32 v%d, s%d, v%d" % (vT + 1, t0, vT))
    a("v_add_u32 v%d, %d, v%d" % (vT + 1, MX, vT + 1))
    a("ds_write_b32 v%d, v%d" % (vT + 1, vM))
    a("v_subrev_u32 v%d, %d, v%d" % (vSA, 16384, vSA))
    a("s_waitcnt lgkmcnt(0)")
    a("s_barrier")
    a("v_mov_b32 v%d, %d" % (vT, MX))
    a("ds_read_b128 v[%d:%d], v%d" % (vAop, vAop + 3, vT))
    a("ds_read_b128 v[%d:%d], v%d offset:16" % (vAop + 4, vAop + 7, vT))
    a("s_waitcnt lgkmcnt(0)")
    a("v_max3_f32 v%d, v%d, v%d, v%d" % (vM, vAop, vAop + 1, vAop + 2))
    a("v_max3_f32 v%d, v%d, v%d, v%d" % (vM, vM, vAop + 3, vAop + 4))
    a("v_max3_f32 v%d, v%d, v%d, v%d" % (vM, vM, vAop + 5, vAop + 6))
    a("v_max_f32 v%d, v%d, v%d" % (vM, vM, vAop + 7))
    a("v_mul_f32 v%d, s%d, v%d" % (vMc, sScale, vM))
    a("s_mov_b32 s%d, 0" % sSc)
    lab("L_c_v")
    a("ds_read_b64 v[%d:%d], v%d" % (vS, vS + 1, vSA))
    data_reads()
    a("v_add_u32 v%d, 128, v%d" % (vSA, vSA))
    a("s_waitcnt lgkmcnt(6)")
    a("v_fma_f32 v%d, v%d, s%d, -v%d" % (vS, vS, sScale, vMc))
    a("v_fma_f32 v%d, v%d, s%d, -v%d" % (vS + 1, vS + 1, sScale, vMc))
    a("v_exp_f32 v%d, v%d" % (vS, vS))
    a("v_exp_f32 v%d, v%d" % (vS + 1, vS + 1))
    a("s_add_u32 s%d, s%d, 1" % (sSc, sSc))
    a("v_cvt_pk_bf16_f32 v%d, v%d, v%d" % (vT, vS, vS))
    a("v_cvt_pk_bf16_f32 v%d, v%d, v%d" % (vT + 1, vS + 1, vS + 1))
    for u in range(2):
        for j in range(4):
            a("v_and_b32 v%d, v%d, v%d" % (vAop + 4 * u + j, vMask + j, vT + u))
    a("v_add_f32 v%d, v%d, v%d" % (vLsum, vLsum, vS))
    a("v_add_f32 v%d, v%d, v%d" % (vLsum, vLsum, vS + 1))
    for u in range(2):
        for i in range(3):
            a("s_waitcnt lgkmcnt(%d)" % (5 - 3 * u - i))
            r = vD + 12 * u + 4 * i
            a("v_mfma_f32_16x16x32_bf16 v[%d:%d], v[%d:%d], v[%d:%d], v[%d:%d]" % (
                vAcc + 4 * i, vAcc + 4 * i + 3, vAop + 4 * u, vAop + 4 * u + 3, r, r + 3, vAcc + 4 * i, vAcc + 4 * i + 3))
    a("s_cmp_eq_u32 s%d, 128" % sSc)
    a("s_cbranch_scc1 L_c_vdone")
    a("s_barrier")
    a("s_branch L_c_v")
    lab("L_c_vdone")
    c("publish the unnormalised o partials (bf16) and the weight sums")
    a("v_add_f32_dpp v%d, v%d, v%d row_ror:8 row_mask:0xf bank_mask:0xf" % (vLsum, vLsum, vLsum))
    a("v_lshrrev_b32 v%d, 4, v0" % vT)
    a("v_lshlrev_b32 v%d, 2, v%d" % (vT, vT))
    a("s_lshl_b32 s%d, s%d, 4" % (t0, sC))
    a("s_add_u32 s%d, s%d, %d" % (t0, t0, LS))
    a("v_add_u32 v%d, s%d, v%d" % (vT, t0, vT))
    a("ds_write_b32 v%d, v%d" % (vT, vLsum))
    useful_lane_offset(vAd0, vT, 2, OPS)
    a("s_mul_i32 s%d, s%d, %d" % (t0, sC, 2 * OPS))
    a("s_add_u32 s%d, s%d, %d" % (t0, t0, OP))
    a("v_add_u32 v%d, s%d, v%d" % (vAd0, t0, vAd0))
    for i in range(3):
        a("v_cvt_pk_bf16_f32 v%d, v%d, v%d" % (vD + 2 * i, vAcc + 4 * i, vAcc + 4 * i + 1))
        a("v_cvt_pk_bf16_f32 v%d, v%d, v%d" % (vD + 2 * i + 1, vAcc + 4 * i + 2, vAcc + 4 * i + 3))
    set_useful_exec()
    for i in range(3):
        a("ds_write_b64 v%d, v[%d:%d] offset:%d" % (vAd0, vD + 2 * i, vD + 2 * i + 1, 128 * i))
    a("s_waitcnt lgkmcnt(0)")
    a("s_barrier")
    a("s_endpgm")

    c("======== holders ========")
    lab("L_holder")
    sHj, sO, sSelLo, sSelHi, sLoop, sTry = 54, 55, 56, 57, 58, 59
    sPlo, sPhi = 60, 61
    vWq, vWo, vY, vTmp = 4, 5, 6, 7
    vHM = 12
    vX = 16
    vHA = 24
    blk = lambda k: 32 + 32 * k
    a("s_sub_u32 s%d, s%d, 3" % (sHj, sW))
    a("v_lshrrev_b32 v1, 3, v0")
    a("v_and_b32 v2, 7, v0")
    a("v_mul_u32_u24 v3, 160, v1")
    a("s_lshl_b32 s%d, s%d, 5" % (t0, sHj))
    a("v_add_u32 v3, s%d, v3" % t0)
    a("v_mul_u32_u24 v%d, %d, v1" % (vWq, 80 * 12288))
    a("v_lshl_add_u32 v%d, v2, 4, v%d" % (vWq, vWq))
    a("s_mul_i32 s%d, s%d, %d" % (sO, sHj, 16 * 12288))
    a("s_mul_i32 s%d, s%d, 384" % (t0, sH))
    a("s_mul_i32 s%d, s%d, 1280" % (t1, sB))
    a("s_waitcnt lgkmcnt(0)")
    srd(XS, 4, 5, t1, 1280)
    srd(WQ, 10, 11, t0, "s_sub_u32 s%%d, 7864320, s%d" % t0)
    a("buffer_load_dwordx4 v[%d:%d], v3, s[%d:%d], 0 offen" % (vX, vX + 3, XS, XS + 3))
    a("buffer_load_dwordx4 v[%d:%d], v3, s[%d:%d], 0 offen offset:16" % (vX + 4, vX + 7, XS, XS + 3))

    def wq_load(u):
        for i in range(3):
            r = blk(0) + 12 * u + 4 * i
            a("buffer_load_dwordx4 v[%d:%d], v%d, s[%d:%d], s%d offen offset:%d %s" % (r, r + 3, vWq, WQ, WQ + 3, sO, 128 * i, wpol))
        a("s_add_u32 s%d, s%d, 12288" % (sO, sO))

    wu = min(16, W // 3)
    for u in range(wu):
        wq_load(u)
    srd(OS, 14, 15, t1, 1280)
    a("s_mul_i32 s%d, s%d, 245760" % (t0, sH))
    srd(WO, 12, 13, t0, 245760)
    a("s_mul_i32 s%d, s%d, 81920" % (t0, sB))
    srd(YS, 18, 19, t0, 81920)
    masks(vHM, 8)
    a("s_mov_b32 s%d, 0x01000100" % sSelLo)
    a("s_mov_b32 s%d, 0x03020302" % sSelHi)
    qacc = blk(6)
    for u in range(16):
        issued = min(16, wu + u)
        a("s_waitcnt vmcnt(%d)" % (3 * (issued - u - 1)))
        A = vHA + 4 * (u % 2)
        a("v_perm_b32 v%d, v%d, v%d, s%d" % (vTmp, vX + u // 2, vX + u // 2, sSelHi if u % 2 else sSelLo))
        for j in range(4):
            a("v_and_b32 v%d, v%d, v%d" % (A + j, vHM + j, vTmp))
        if wu + u < 16:
            wq_load(wu + u)
        else:
            a("s_nop 1")
        for i in range(3):
            r = blk(0) + 12 * u + 4 * i
            srcc = "0" if u == 0 else "v[%d:%d]" % (qacc + 4 * i, qacc + 4 * i + 3)
            a("v_mfma_f32_16x16x32_bf16 v[%d:%d], v[%d:%d], v[%d:%d], %s" % (qacc + 4 * i, qacc + 4 * i + 3, A, A + 3, r, r + 3, srcc))
    useful_lane_offset(8, 9, 4, 768)
    a("s_mul_i32 s%d, s%d, 1536" % (t0, sHj))
    a("s_add_u32 s%d, s%d, %d" % (t0, t0, QP))
    a("v_add_u32 v8, s%d, v8" % t0)
    set_useful_exec()
    for i in range(3):
        a("ds_write_b128 v8, v[%d:%d] offset:%d" % (qacc + 4 * i, qacc + 4 * i + 3, 256 * i))
    a("s_mov_b64 exec, -1")
    stamp(4)
    c("addresses for wo and for this wave's part of the y hand-off buffer")
    a("v_lshrrev_b32 v1, 4, v0")
    a("v_and_b32 v2, 15, v0")
    a("v_mul_u32_u24 v%d, 10240, v1" % vWo)
    a("v_lshl_add_u32 v%d, v2, 4, v%d" % (vWo, vWo))
    a("s_lshl_b32 s%d, s%d, 8" % (t0, sHj))
    a("v_add_u32 v%d, s%d, v%d" % (vWo, t0, vWo))
    a("s_lshl_b32 s%d, s%d, 14" % (t0, sHj))
    a("s_lshl_b32 s%d, s%d, 9" % (t1, sH))
    a("s_add_u32 s%d, s%d, s%d" % (t0, t0, t1))
    a("v_lshlrev_b32 v%d, 4, v0" % vY)
    a("v_add_u32 v%d, s%d, v%d" % (vY, t0, vY))
    a("s_mov_b32 s%d, 0x05040100" % sPlo)
    a("s_mov_b32 s%d, 0x07060302" % sPhi)
    a("s_waitcnt lgkmcnt(0)")
    a("s_barrier")
    nb = 1

    def idle(n):
        if n <= 0:
            return
        if n <= 2:
            for _ in range(n):
                a("s_barrier")
            return
        name = "L_h_idle%d" % len(L)
        a("s_mov_b32 s%d, %d" % (sLoop, n))
        lab(name)
        a("s_barrier")
        a("s_sub_u32 s%d, s%d, 1" % (sLoop, sLoop))
        a("s_cmp_lg_u32 s%d, 0" % sLoop)
        a("s_cbranch_scc1 %s" % name)

    c("mark this wave's hand-off slot empty")
    for i in range(4):
        a("v_mov_b32 v%d, -1" % (8 + i))
    a("s_mov_b32 exec_hi, 0")
    a("buffer_store_dwordx4 v[8:11], v%d, s[%d:%d], 0 offen sc1" % (vY, YS, YS + 3))
    a("s_mov_b64 exec, -1")
    idle(wo_r0)
    nb += wo_r0
    n = 0
    while n < 48:
        for _ in range(wo_k):
            ks, i = divmod(n, 8)
            if i % 4 == 0:
                a("s_mov_b32 s%d, %d" % (sO, ks * 40960 + (i // 4) * 5120))
            r = blk(ks + 1) + 4 * i
            a("buffer_load_dwordx4 v[%d:%d], v%d, s[%d:%d], s%d offen offset:%d %s" % (r, r + 3, vWo, WO, WO + 3, sO, (i % 4) * 1280, wpol))
            n += 1
        a("s_barrier")
        nb += 1
    idle(8)
    nb += 8
    a("s_waitcnt vmcnt(0)")
    c("transpose each 8x8 block in place of the previous one: 8 rows x 8 columns -> 8 columns x 8 rows")
    for ks in range(6):
        src, dst = blk(ks + 1), blk(ks)
        for col in range(8):
            for p in range(4):
                a("v_perm_b32 v%d, v%d, v%d, s%d" % (dst + 4 * col + p, src + 4 * (2 * p + 1) + col // 2, src + 4 * (2 * p) + col // 2, sPhi if col % 2 else sPlo))
        a("s_barrier")
        nb += 1
    a("v_and_b32 v1, 3, v0")
    a("v_mul_u32_u24 v1, %d, v1" % OPS)
    a("v_lshrrev_b32 v2, 4, v0")
    a("v_lshl_add_u32 v1, v2, 4, v1")
    a("v_add_u32 v1, %d, v1" % OP)
    a("v_mov_b32 v2, %d" % LS)
    a("s_lshl_b32 s%d, s%d, 2" % (t0, sB))
    a("v_mov_b32 v3, s%d" % t0)
    a("v_mov_b32 v%d, 1" % vTmp)
    idle(NB - hint - nb)
    nb = NB - hint
    c("arrival ticket of this batch row: the last arriver sums the row; every slot is marked empty by then")
    a("s_cmp_lg_u32 s%d, 0" % sHj)
    a("s_cbranch_scc1 L_h_noticket")
    a("s_mov_b64 exec, 1")
    a("global_atomic_add v%d, v3, v%d, s[16:17] sc0 sc1" % (vTmp, vTmp))
    a("s_mov_b64 exec, -1")
    lab("L_h_noticket")
    idle(hint)
    a("s_cmp_lg_u32 s%d, 0" % sHj)
    a("s_cbranch_scc1 L_h_noshare")
    a("s_waitcnt vmcnt(0)")
    a("s_mov_b64 exec, 1")
    a("ds_write_b32 v2, v%d offset:32" % vTmp)
    a("s_mov_b64 exec, -1")
    a("s_waitcnt lgkmcnt(0)")
    lab("L_h_noshare")
    a("s_barrier")
    stamp(5)
    oacc = blk(6)
    for ks in range(6):
        a("ds_read_b128 v[%d:%d], v1 offset:%d" % (8 + 4 * ks, 11 + 4 * ks, 64 * ks))
    for ks in range(6):
        a("s_waitcnt lgkmcnt(%d)" % (5 - ks))
        for col in range(8):
            r = blk(ks) + 4 * col
            srcc = "0" if ks == 0 else "v[%d:%d]" % (oacc + 4 * col, oacc + 4 * col + 3)
            a("v_mfma_f32_16x16x32_bf16 v[%d:%d], v[%d:%d], v[%d:%d], %s" % (oacc + 4 * col, oacc + 4 * col + 3, 8 + 4 * ks, 11 + 4 * ks, r, r + 3, srcc))
        if ks == 1:
            a("ds_read_b128 v[8:11], v2")
            a("ds_read_b128 v[12:15], v2 offset:16")
            a("ds_read_b32 v%d, v2 offset:32" % vTmp)
        if ks == 4:
            a("s_waitcnt lgkmcnt(0)")
            a("v_add_f32 v8, v8, v9")
            a("v_add_f32 v10, v10, v11")
            a("v_add_f32 v12, v12, v13")
            a("v_add_f32 v14, v14, v15")
            a("v_add_f32 v8, v8, v10")
            a("v_add_f32 v12, v12, v14")
            a("v_add_f32 v8, v8, v12")
            a("v_rcp_f32 v9, v8")
            a("s_nop 0")
            a("v_fma_f32 v10, -v8, v9, 1.0")
            a("v_fma_f32 v9, v10, v9, v9")
    for col in range(8):
        r = oacc + 4 * col
        if col == 0:
            a("s_nop 0")
        a("v_add_f32 v%d, v%d, v%d" % (r, r, r + 1))
        a("v_add_f32 v%d, v%d, v%d" % (r + 2, r + 2, r + 3))
        a("v_add_f32 v%d, v%d, v%d" % (r, r, r + 2))
        a("v_mul_f32 v%d, v9, v%d" % (16 + col, r))
        a("v_min_u32 v%d, -2, v%d" % (16 + col, 16 + col))
    a("s_mov_b64 exec, 0xffff")
    a("buffer_store_dwordx4 v[16:19], v%d, s[%d:%d], 0 offen sc1" % (vY, YS, YS + 3))
    a("buffer_store_dwordx4 v[20:23], v%d, s[%d:%d], 0 offen offset:256 sc1" % (vY, YS, YS + 3))
    a("s_mov_b64 exec, -1")
    stamp(6)
    c("in the last-arriving workgroup each wave sums its 128 columns over the 32 heads")
    a("v_readfirstlane_b32 s%d, v%d" % (t0, vTmp))
    a("s_mov_b32 s%d, 0" % sTry)
    a("s_cmp_lg_u32 s%d, 31" % t0)
    a("s_cbranch_scc1 L_h_done")
    a("v_lshlrev_b32 v1, 4, v0")
    a("s_lshl_b32 s%d, s%d, 14" % (sO, sHj))
    a("s_add_u32 s%d, s%d, 4096" % (t1, sO))
    a("s_add_u32 s%d, s%d, 8192" % (t2, sO))
    a("s_add_u32 s%d, s%d, 12288" % (t3, sO))
    G = blk(0)
    lab("L_r_poll")
    for k in range(16):
        so = (sO, t1, t2, t3)[k // 4]
        a("buffer_load_dwordx4 v[%d:%d], v1, s[%d:%d], s%d offen offset:%d sc1" % (G + 4 * k, G + 4 * k + 3, YS, YS + 3, so, 1024 * (k % 4)))
    for k in range(1, 16):
        a("s_waitcnt vmcnt(%d)" % (15 - k))
        for i in range(4):
            a("v_add_f32 v%d, v%d, v%d" % (8 + i, G + i if k == 1 else 8 + i, G + 4 * k + i))
    a("v_cmp_u_f32 vcc, v8, v9")
    a("v_cmp_u_f32 s[62:63], v10, v11")
    a("s_nop 1")
    a("s_or_b64 vcc, vcc, s[62:63]")
    a("s_cbranch_vccz L_r_sum")
    c("a NaN sum: either an empty slot (poll again) or a NaN in the data")
    a("v_max3_u32 v12, v%d, v%d, v%d" % (G, G + 1, G + 2))
    for k in range(3, 63, 2):
        a("v_max3_u32 v12, v12, v%d, v%d" % (G + k, G + k + 1))
    a("v_max_u32 v12, v12, v%d" % (G + 63))
    a("v_cmp_eq_u32 vcc, -1, v12")
    a("s_add_u32 s%d, s%d, 1" % (sTry, sTry))
    a("s_cbranch_vccz L_r_sum")
    a("s_cmp_lt_u32 s%d, 0x100000" % sTry)
    a("s_cbranch_scc1 L_r_poll")
    lab("L_r_sum")
    for i in range(4):
        a("v_mov_b32 v%d, v%d" % (12 + i, 8 + i))
    a("v_and_b32 v2, 15, v0")
    a("v_bfe_u32 v3, v0, 4, 1")
    for i in range(4):
        a("v_permlane32_swap_b32 v%d, v%d" % (8 + i, 12 + i))
    a("v_lshlrev_b32 v2, 4, v2")
    a("v_lshl_add_u32 v2, v3, 3, v2")
    for i in range(4):
        a("v_add_f32 v%d, v%d, v%d" % (8 + i, 8 + i, 12 + i))
    a("s_lshl_b32 s%d, s%d, 8" % (t0, sHj))
    a("v_cvt_pk_bf16_f32 v8, v8, v9")
    a("v_cvt_pk_bf16_f32 v9, v10, v11")
    a("s_mov_b32 exec_hi, 0")
    a("buffer_store_dwordx2 v[8:9], v2, s[%d:%d], s%d offen" % (OS, OS + 3, t0))
    a("s_mov_b64 exec, -1")
    lab("L_h_done")
    if stamps:
        a("s_waitcnt vmcnt(0)")
        stamp(7)
        a("s_cmp_lg_u32 s%d, 4" % sHj)
        a("s_cbranch_scc1 L_end")
        flush_stamps([4, 5, 6, 7])
    lab("L_end")
    a("s_endpgm")
    return HEADER.format(lds=LDS, name=NAME) + "\n".join(L) + FOOTER.format(name=NAME)


if __name__ == "__main__":
    spec = json.loads(sys.argv[1])
    names = []
    for cfg in spec:
        cfg = dict(cfg)
        out = cfg.pop("out", None)
        name = out or ("work/k_" + "_".join("%s%s" % (k, str(v).replace(" ", "")) for k, v in cfg.items()) + ".s")
        open("code/" + name, "w").write(gen(**cfg))
        names.append(name)
    print(" ".join(names))
```

```python
import json
import math
import struct
import sys

NAME = "standalone__mha_block_cached__sampling_kernel"

HEADER = """; Kernarg layout for this problem (64 bytes, ptrs only, base s[0:1]):
; @launch grid=(256,1,1) block=(512,1,1) lds={lds}
.amdgcn_target "amdgcn-amd-amdhsa--gfx950"
.text
.globl {name}
.p2align 8
.type {name},@function
{name}:
"""
FOOTER = """
.section .rodata,"a"
.p2align 6
.amdhsa_kernel {name}
  .amdhsa_next_free_vgpr 256
  .amdhsa_next_free_sgpr 96
  .amdhsa_accum_offset 256
  .amdhsa_group_segment_fixed_size 0
  .amdhsa_kernarg_size 64
  .amdhsa_user_sgpr_count 2
  .amdhsa_user_sgpr_kernarg_segment_ptr 1
  .amdhsa_system_sgpr_workgroup_id_x 1
  .amdhsa_float_denorm_mode_32 3
.end_amdhsa_kernel
"""

BH = 1572864
UNIT = 3072
RS = 4


def f32bits(x):
    return struct.unpack("<I", struct.pack("<f", x))[0]


def gen(w1=17, w0=17, NSLOT=44, wo_r0=14, wo_k=1, hint=8, stamps=0, wqpol="nt", wopol="", prio=3, sleep=16,
        tshift=5, dbg=0, pregather=1, qw=0, delay=0):
    L = []

    def a(s):
        L.append("    " + s)

    def lab(s):
        L.append(s + ":")

    def c(s):
        L.append("    ; " + s)

    RING = NSLOT * UNIT
    SC = RING
    MISC = SC + 16384
    Q = MISC
    MX = MISC + 384
    LS = MISC + 416
    LDS = MISC + 512
    OP = SC
    OPS = 400
    QB = 0x100000
    assert LDS <= 163840

    R = -(-w1 // 3) + 1
    N0 = NSLOT - RS
    while (N0 - R) % RS or N0 > 42:
        N0 -= 1
    L0 = N0 - R
    NB = (1024 - L0) // RS + 1
    ndouble = L0 // RS - 1
    steps = [1] + [2] * ndouble + [1] * (NB - 1 - ndouble)
    assert sum(steps) == 256 and len(steps) == NB
    cons = 0
    for j, s in enumerate(steps):
        assert min(1024, N0 + (j + 1) * RS) - NSLOT <= cons
        cons += RS * s
        assert cons <= L0 + RS * j

    sW, sH, sB, sJ = 20, 21, 22, 23
    KV, WQ, WO, XS, YS, OS = 24, 28, 32, 36, 40, 44
    sVlo, sVhi = 48, 49
    t0, t1, t2, t3 = 50, 51, 52, 53
    stamp_reg = {k: 64 + 2 * k for k in range(15)}

    def stamp(k):
        if stamps:
            a("s_memrealtime s[%d:%d]" % (stamp_reg[k], stamp_reg[k] + 1))

    def flush_stamps(ks):
        if not stamps:
            return
        a("s_waitcnt lgkmcnt(0)")
        a("s_lshl_b32 s%d, s2, 7" % t0)
        a("s_add_u32 s%d, s%d, 0x4000000" % (t0, t0))
        a("v_mov_b32 v1, s%d" % t0)
        for k in ks:
            a("v_mov_b32 v2, s%d" % stamp_reg[k])
            a("v_mov_b32 v3, s%d" % (stamp_reg[k] + 1))
            a("global_store_dwordx2 v1, v[2:3], s[18:19] offset:%d" % (8 * k))
            a("s_nop 1")

    def srd(d, lo, hi, off_sreg, nbytes):
        a("s_add_u32 s%d, s%d, s%d" % (d, lo, off_sreg))
        a("s_addc_u32 s%d, s%d, 0" % (d + 1, hi))
        if isinstance(nbytes, int):
            a("s_mov_b32 s%d, %d" % (d + 2, nbytes))
        else:
            a(nbytes % (d + 2))
        a("s_mov_b32 s%d, 0x20000" % (d + 3))

    def masks(base, tmp):
        c("lane-constant masks: element (lane & 7) of an 8 x bf16 operand")
        a("v_and_b32 v%d, 1, v0" % tmp)
        a("v_lshlrev_b32 v%d, 4, v%d" % (tmp, tmp))
        a("v_mov_b32 v%d, 0xffff" % (tmp + 1))
        a("v_lshlrev_b32 v%d, v%d, v%d" % (tmp, tmp, tmp + 1))
        a("v_bfe_u32 v%d, v0, 1, 2" % (tmp + 1))
        for j in range(4):
            a("v_cmp_eq_u32 vcc, %d, v%d" % (j, tmp + 1))
            a("s_nop 1")
            a("v_cndmask_b32 v%d, 0, v%d, vcc" % (base + j, tmp))

    def useful_lane_offset(dst, tmp, esize, rowstride):
        c("byte offset of this lane's 4 accumulator values: half * rowstride + (8*(n&7) + 4*(q&1)) * esize")
        a("v_and_b32 v%d, 7, v0" % dst)
        a("v_bfe_u32 v%d, v0, 4, 1" % tmp)
        a("v_lshl_add_u32 v%d, v%d, 1, v%d" % (dst, dst, tmp))
        a("v_mul_u32_u24 v%d, %d, v%d" % (dst, 4 * esize, dst))
        a("v_lshrrev_b32 v%d, 5, v0" % tmp)
        a("v_mul_u32_u24 v%d, %d, v%d" % (tmp, rowstride, tmp))
        a("v_add_u32 v%d, v%d, v%d" % (dst, dst, tmp))

    def set_useful_exec():
        a("s_mov_b32 exec_lo, 0x00ff00ff")
        a("s_mov_b32 exec_hi, 0xff00ff00")

    stamp(0)
    a("s_cmp_ge_u32 s2, 256")
    a("s_cbranch_scc1 L_end")
    a("s_load_dwordx16 s[4:19], s[0:1], 0")
    a("v_lshrrev_b32 v1, 6, v0")
    a("v_and_b32 v0, 63, v0")
    a("s_and_b32 s%d, s2, 7" % t0)
    a("v_readfirstlane_b32 s%d, v1" % sW)
    a("s_lshr_b32 s%d, s2, 3" % sJ)
    a("s_lshl_b32 s%d, s%d, 2" % (t0, t0))
    a("s_and_b32 s%d, s%d, 3" % (t1, sJ))
    a("s_add_u32 s%d, s%d, s%d" % (sH, t0, t1))
    a("s_lshr_b32 s%d, s%d, 2" % (sB, sJ))
    a("s_cmp_ge_u32 s%d, 3" % sW)
    a("s_cbranch_scc1 L_holder")
    a("s_cmp_ge_u32 s%d, 1" % sW)
    a("s_cbranch_scc1 L_consumer")

    c("======== loader ========")
    sM, sOff, sN, sCnt, sBlk, sMod = 54, 55, 56, 57, 59, 60
    vOff, vA, vB = 4, 8, 12
    BIAS = 1792
    assert NSLOT % RS == 0
    if prio:
        a("s_setprio %d" % prio)
    a("s_lshl_b32 s%d, s%d, 5" % (t0, sB))
    a("s_add_u32 s%d, s%d, s%d" % (t0, t0, sH))
    a("s_mul_i32 s%d, s%d, %d" % (t0, t0, BH))
    c("lane -> 4 keys of the low sub-stream (lanes 0-31), 4 keys of the high one (lanes 32-63);")
    c("load i uses offset:1024*i (added to both addresses), so its lane offset carries 896*(2-i)")
    a("v_bfe_u32 v1, v0, 3, 2")
    a("v_mul_u32_u24 v1, 384, v1")
    a("v_and_b32 v2, 7, v0")
    a("v_lshl_add_u32 v1, v2, 4, v1")
    a("v_lshrrev_b32 v2, 5, v0")
    a("v_mul_u32_u24 v3, %d, v2" % (172 * 384))
    a("v_add_u32 v%d, v1, v3" % (vA + 2))
    a("v_mul_u32_u24 v3, %d, v2" % (168 * 384))
    a("v_add_u32 v%d, v1, v3" % (vB + 2))
    for base in (vA, vB):
        a("v_add_u32 v%d, 896, v%d" % (base + 1, base + 2))
        a("v_add_u32 v%d, 1792, v%d" % (base, base + 2))
    for i in range(3):
        a("v_mov_b32 v%d, v%d" % (vOff + i, vA + i))
    a("s_mov_b32 s%d, 0" % sM)
    a("s_mov_b32 s%d, 0" % sBlk)
    a("s_mov_b32 s%d, 0" % sOff)
    a("s_mov_b32 s%d, 0" % sMod)
    a("s_mov_b32 s%d, %d" % (sCnt, 43 - N0 - 1))
    a("s_mov_b32 s%d, %d" % (sN, N0 - 1))
    a("s_waitcnt lgkmcnt(0)")
    a("s_sub_u32 s6, s6, %d" % BIAS)
    a("s_subb_u32 s7, s7, 0")
    a("s_sub_u32 s8, s8, %d" % BIAS)
    a("s_subb_u32 s9, s9, 0")
    a("s_add_u32 s%d, s8, s%d" % (sVlo, t0))
    a("s_addc_u32 s%d, s9, 0" % sVhi)
    srd(KV, 6, 7, t0, BH + BIAS)

    def loads():
        for i in range(3):
            a("buffer_load_dwordx4 v%d, s[%d:%d], s%d offen offset:%d nt lds" % (vOff + i, KV, KV + 3, sOff, 1024 * i))

    if delay:
        a("s_sleep %d" % delay)
    lab("L_ld_fill")
    a("s_mov_b32 m0, s%d" % sM)
    a("s_waitcnt vmcnt(%d)" % w0)
    loads()
    a("s_add_u32 s%d, s%d, 1536" % (sOff, sOff))
    a("s_add_u32 s%d, s%d, %d" % (sM, sM, UNIT))
    a("s_sub_u32 s%d, s%d, 1" % (sN, sN))
    a("s_cmp_lg_u32 s%d, 0" % sN)
    a("s_cbranch_scc1 L_ld_fill")
    stamp(1)
    if stamps:
        a("s_memtime s[94:95]")
    a("s_mov_b32 m0, s%d" % sM)
    a("s_waitcnt vmcnt(%d)" % w1)
    loads()
    a("s_add_u32 s%d, s%d, 1536" % (sOff, sOff))
    phase = N0 % RS
    a("s_mov_b32 s%d, %d" % (sM, (N0 - (phase or RS)) * UNIT))
    lab("L_ld")
    a("s_barrier")
    for u in range(RS):
        slot = (phase + u) % RS
        if slot == 0:
            a("s_add_u32 s%d, s%d, %d" % (sM, sM, RS * UNIT))
            a("s_cmp_eq_u32 s%d, %d" % (sM, RING))
            a("s_cselect_b32 s%d, 0, s%d" % (sM, sM))
            a("s_mov_b32 m0, s%d" % sM)
        else:
            a("s_add_u32 m0, s%d, %d" % (sM, slot * UNIT))
        a("s_waitcnt vmcnt(%d)" % w1)
        loads()
        a("s_add_u32 s%d, s%d, 1536" % (sOff, sOff))
        a("s_sub_u32 s%d, s%d, 1" % (sCnt, sCnt))
        a("s_cbranch_scc1 L_ld_block%d" % u)
        lab("L_ld_cont%d" % u)
    a("s_branch L_ld")
    for u in range(RS):
        lab("L_ld_block%d" % u)
        a("s_mov_b32 s%d, %d" % (sN, u))
        if u != RS - 1:
            a("s_branch L_ld_block")
    lab("L_ld_block")
    c("end of a block of two sub-streams: skip the high one, pick the next block's shape")
    a("s_cmp_eq_u32 s%d, 2" % sMod)
    a("s_cselect_b32 s%d, 0, 1536" % t0)
    a("s_add_u32 s%d, s%d, %d" % (t0, t0, 168 * 384))
    a("s_add_u32 s%d, s%d, s%d" % (sOff, sOff, t0))
    a("s_add_u32 s%d, s%d, 1" % (sMod, sMod))
    a("s_cmp_eq_u32 s%d, 3" % sMod)
    a("s_cselect_b32 s%d, 0, s%d" % (sMod, sMod))
    a("s_cmp_eq_u32 s%d, 2" % sMod)
    a("s_cselect_b32 s%d, 41, 42" % sCnt)
    a("s_cselect_b64 vcc, -1, 0")
    for i in range(3):
        a("v_cndmask_b32 v%d, v%d, v%d, vcc" % (vOff + i, vA + i, vB + i))
    a("s_add_u32 s%d, s%d, 1" % (sBlk, sBlk))
    a("s_cmp_eq_u32 s%d, 12" % sBlk)
    a("s_cselect_b32 s%d, s%d, s%d" % (KV, sVlo, KV))
    a("s_cselect_b32 s%d, s%d, s%d" % (KV + 1, sVhi, KV + 1))
    a("s_cselect_b32 s%d, 0, s%d" % (sOff, sOff))
    if stamps:
        for k, bn in ((8, 1), (9, 3), (10, 6), (11, 12), (12, 18)):
            a("s_cmp_lg_u32 s%d, %d" % (sBlk, bn))
            a("s_cbranch_scc1 L_st%d" % k)
            stamp(k)
            lab("L_st%d" % k)
    a("s_cmp_eq_u32 s%d, 24" % sBlk)
    a("s_cbranch_scc1 L_ld_done")
    for u in range(RS - 1):
        a("s_cmp_eq_u32 s%d, %d" % (sN, u))
        a("s_cbranch_scc1 L_ld_cont%d" % u)
    a("s_branch L_ld_cont%d" % (RS - 1))
    lab("L_ld_done")
    stamp(2)
    jdone = (1023 - N0) // RS
    for j in range(jdone + 1, NB):
        a("s_waitcnt vmcnt(%d)" % (3 * (1024 - (L0 + RS * j))))
        a("s_barrier")
    stamp(3)
    if stamps:
        a("s_memtime s[90:91]")
        a("s_waitcnt lgkmcnt(0)")
        a("s_sub_u32 s90, s90, s94")
        a("s_lshr_b32 s90, s90, 4")
        a("s_add_u32 s90, s90, s64")
        a("s_addc_u32 s91, s65, 0")
    flush_stamps([0, 1, 2, 3, 8, 9, 10, 11, 12, 13])
    a("s_endpgm")

    c("======== consumers ========")
    lab("L_consumer")
    sC, sA0, sA1, sSc, sRound, sIn, sScale = 54, 55, 56, 57, 58, 59, 60
    sOne = 62
    vL16, vAd0, vAd1, vSA, vM, vLsum, vMc = 4, 5, 6, 7, 8, 9, 10
    vS = 12
    vT = 14
    vMask = 16
    vQ = 20
    vAcc = 32
    vAop = 44
    vD = 52
    a("s_sub_u32 s%d, s%d, 1" % (sC, sW))
    a("v_lshlrev_b32 v%d, 4, v0" % vL16)
    masks(vMask, vT)
    a("s_mul_i32 s%d, s%d, %d" % (sA0, sC, 2 * UNIT))
    a("s_add_u32 s%d, s%d, %d" % (sA1, sA0, UNIT))
    a("v_lshrrev_b32 v%d, 3, v0" % vSA)
    a("v_lshlrev_b32 v%d, 3, v%d" % (vSA, vSA))
    a("s_lshl_b32 s%d, s%d, 6" % (t0, sC))
    a("s_add_u32 s%d, s%d, %d" % (t0, t0, SC))
    a("v_add_u32 v%d, s%d, v%d" % (vSA, t0, vSA))
    a("v_mov_b32 v%d, 0xff800000" % vM)
    a("v_mov_b32 v%d, 0" % vLsum)
    for i in range(12):
        a("v_mov_b32 v%d, 0" % (vAcc + i))
    vLad, vOad = 76, 77
    a("v_lshrrev_b32 v%d, 4, v0" % vLad)
    a("v_lshlrev_b32 v%d, 2, v%d" % (vLad, vLad))
    a("s_lshl_b32 s%d, s%d, 4" % (t0, sC))
    a("s_add_u32 s%d, s%d, %d" % (t0, t0, MX))
    a("v_add_u32 v%d, s%d, v%d" % (vLad, t0, vLad))
    useful_lane_offset(vOad, vT, 2, OPS)
    a("s_mul_i32 s%d, s%d, %d" % (t0, sC, 2 * OPS))
    a("s_add_u32 s%d, s%d, %d" % (t0, t0, OP))
    a("v_add_u32 v%d, s%d, v%d" % (vOad, t0, vOad))
    a("s_mov_b32 s%d, 0x01010101" % sOne)
    a("s_mov_b32 s%d, 0x01010101" % (sOne + 1))
    a("s_mov_b32 s%d, 0x%08x" % (sScale, f32bits(192 ** -0.5 * math.log2(math.e))))
    a("s_waitcnt lgkmcnt(0)")
    a("s_barrier")
    a("v_and_b32 v%d, 7, v0" % vT)
    a("v_lshlrev_b32 v%d, 4, v%d" % (vT, vT))
    a("v_add_u32 v%d, %d, v%d" % (vT, Q, vT))
    for i in range(3):
        a("ds_read_b128 v[%d:%d], v%d offset:%d" % (vQ + 4 * i, vQ + 4 * i + 3, vT, 128 * i))
    a("s_mov_b32 s%d, 0" % sRound)
    a("s_mov_b32 s%d, 1" % sIn)
    a("s_mov_b32 s%d, 0" % sSc)

    def data_reads():
        a("v_add_u32 v%d, s%d, v%d" % (vAd0, sA0, vL16))
        a("v_add_u32 v%d, s%d, v%d" % (vAd1, sA1, vL16))
        for u, ad in ((0, vAd0), (1, vAd1)):
            for i in range(3):
                r = vD + 12 * u + 4 * i
                a("ds_read_b128 v[%d:%d], v%d offset:%d" % (r, r + 3, ad, 1024 * i))
        for s in (sA0, sA1):
            a("s_add_u32 s%d, s%d, %d" % (s, s, RS * UNIT))
            a("s_cmp_ge_u32 s%d, %d" % (s, RING))
            a("s_cselect_b32 s%d, %d, 0" % (t0, RING))
            a("s_sub_u32 s%d, s%d, s%d" % (s, s, t0))

    lab("L_c_k")
    data_reads()
    for u in range(2):
        for i in range(3):
            a("s_waitcnt lgkmcnt(%d)" % (5 - 3 * u - i))
            for k in range(4):
                src = "0" if (i == 0 and k == 0) else "v%d" % (vS + u)
                a("v_dot2_f32_bf16 v%d, v%d, v%d, %s" % (vS + u, vD + 12 * u + 4 * i + k, vQ + 4 * i + k, src))
    for step, dpp in enumerate(("quad_perm:[1,0,3,2]", "quad_perm:[2,3,0,1]", "row_half_mirror")):
        a("v_add_f32_dpp v%d, v%d, v%d %s row_mask:0xf bank_mask:0xf" % (vS, vS, vS, dpp))
        a("s_nop %d" % (1 if step == 0 else 0))
        a("v_add_f32_dpp v%d, v%d, v%d %s row_mask:0xf bank_mask:0xf" % (vS + 1, vS + 1, vS + 1, dpp))
    a("s_add_u32 s%d, s%d, 1" % (sSc, sSc))
    a("v_max3_f32 v%d, v%d, v%d, v%d" % (vM, vM, vS, vS + 1))
    a("s_mov_b64 exec, s[%d:%d]" % (sOne, sOne + 1))
    a("ds_write_b64 v%d, v[%d:%d]" % (vSA, vS, vS + 1))
    a("s_mov_b64 exec, -1")
    a("v_add_u32 v%d, 128, v%d" % (vSA, vSA))
    a("s_cmp_eq_u32 s%d, 128" % sSc)
    a("s_cbranch_scc1 L_c_kdone")
    a("s_sub_u32 s%d, s%d, 1" % (sIn, sIn))
    a("s_cmp_lg_u32 s%d, 0" % sIn)
    a("s_cbranch_scc1 L_c_k")
    a("s_add_u32 s%d, s%d, 1" % (sRound, sRound))
    a("s_cmp_lt_u32 s%d, %d" % (sRound, 1 + ndouble))
    a("s_cselect_b32 s%d, 2, 1" % sIn)
    a("s_barrier")
    a("s_branch L_c_k")
    lab("L_c_kdone")
    assert 1 + 2 * ndouble < 128
    c("exact row max over all 4096 scores, shared through LDS")
    a("s_nop 1")
    a("v_max_f32_dpp v%d, v%d, v%d row_ror:8 row_mask:0xf bank_mask:0xf" % (vM, vM, vM))
    a("ds_write_b32 v%d, v%d" % (vLad, vM))
    a("v_subrev_u32 v%d, %d, v%d" % (vSA, 16384, vSA))
    a("s_waitcnt lgkmcnt(0)")
    a("s_barrier")
    a("v_mov_b32 v%d, %d" % (vT, MX))
    a("ds_read_b128 v[%d:%d], v%d" % (vAop, vAop + 3, vT))
    a("ds_read_b128 v[%d:%d], v%d offset:16" % (vAop + 4, vAop + 7, vT))
    a("s_waitcnt lgkmcnt(0)")
    a("v_max3_f32 v%d, v%d, v%d, v%d" % (vM, vAop, vAop + 1, vAop + 2))
    a("v_max3_f32 v%d, v%d, v%d, v%d" % (vM, vM, vAop + 3, vAop + 4))
    a("v_max3_f32 v%d, v%d, v%d, v%d" % (vM, vM, vAop + 5, vAop + 6))
    a("v_max_f32 v%d, v%d, v%d" % (vM, vM, vAop + 7))
    a("v_mul_f32 v%d, s%d, v%d" % (vMc, sScale, vM))
    a("s_mov_b32 s%d, 0" % sSc)
    lab("L_c_v")
    a("ds_read_b64 v[%d:%d], v%d" % (vS, vS + 1, vSA))
    data_reads()
    a("v_add_u32 v%d, 128, v%d" % (vSA, vSA))
    a("s_waitcnt lgkmcnt(6)")
    a("v_fma_f32 v%d, v%d, s%d, -v%d" % (vS, vS, sScale, vMc))
    a("v_fma_f32 v%d, v%d, s%d, -v%d" % (vS + 1, vS + 1, sScale, vMc))
    a("v_exp_f32 v%d, v%d" % (vS, vS))
    a("v_exp_f32 v%d, v%d" % (vS + 1, vS + 1))
    a("s_add_u32 s%d, s%d, 1" % (sSc, sSc))
    a("v_cvt_pk_bf16_f32 v%d, v%d, v%d" % (vT, vS, vS))
    a("v_cvt_pk_bf16_f32 v%d, v%d, v%d" % (vT + 1, vS + 1, vS + 1))
    for u in range(2):
        for j in range(4):
            a("v_and_b32 v%d, v%d, v%d" % (vAop + 4 * u + j, vMask + j, vT + u))
    a("v_add_f32 v%d, v%d, v%d" % (vLsum, vLsum, vS))
    a("v_add_f32 v%d, v%d, v%d" % (vLsum, vLsum, vS + 1))
    for u in range(2):
        for i in range(3):
            a("s_waitcnt lgkmcnt(%d)" % (5 - 3 * u - i))
            r = vD + 12 * u + 4 * i
            a("v_mfma_f32_16x16x32_bf16 v[%d:%d], v[%d:%d], v[%d:%d], v[%d:%d]" % (
                vAcc + 4 * i, vAcc + 4 * i + 3, vAop + 4 * u, vAop + 4 * u + 3, r, r + 3, vAcc + 4 * i, vAcc + 4 * i + 3))
    a("s_cmp_eq_u32 s%d, 128" % sSc)
    a("s_cbranch_scc1 L_c_vdone")
    a("s_barrier")
    a("s_branch L_c_v")
    lab("L_c_vdone")
    c("publish the unnormalised o partials (bf16) and the weight sums")
    a("v_add_f32_dpp v%d, v%d, v%d row_ror:8 row_mask:0xf bank_mask:0xf" % (vLsum, vLsum, vLsum))
    a("ds_write_b32 v%d, v%d offset:%d" % (vLad, vLsum, LS - MX))
    set_useful_exec()
    a("s_nop 1")
    for i in range(3):
        a("v_cvt_pk_bf16_f32 v%d, v%d, v%d" % (vD + 2 * i, vAcc + 4 * i, vAcc + 4 * i + 1))
        a("v_cvt_pk_bf16_f32 v%d, v%d, v%d" % (vD + 2 * i + 1, vAcc + 4 * i + 2, vAcc + 4 * i + 3))
        a("ds_write_b64 v%d, v[%d:%d] offset:%d" % (vOad, vD + 2 * i, vD + 2 * i + 1, 128 * i))
    a("s_waitcnt lgkmcnt(0)")
    a("s_barrier")
    a("s_endpgm")

    c("======== holders ========")
    lab("L_holder")
    sHj, sO, sTag, sTk, sLoop, sTry = 54, 55, 56, 57, 58, 59
    sPlo, sPhi = 60, 61
    vWq, vWo, vY, vTmp = 4, 5, 6, 7
    vX = 8
    vTag = 28
    blk = lambda k: 32 + 32 * k
    a("s_sub_u32 s%d, s%d, 3" % (sHj, sW))
    a("s_mov_b32 s%d, 0x05040100" % sPlo)
    a("s_mov_b32 s%d, 0x07060302" % sPhi)
    a("s_cmp_lg_u32 s%d, %d" % (sHj, qw))
    a("s_cbranch_scc1 L_h_setup")
    c("q projection, shared by the 8 workgroups of the head: workgroup b < 6 multiplies x (all 8 rows) by")
    c("rows [320*(b/3), +320) x columns [64*(b%3), +64) of the head's wq slice and sends each row to its owner")
    a("v_and_b32 v1, 7, v0")
    a("v_bfe_u32 v2, v0, 3, 1")
    a("v_lshrrev_b32 v3, 4, v0")
    a("v_lshl_add_u32 v29, v2, 2, v3")
    a("v_mul_u32_u24 v%d, %d, v29" % (vWq, 12288 if dbg & 1 else 8 * 12288))
    a("v_lshl_add_u32 v%d, v1, 4, v%d" % (vWq, vWq))
    a("v_mul_u32_u24 v30, 1280, v1")
    a("v_lshl_add_u32 v30, v29, 4, v30")
    a("v_lshlrev_b32 v31, 11, v1")
    a("s_cmp_ge_u32 s%d, 3" % sB)
    a("s_cselect_b32 s%d, 320, 0" % t2)
    a("s_cselect_b32 s%d, 3, 0" % t3)
    a("s_sub_u32 s%d, s%d, s%d" % (t3, sB, t3))
    a("s_mul_i32 s%d, s%d, 12288" % (sO, t2))
    a("s_lshl_b32 s%d, s%d, 7" % (t3, t3))
    a("s_add_u32 s%d, s%d, s%d" % (sO, sO, t3))
    if dbg & 2:
        a("s_mul_i32 s%d, s%d, %d" % (sO, sB, 104 * 12288))
    a("s_lshl_b32 s%d, s%d, 1" % (t2, t2))
    a("s_mul_i32 s%d, s%d, 384" % (t0, sH))
    a("s_lshl_b32 s%d, s%d, 14" % (t1, sH))
    a("s_add_u32 s%d, s%d, 0x%x" % (t1, t1, QB))
    a("s_waitcnt lgkmcnt(0)")
    srd(YS, 18, 19, t1, 16384)
    a("buffer_load_dword v%d, v31, s[%d:%d], 0 offen offset:1536 sc1" % (vTag, YS, YS + 3))
    a("s_cmp_ge_u32 s%d, 6" % sB)
    a("s_cbranch_scc1 L_q_tag")
    srd(WQ, 10, 11, t0, "s_sub_u32 s%%d, 7864320, s%d" % t0)
    a("s_mov_b32 s%d, s4" % XS)
    a("s_mov_b32 s%d, s5" % (XS + 1))
    a("s_mov_b32 s%d, 10240" % (XS + 2))
    a("s_mov_b32 s%d, 0x20000" % (XS + 3))
    for rb in range(5):
        for i in range(8):
            r = blk(rb + 1) + 4 * i
            a("buffer_load_dwordx4 v[%d:%d], v%d, s[%d:%d], s%d offen %s" % (r, r + 3, vWq, WQ, WQ + 3, sO, wqpol))
            if dbg & 2:
                a("s_add_u32 s%d, s%d, %d" % (sO, sO, 128 if (rb * 8 + i) % 3 < 2 else 8 * 12288 - 256))
            else:
                a("s_add_u32 s%d, s%d, %d" % (sO, sO, 8 * 12288 if dbg & 1 else (12288 if i < 7 else 57 * 12288)))
        a("buffer_load_dwordx4 v[%d:%d], v30, s[%d:%d], s%d offen offset:%d" % (vX + 4 * rb, vX + 4 * rb + 3, XS, XS + 3, t2, 128 * rb))
    a("v_lshl_add_u32 v31, v29, 4, v31")
    a("s_lshl_b32 s%d, s%d, 8" % (sO, sB))
    qacc = blk(6)

    def transpose(dst, src, col):
        for p in range(4):
            a("v_perm_b32 v%d, v%d, v%d, s%d" % (dst + 4 * col + p, src + 4 * (2 * p + 1) + col // 2, src + 4 * (2 * p) + col // 2, sPhi if col % 2 else sPlo))

    for rb in range(5):
        a("s_waitcnt vmcnt(%d)" % (9 * (4 - rb)))
        transpose(blk(0), blk(rb + 1), 0)
        for col in range(8):
            if col < 7:
                transpose(blk(0), blk(rb + 1), col + 1)
            else:
                a("s_nop 0")
            d = qacc + 4 * col
            srcc = "0" if rb == 0 else "v[%d:%d]" % (d, d + 3)
            a("v_mfma_f32_16x16x32_bf16 v[%d:%d], v[%d:%d], v[%d:%d], %s" % (d, d + 3, blk(0) + 4 * col, blk(0) + 4 * col + 3, vX + 4 * rb, vX + 4 * rb + 3, srcc))
    a("v_add_u32 v%d, 0x01010101, v%d" % (vTag, vTag))
    for r in range(4):
        a("s_mov_b32 s%d, 0x%08x" % (t0 + r, 0x07060500 + r))
    a("s_nop 3")
    c("add the two 32-row halves; lanes 0-7 / 8-15 of each row end up with even / odd columns")
    for col in range(4):
        for r in range(4):
            a("v_permlane32_swap_b32 v%d, v%d" % (qacc + 4 * col + r, qacc + 4 * (col + 4) + r))
    for st in range(2):
        for r in range(4):
            t = vX + 4 * st + r
            a("v_add_f32_dpp v%d, v%d, v%d row_ror:8 row_mask:0xf bank_mask:0x3" % (t, qacc + 4 * (2 * st + 4) + r, qacc + 4 * (2 * st) + r))
            a("v_add_f32_dpp v%d, v%d, v%d row_ror:8 row_mask:0xf bank_mask:0xc" % (t, qacc + 4 * (2 * st + 1) + r, qacc + 4 * (2 * st + 5) + r))
    c("the low byte of each word carries one byte of the receiver's tag for this launch")
    for st in range(2):
        for r in range(4):
            t = vX + 4 * st + r
            a("v_perm_b32 v%d, v%d, v%d, s%d" % (t, t, vTag, t0 + r))
        a("buffer_store_dwordx4 v[%d:%d], v31, s[%d:%d], s%d offen offset:%d sc1" % (vX + 4 * st, vX + 4 * st + 3, YS, YS + 3, sO, 128 * st))
    a("s_branch L_q_gather")
    lab("L_q_tag")
    a("s_waitcnt vmcnt(0)")
    a("v_add_u32 v%d, 0x01010101, v%d" % (vTag, vTag))
    lab("L_q_gather")
    stamp(4)
    a("v_lshlrev_b32 v1, 4, v0")
    a("v_readlane_b32 s%d, v%d, s%d" % (sTag, vTag, sB))
    a("s_lshl_b32 s%d, s%d, 11" % (sO, sB))
    a("s_mov_b32 s%d, 0" % sTry)
    a("s_mov_b32 s%d, 0x0c0c0400" % t0)
    a("s_mov_b32 s%d, 0x04000c0c" % t1)
    a("s_mov_b32 s%d, 0x07060500" % t2)
    a("s_mov_b32 exec_hi, 0xffff")
    GA, GB = 16, 20
    lab("L_q_poll")
    a("buffer_load_dwordx4 v[%d:%d], v1, s[%d:%d], s%d offen sc1" % (GA, GA + 3, YS, YS + 3, sO))
    a("buffer_load_dwordx4 v[%d:%d], v1, s[%d:%d], s%d offen offset:768 sc1" % (GB, GB + 3, YS, YS + 3, sO))
    a("s_add_u32 s%d, s%d, 1" % (sTry, sTry))
    a("s_waitcnt vmcnt(0)")
    for g, t in ((GA, 24), (GB, 26)):
        a("v_perm_b32 v%d, v%d, v%d, s%d" % (t, g + 1, g, t0))
        a("v_perm_b32 v%d, v%d, v%d, s%d" % (t + 1, g + 3, g + 2, t1))
        a("v_or_b32 v%d, v%d, v%d" % (t, t, t + 1))
    a("v_xor_b32 v24, s%d, v24" % sTag)
    a("v_xor_b32 v26, s%d, v26" % sTag)
    a("v_or_b32 v24, v24, v26")
    a("v_cmp_ne_u32 vcc, 0, v24")
    a("s_cbranch_vccz L_q_got")
    if sleep:
        a("s_sleep %d" % sleep)
    a("s_cmp_lt_u32 s%d, 0x100000" % sTry)
    a("s_cbranch_scc1 L_q_poll")
    lab("L_q_got")
    a("v_mov_b32 v24, 0x80")
    a("v_lshrrev_b32 v2, 4, v0")
    a("v_lshlrev_b32 v2, 6, v2")
    a("v_and_b32 v3, 1, v0")
    a("v_lshl_add_u32 v2, v3, 5, v2")
    a("v_bfe_u32 v3, v0, 2, 2")
    a("v_add_u32 v2, v2, v3")
    a("v_bfe_u32 v3, v0, 1, 1")
    a("v_lshl_add_u32 v2, v3, 2, v2")
    a("v_lshlrev_b32 v2, 1, v2")
    a("v_add_u32 v2, %d, v2" % Q)
    for r in range(8):
        a("v_perm_b32 v%d, v%d, v24, s%d" % (GA + r, GA + r, t2))
    for r in range(4):
        a("v_add_f32 v%d, v%d, v%d" % (GA + r, GA + r, GB + r))
    a("v_cvt_pk_bf16_f32 v%d, v%d, v%d" % (GA, GA, GA + 1))
    a("v_cvt_pk_bf16_f32 v%d, v%d, v%d" % (GA + 2, GA + 2, GA + 3))
    a("ds_write_b16 v2, v%d" % GA)
    a("ds_write_b16_d16_hi v2, v%d offset:16" % GA)
    a("ds_write_b16 v2, v%d offset:32" % (GA + 2))
    a("ds_write_b16_d16_hi v2, v%d offset:48" % (GA + 2))
    c("all six senders have read this workgroup's tag word: advance it for the next launch")
    a("v_mov_b32 v3, s%d" % sTag)
    a("s_mov_b64 exec, 1")
    a("buffer_store_dword v3, v1, s[%d:%d], s%d offen offset:1536 sc1" % (YS, YS + 3, sO))
    a("s_mov_b64 exec, -1")
    stamp(14)
    lab("L_h_setup")
    a("s_mul_i32 s%d, s%d, 1280" % (t1, sB))
    a("s_waitcnt lgkmcnt(0)")
    srd(OS, 14, 15, t1, 1280)
    a("s_mul_i32 s%d, s%d, 245760" % (t0, sH))
    srd(WO, 12, 13, t0, 245760)
    a("s_mul_i32 s%d, s%d, 81920" % (t0, sB))
    srd(YS, 18, 19, t0, 81920)
    c("addresses for wo and for this wave's part of the y hand-off buffer")
    a("v_lshrrev_b32 v1, 4, v0")
    a("v_and_b32 v2, 15, v0")
    a("v_mul_u32_u24 v%d, 10240, v1" % vWo)
    a("v_lshl_add_u32 v%d, v2, 4, v%d" % (vWo, vWo))
    a("s_lshl_b32 s%d, s%d, 8" % (t0, sHj))
    a("v_add_u32 v%d, s%d, v%d" % (vWo, t0, vWo))
    a("s_lshl_b32 s%d, s%d, 14" % (t0, sHj))
    a("s_lshl_b32 s%d, s%d, 9" % (t1, sH))
    a("s_add_u32 s%d, s%d, s%d" % (t0, t0, t1))
    a("v_lshlrev_b32 v%d, 4, v0" % vY)
    a("v_add_u32 v%d, s%d, v%d" % (vY, t0, vY))
    a("s_waitcnt lgkmcnt(0)")
    a("s_barrier")
    nb = 1

    def idle(n):
        if n <= 0:
            return
        if n <= 2:
            for _ in range(n):
                a("s_barrier")
            return
        name = "L_h_idle%d" % len(L)
        a("s_mov_b32 s%d, %d" % (sLoop, n))
        lab(name)
        a("s_barrier")
        a("s_sub_u32 s%d, s%d, 1" % (sLoop, sLoop))
        a("s_cmp_lg_u32 s%d, 0" % sLoop)
        a("s_cbranch_scc1 %s" % name)

    c("mark this wave's hand-off slot empty")
    for i in range(4):
        a("v_mov_b32 v%d, -1" % (8 + i))
    a("s_mov_b32 exec_hi, 0")
    if dbg & 8 == 0:
        a("buffer_store_dwordx4 v[8:11], v%d, s[%d:%d], 0 offen %s" % (vY, YS, YS + 3, "sc1"))
    a("s_mov_b64 exec, -1")
    idle(wo_r0)
    nb += wo_r0
    n = 0
    while n < 48:
        for _ in range(wo_k):
            ks, i = divmod(n, 8)
            if i % 4 == 0:
                a("s_mov_b32 s%d, %d" % (sO, ks * 40960 + (i // 4) * 5120))
            r = blk(ks + 1) + 4 * i
            if dbg & 128 == 0:
                a("buffer_load_dwordx4 v[%d:%d], v%d, s[%d:%d], s%d offen offset:%d %s" % (r, r + 3, vWo, WO, WO + 3, sO, (i % 4) * 1280, wopol))
            n += 1
        a("s_barrier")
        nb += 1
    idle(8)
    nb += 8
    a("s_waitcnt vmcnt(0)")
    c("transpose each 8x8 block in place of the previous one: 8 rows x 8 columns -> 8 columns x 8 rows")
    for ks in range(6):
        src, dst = blk(ks + 1), blk(ks)
        for col in range(8):
            transpose(dst, src, col)
        a("s_barrier")
        nb += 1
    a("v_and_b32 v1, 3, v0")
    a("v_mul_u32_u24 v1, %d, v1" % OPS)
    a("v_lshrrev_b32 v2, 4, v0")
    a("v_lshl_add_u32 v1, v2, 4, v1")
    a("v_add_u32 v1, %d, v1" % OP)
    a("v_mov_b32 v2, %d" % LS)
    a("s_lshl_b32 s%d, s%d, %d" % (t0, sB, tshift))
    a("v_mov_b32 v3, s%d" % t0)
    a("v_mov_b32 v%d, 1" % vTmp)
    last = 31 if dbg & 56 == 0 else 1000
    a("v_lshlrev_b32 v%d, 4, v0" % vWq)
    a("s_lshl_b32 s%d, s%d, 14" % (sO, sHj))
    a("s_add_u32 s%d, s%d, 4096" % (t1, sO))
    a("s_add_u32 s%d, s%d, 8192" % (t2, sO))
    a("s_add_u32 s%d, s%d, 12288" % (t3, sO))
    a("s_mov_b32 s%d, 0" % sTry)
    a("s_lshr_b32 s%d, s%d, 1" % (sTag, sH))
    a("s_lshl_b32 s%d, s%d, 2" % (sTag, sTag))
    a("s_bitcmp1_b32 s%d, 0" % sH)
    a("s_cselect_b32 s%d, 0, -1" % sPlo)
    a("s_cselect_b32 s%d, -1, 0" % sPhi)
    idle(NB - hint - nb)
    nb = NB - hint
    c("arrival ticket of this batch row: the last arriver sums the row; every slot is marked empty by then")
    a("s_cmp_lg_u32 s%d, 0" % sHj)
    a("s_cbranch_scc1 L_h_noticket")
    a("s_mov_b64 exec, 1")
    if dbg & 32 == 0:
        a("global_atomic_add v%d, v3, v%d, s[16:17] sc0 sc1" % (vTmp, vTmp))
    a("s_mov_b64 exec, -1")
    lab("L_h_noticket")
    idle(hint)
    a("s_cmp_lg_u32 s%d, 0" % sHj)
    a("s_cbranch_scc1 L_h_noshare")
    a("s_waitcnt vmcnt(0)")
    a("s_mov_b64 exec, 1")
    a("ds_write_b32 v2, v%d offset:32" % vTmp)
    a("s_mov_b64 exec, -1")
    a("s_waitcnt lgkmcnt(0)")
    lab("L_h_noshare")
    a("s_barrier")
    stamp(5)
    oacc = blk(6)
    G = blk(0)
    a("ds_read_b32 v%d, v2 offset:32" % vTmp)
    for ks in range(6):
        a("ds_read_b128 v[%d:%d], v1 offset:%d" % (8 + 4 * ks, 11 + 4 * ks, 64 * ks))

    def gather():
        for k in range(16):
            so = (sO, t1, t2, t3)[k // 4]
            a("buffer_load_dwordx4 v[%d:%d], v%d, s[%d:%d], s%d offen offset:%d sc1" % (G + 4 * k, G + 4 * k + 3, vWq, YS, YS + 3, so, 1024 * (k % 4)))

    for ks in range(6):
        a("s_waitcnt lgkmcnt(%d)" % (5 - ks))
        if ks == 0:
            a("v_readfirstlane_b32 s%d, v%d" % (sTk, vTmp))
        for col in range(8):
            r = blk(ks) + 4 * col
            srcc = "0" if ks == 0 else "v[%d:%d]" % (oacc + 4 * col, oacc + 4 * col + 3)
            a("v_mfma_f32_16x16x32_bf16 v[%d:%d], v[%d:%d], v[%d:%d], %s" % (oacc + 4 * col, oacc + 4 * col + 3, 8 + 4 * ks, 11 + 4 * ks, r, r + 3, srcc))
        if ks == 1:
            a("ds_read_b128 v[8:11], v2")
            a("ds_read_b128 v[12:15], v2 offset:16")
            if pregather:
                c("the last-arriving workgroup starts fetching the other heads' rows")
                a("s_cmp_lg_u32 s%d, %d" % (sTk, last))
                a("s_cbranch_scc1 L_h_nogather")
                gather()
                lab("L_h_nogather")
        if ks == 4:
            a("s_waitcnt lgkmcnt(0)")
            a("v_add_f32 v8, v8, v9")
            a("v_add_f32 v10, v10, v11")
            a("v_add_f32 v12, v12, v13")
            a("v_add_f32 v14, v14, v15")
            a("v_add_f32 v8, v8, v10")
            a("v_add_f32 v12, v12, v14")
            a("v_add_f32 v8, v8, v12")
            a("v_rcp_f32 v9, v8")
            a("s_nop 0")
            a("v_fma_f32 v10, -v8, v9, 1.0")
            a("v_fma_f32 v9, v10, v9, v9")
    for col in range(8):
        r = oacc + 4 * col
        if col == 0:
            a("s_cmp_eq_u32 s%d, %d" % (sTk, last))
        a("v_add_f32 v%d, v%d, v%d" % (r, r, r + 1))
        a("v_add_f32 v%d, v%d, v%d" % (r + 2, r + 2, r + 3))
        a("v_add_f32 v%d, v%d, v%d" % (r, r, r + 2))
        a("v_mul_f32 v%d, v9, v%d" % (16 + col, r))
        a("v_min_u32 v%d, -2, v%d" % (16 + col, 16 + col))
    if pregather:
        a("s_cbranch_scc1 L_r_own")
    a("s_mov_b64 exec, 0xffff")
    if dbg & 16 == 0:
        a("buffer_store_dwordx4 v[16:19], v%d, s[%d:%d], 0 offen sc1" % (vY, YS, YS + 3))
        a("buffer_store_dwordx4 v[20:23], v%d, s[%d:%d], 0 offen offset:256 sc1" % (vY, YS, YS + 3))
    a("s_mov_b64 exec, -1")
    stamp(6)
    c("in the last-arriving workgroup each wave sums its 128 columns over the 32 heads, in head order")
    if pregather:
        a("s_branch L_h_done")
        lab("L_r_own")
        stamp(6)
        a("s_mov_b32 vcc_lo, 0xffff0000")
        a("s_mov_b32 vcc_hi, 0xffff0000")
        for i in range(4):
            a("v_cndmask_b32 v%d, v%d, v%d, vcc" % (16 + i, 16 + i, 20 + i))
        a("s_branch L_r_wait")
        lab("L_r_poll")
        gather()
        lab("L_r_wait")
        a("s_waitcnt vmcnt(0)")
        a("s_mov_b64 exec, s[%d:%d]" % (sPlo, sPhi))
        a("s_set_gpr_idx_on s%d, gpr_idx(DST)" % sTag)
        for i in range(4):
            a("v_mov_b32 v%d, v%d" % (G + i, 16 + i))
        a("s_set_gpr_idx_off")
        a("s_mov_b64 exec, -1")
        for k in range(1, 16):
            for i in range(4):
                a("v_add_f32 v%d, v%d, v%d" % (8 + i, G + i if k == 1 else 8 + i, G + 4 * k + i))
    else:
        a("s_cbranch_scc0 L_h_done")
        lab("L_r_poll")
        gather()
        for k in range(1, 16):
            a("s_waitcnt vmcnt(%d)" % (15 - k))
            for i in range(4):
                a("v_add_f32 v%d, v%d, v%d" % (8 + i, G + i if k == 1 else 8 + i, G + 4 * k + i))
    a("v_cmp_u_f32 vcc, v8, v9")
    a("v_cmp_u_f32 s[62:63], v10, v11")
    a("s_nop 1")
    a("s_or_b64 vcc, vcc, s[62:63]")
    a("s_cbranch_vccz L_r_sum")
    c("a NaN sum: either an empty slot (poll again) or a NaN in the data")
    a("v_max3_u32 v12, v%d, v%d, v%d" % (G, G + 1, G + 2))
    for k in range(3, 63, 2):
        a("v_max3_u32 v12, v12, v%d, v%d" % (G + k, G + k + 1))
    a("v_max_u32 v12, v12, v%d" % (G + 63))
    a("v_cmp_eq_u32 vcc, -1, v12")
    a("s_add_u32 s%d, s%d, 1" % (sTry, sTry))
    a("s_cbranch_vccz L_r_sum")
    a("s_cmp_lt_u32 s%d, 0x100000" % sTry)
    a("s_cbranch_scc1 L_r_poll")
    lab("L_r_sum")
    for i in range(4):
        a("v_mov_b32 v%d, v%d" % (12 + i, 8 + i))
    a("v_and_b32 v2, 15, v0")
    a("v_bfe_u32 v3, v0, 4, 1")
    for i in range(4):
        a("v_permlane32_swap_b32 v%d, v%d" % (8 + i, 12 + i))
    a("v_lshlrev_b32 v2, 4, v2")
    a("v_lshl_add_u32 v2, v3, 3, v2")
    for i in range(4):
        a("v_add_f32 v%d, v%d, v%d" % (8 + i, 8 + i, 12 + i))
    a("s_lshl_b32 s%d, s%d, 8" % (t0, sHj))
    a("v_cvt_pk_bf16_f32 v8, v8, v9")
    a("v_cvt_pk_bf16_f32 v9, v10, v11")
    a("s_mov_b32 exec_hi, 0")
    a("buffer_store_dwordx2 v[8:9], v2, s[%d:%d], s%d offen" % (OS, OS + 3, t0))
    a("s_mov_b64 exec, -1")
    lab("L_h_done")
    if stamps:
        a("s_waitcnt vmcnt(0)")
        stamp(7)
        a("s_cmp_lg_u32 s%d, %d" % (sHj, qw))
        a("s_cbranch_scc1 L_end")
        flush_stamps([4, 5, 6, 7, 14])
    lab("L_end")
    a("s_endpgm")
    return HEADER.format(lds=LDS, name=NAME) + "\n".join(L) + FOOTER.format(name=NAME)


if __name__ == "__main__":
    spec = json.loads(sys.argv[1])
    names = []
    for cfg in spec:
        cfg = dict(cfg)
        out = cfg.pop("out", None)
        name = out or ("work/k_" + "_".join("%s%s" % (k, str(v).replace(" ", "")) for k, v in cfg.items()) + ".s")
        open("code/" + name, "w").write(gen(**cfg))
        names.append(name)
    print(" ".join(names))
```

```python
import json
import math
import struct
import sys

NAME = "standalone__mha_block_cached__sampling_kernel"

HEADER = """; Kernarg layout for this problem (64 bytes, ptrs only, base s[0:1]):
; @launch grid=(256,1,1) block=(512,1,1) lds={lds}
.amdgcn_target "amdgcn-amd-amdhsa--gfx950"
.text
.globl {name}
.p2align 8
.type {name},@function
{name}:
"""
FOOTER = """
.section .rodata,"a"
.p2align 6
.amdhsa_kernel {name}
  .amdhsa_next_free_vgpr 256
  .amdhsa_next_free_sgpr 96
  .amdhsa_accum_offset 256
  .amdhsa_group_segment_fixed_size 0
  .amdhsa_kernarg_size 64
  .amdhsa_user_sgpr_count 2
  .amdhsa_user_sgpr_kernarg_segment_ptr 1
  .amdhsa_system_sgpr_workgroup_id_x 1
  .amdhsa_float_denorm_mode_32 3
.end_amdhsa_kernel
"""

BH = 1572864
UNIT = 3072
RS = 4


def f32bits(x):
    return struct.unpack("<I", struct.pack("<f", x))[0]


def gen(w1=17, w0=17, NSLOT=44, wo_r0=14, wo_k=1, hint=8, stamps=0, wqpol="nt", wopol="", prio=3, sleep=16,
        tshift=5, dbg=0, pregather=1, qw=0, delay=0, dstamp=0):
    L = []

    def a(s):
        L.append("    " + s)

    def lab(s):
        L.append(s + ":")

    def c(s):
        L.append("    ; " + s)

    RING = NSLOT * UNIT
    SC = RING
    MISC = SC + 16384
    Q = MISC
    MX = MISC + 384
    LS = MISC + 416
    LDS = MISC + 512
    OP = SC
    OPS = 400
    QB = 0x100000
    assert LDS <= 163840

    R = -(-w1 // 3) + 1
    N0 = NSLOT - RS
    while (N0 - R) % RS or N0 > 42:
        N0 -= 1
    L0 = N0 - R
    NB = (1024 - L0) // RS + 1
    ndouble = L0 // RS - 1
    steps = [1] + [2] * ndouble + [1] * (NB - 1 - ndouble)
    assert sum(steps) == 256 and len(steps) == NB
    cons = 0
    for j, s in enumerate(steps):
        assert min(1024, N0 + (j + 1) * RS) - NSLOT <= cons
        cons += RS * s
        assert cons <= L0 + RS * j

    sW, sH, sB, sJ = 20, 21, 22, 23
    KV, WQ, WO, XS, YS, OS = 24, 28, 32, 36, 40, 44
    sVlo, sVhi = 48, 49
    t0, t1, t2, t3 = 50, 51, 52, 53
    stamp_reg = {k: 64 + 2 * k for k in range(15)}

    def stamp(k):
        if stamps:
            a("s_memrealtime s[%d:%d]" % (stamp_reg[k], stamp_reg[k] + 1))

    def flush_stamps(ks):
        if not stamps:
            return
        if dstamp:
            a("s_waitcnt lgkmcnt(0)")
            a("s_mov_b64 exec, 1")
            for k in ks:
                slot = {0: 1, 3: 2, 7: 3, 8: 4, 11: 5, 14: 6}.get(k)
                if slot is None:
                    continue
                a("v_mov_b32 v1, %d" % (4 * slot))
                if k == 0:
                    a("s_not_b32 s%d, s%d" % (t0, stamp_reg[k]))
                    a("v_mov_b32 v2, s%d" % t0)
                else:
                    a("v_mov_b32 v2, s%d" % stamp_reg[k])
                a("global_atomic_umax v1, v2, s[16:17] sc1")
            return
        a("s_waitcnt lgkmcnt(0)")
        a("s_lshl_b32 s%d, s2, 7" % t0)
        a("s_add_u32 s%d, s%d, 0x4000000" % (t0, t0))
        a("v_mov_b32 v1, s%d" % t0)
        for k in ks:
            a("v_mov_b32 v2, s%d" % stamp_reg[k])
            a("v_mov_b32 v3, s%d" % (stamp_reg[k] + 1))
            a("global_store_dwordx2 v1, v[2:3], s[18:19] offset:%d" % (8 * k))
            a("s_nop 1")

    def srd(d, lo, hi, off_sreg, nbytes):
        a("s_add_u32 s%d, s%d, s%d" % (d, lo, off_sreg))
        a("s_addc_u32 s%d, s%d, 0" % (d + 1, hi))
        if isinstance(nbytes, int):
            a("s_mov_b32 s%d, %d" % (d + 2, nbytes))
        else:
            a(nbytes % (d + 2))
        a("s_mov_b32 s%d, 0x20000" % (d + 3))

    def masks(base, tmp):
        c("lane-constant masks: element (lane & 7) of an 8 x bf16 operand")
        a("v_and_b32 v%d, 1, v0" % tmp)
        a("v_lshlrev_b32 v%d, 4, v%d" % (tmp, tmp))
        a("v_mov_b32 v%d, 0xffff" % (tmp + 1))
        a("v_lshlrev_b32 v%d, v%d, v%d" % (tmp, tmp, tmp + 1))
        a("v_bfe_u32 v%d, v0, 1, 2" % (tmp + 1))
        for j in range(4):
            a("v_cmp_eq_u32 vcc, %d, v%d" % (j, tmp + 1))
            a("s_nop 1")
            a("v_cndmask_b32 v%d, 0, v%d, vcc" % (base + j, tmp))

    def useful_lane_offset(dst, tmp, esize, rowstride):
        c("byte offset of this lane's 4 accumulator values: half * rowstride + (8*(n&7) + 4*(q&1)) * esize")
        a("v_and_b32 v%d, 7, v0" % dst)
        a("v_bfe_u32 v%d, v0, 4, 1" % tmp)
        a("v_lshl_add_u32 v%d, v%d, 1, v%d" % (dst, dst, tmp))
        a("v_mul_u32_u24 v%d, %d, v%d" % (dst, 4 * esize, dst))
        a("v_lshrrev_b32 v%d, 5, v0" % tmp)
        a("v_mul_u32_u24 v%d, %d, v%d" % (tmp, rowstride, tmp))
        a("v_add_u32 v%d, v%d, v%d" % (dst, dst, tmp))

    def set_useful_exec():
        a("s_mov_b32 exec_lo, 0x00ff00ff")
        a("s_mov_b32 exec_hi, 0xff00ff00")

    stamp(0)
    a("s_cmp_ge_u32 s2, 256")
    a("s_cbranch_scc1 L_end")
    a("s_load_dwordx16 s[4:19], s[0:1], 0")
    a("v_lshrrev_b32 v1, 6, v0")
    a("v_and_b32 v0, 63, v0")
    a("s_and_b32 s%d, s2, 7" % t0)
    a("v_readfirstlane_b32 s%d, v1" % sW)
    a("s_lshr_b32 s%d, s2, 3" % sJ)
    a("s_lshl_b32 s%d, s%d, 2" % (t0, t0))
    a("s_and_b32 s%d, s%d, 3" % (t1, sJ))
    a("s_add_u32 s%d, s%d, s%d" % (sH, t0, t1))
    a("s_lshr_b32 s%d, s%d, 2" % (sB, sJ))
    a("s_cmp_ge_u32 s%d, 3" % sW)
    a("s_cbranch_scc1 L_holder")
    a("s_cmp_ge_u32 s%d, 1" % sW)
    a("s_cbranch_scc1 L_consumer")

    c("======== loader ========")
    sM, sOff, sN, sCnt, sBlk, sMod = 54, 55, 56, 57, 59, 60
    vOff, vA, vB = 4, 8, 12
    BIAS = 1792
    assert NSLOT % RS == 0
    if prio:
        a("s_setprio %d" % prio)
    a("s_lshl_b32 s%d, s%d, 5" % (t0, sB))
    a("s_add_u32 s%d, s%d, s%d" % (t0, t0, sH))
    a("s_mul_i32 s%d, s%d, %d" % (t0, t0, BH))
    c("lane -> 4 keys of the low sub-stream (lanes 0-31), 4 keys of the high one (lanes 32-63);")
    c("load i uses offset:1024*i (added to both addresses), so its lane offset carries 896*(2-i)")
    a("v_bfe_u32 v1, v0, 3, 2")
    a("v_mul_u32_u24 v1, 384, v1")
    a("v_and_b32 v2, 7, v0")
    a("v_lshl_add_u32 v1, v2, 4, v1")
    a("v_lshrrev_b32 v2, 5, v0")
    a("v_mul_u32_u24 v3, %d, v2" % (172 * 384))
    a("v_add_u32 v%d, v1, v3" % (vA + 2))
    a("v_mul_u32_u24 v3, %d, v2" % (168 * 384))
    a("v_add_u32 v%d, v1, v3" % (vB + 2))
    for base in (vA, vB):
        a("v_add_u32 v%d, 896, v%d" % (base + 1, base + 2))
        a("v_add_u32 v%d, 1792, v%d" % (base, base + 2))
    for i in range(3):
        a("v_mov_b32 v%d, v%d" % (vOff + i, vA + i))
    a("s_mov_b32 s%d, 0" % sM)
    a("s_mov_b32 s%d, 0" % sBlk)
    a("s_mov_b32 s%d, 0" % sOff)
    a("s_mov_b32 s%d, 0" % sMod)
    a("s_mov_b32 s%d, %d" % (sCnt, 43 - N0 - 1))
    a("s_mov_b32 s%d, %d" % (sN, N0 - 1))
    a("s_waitcnt lgkmcnt(0)")
    a("s_sub_u32 s6, s6, %d" % BIAS)
    a("s_subb_u32 s7, s7, 0")
    a("s_sub_u32 s8, s8, %d" % BIAS)
    a("s_subb_u32 s9, s9, 0")
    a("s_add_u32 s%d, s8, s%d" % (sVlo, t0))
    a("s_addc_u32 s%d, s9, 0" % sVhi)
    srd(KV, 6, 7, t0, BH + BIAS)

    def loads():
        for i in range(3):
            a("buffer_load_dwordx4 v%d, s[%d:%d], s%d offen offset:%d nt lds" % (vOff + i, KV, KV + 3, sOff, 1024 * i))

    if delay:
        a("s_sleep %d" % delay)
    lab("L_ld_fill")
    a("s_mov_b32 m0, s%d" % sM)
    a("s_waitcnt vmcnt(%d)" % w0)
    loads()
    a("s_add_u32 s%d, s%d, 1536" % (sOff, sOff))
    a("s_add_u32 s%d, s%d, %d" % (sM, sM, UNIT))
    a("s_sub_u32 s%d, s%d, 1" % (sN, sN))
    a("s_cmp_lg_u32 s%d, 0" % sN)
    a("s_cbranch_scc1 L_ld_fill")
    stamp(1)
    if stamps:
        a("s_memtime s[94:95]")
    a("s_mov_b32 m0, s%d" % sM)
    a("s_waitcnt vmcnt(%d)" % w1)
    loads()
    a("s_add_u32 s%d, s%d, 1536" % (sOff, sOff))
    phase = N0 % RS
    a("s_mov_b32 s%d, %d" % (sM, (N0 - (phase or RS)) * UNIT))
    lab("L_ld")
    a("s_barrier")
    for u in range(RS):
        slot = (phase + u) % RS
        if slot == 0:
            a("s_add_u32 s%d, s%d, %d" % (sM, sM, RS * UNIT))
            a("s_cmp_eq_u32 s%d, %d" % (sM, RING))
            a("s_cselect_b32 s%d, 0, s%d" % (sM, sM))
            a("s_mov_b32 m0, s%d" % sM)
        else:
            a("s_add_u32 m0, s%d, %d" % (sM, slot * UNIT))
        a("s_waitcnt vmcnt(%d)" % w1)
        loads()
        a("s_add_u32 s%d, s%d, 1536" % (sOff, sOff))
        a("s_sub_u32 s%d, s%d, 1" % (sCnt, sCnt))
        a("s_cbranch_scc1 L_ld_block%d" % u)
        lab("L_ld_cont%d" % u)
    a("s_branch L_ld")
    for u in range(RS):
        lab("L_ld_block%d" % u)
        a("s_mov_b32 s%d, %d" % (sN, u))
        if u != RS - 1:
            a("s_branch L_ld_block")
    lab("L_ld_block")
    c("end of a block of two sub-streams: skip the high one, pick the next block's shape")
    a("s_cmp_eq_u32 s%d, 2" % sMod)
    a("s_cselect_b32 s%d, 0, 1536" % t0)
    a("s_add_u32 s%d, s%d, %d" % (t0, t0, 168 * 384))
    a("s_add_u32 s%d, s%d, s%d" % (sOff, sOff, t0))
    a("s_add_u32 s%d, s%d, 1" % (sMod, sMod))
    a("s_cmp_eq_u32 s%d, 3" % sMod)
    a("s_cselect_b32 s%d, 0, s%d" % (sMod, sMod))
    a("s_cmp_eq_u32 s%d, 2" % sMod)
    a("s_cselect_b32 s%d, 41, 42" % sCnt)
    a("s_cselect_b64 vcc, -1, 0")
    for i in range(3):
        a("v_cndmask_b32 v%d, v%d, v%d, vcc" % (vOff + i, vA + i, vB + i))
    a("s_add_u32 s%d, s%d, 1" % (sBlk, sBlk))
    a("s_cmp_eq_u32 s%d, 12" % sBlk)
    a("s_cselect_b32 s%d, s%d, s%d" % (KV, sVlo, KV))
    a("s_cselect_b32 s%d, s%d, s%d" % (KV + 1, sVhi, KV + 1))
    a("s_cselect_b32 s%d, 0, s%d" % (sOff, sOff))
    if stamps:
        for k, bn in ((8, 1), (9, 3), (10, 6), (11, 12), (12, 18)):
            a("s_cmp_lg_u32 s%d, %d" % (sBlk, bn))
            a("s_cbranch_scc1 L_st%d" % k)
            stamp(k)
            lab("L_st%d" % k)
    a("s_cmp_eq_u32 s%d, 24" % sBlk)
    a("s_cbranch_scc1 L_ld_done")
    for u in range(RS - 1):
        a("s_cmp_eq_u32 s%d, %d" % (sN, u))
        a("s_cbranch_scc1 L_ld_cont%d" % u)
    a("s_branch L_ld_cont%d" % (RS - 1))
    lab("L_ld_done")
    stamp(2)
    jdone = (1023 - N0) // RS
    for j in range(jdone + 1, NB):
        a("s_waitcnt vmcnt(%d)" % (3 * (1024 - (L0 + RS * j))))
        a("s_barrier")
    stamp(3)
    if stamps:
        a("s_memtime s[90:91]")
        a("s_waitcnt lgkmcnt(0)")
        a("s_sub_u32 s90, s90, s94")
        a("s_lshr_b32 s90, s90, 4")
        a("s_add_u32 s90, s90, s64")
        a("s_addc_u32 s91, s65, 0")
    flush_stamps([0, 1, 2, 3, 8, 9, 10, 11, 12, 13])
    a("s_endpgm")

    c("======== consumers ========")
    lab("L_consumer")
    sC, sA0, sA1, sSc, sRound, sIn, sScale = 54, 55, 56, 57, 58, 59, 60
    sOne = 62
    vL16, vAd0, vAd1, vSA, vM, vLsum, vMc = 4, 5, 6, 7, 8, 9, 10
    vS = 12
    vT = 14
    vMask = 16
    vQ = 20
    vAcc = 32
    vAop = 44
    vD = 52
    a("s_sub_u32 s%d, s%d, 1" % (sC, sW))
    a("v_lshlrev_b32 v%d, 4, v0" % vL16)
    masks(vMask, vT)
    a("s_mul_i32 s%d, s%d, %d" % (sA0, sC, 2 * UNIT))
    a("s_add_u32 s%d, s%d, %d" % (sA1, sA0, UNIT))
    a("v_lshrrev_b32 v%d, 3, v0" % vSA)
    a("v_lshlrev_b32 v%d, 3, v%d" % (vSA, vSA))
    a("s_lshl_b32 s%d, s%d, 6" % (t0, sC))
    a("s_add_u32 s%d, s%d, %d" % (t0, t0, SC))
    a("v_add_u32 v%d, s%d, v%d" % (vSA, t0, vSA))
    a("v_mov_b32 v%d, 0xff800000" % vM)
    a("v_mov_b32 v%d, 0" % vLsum)
    for i in range(12):
        a("v_mov_b32 v%d, 0" % (vAcc + i))
    vLad, vOad = 76, 77
    a("v_lshrrev_b32 v%d, 4, v0" % vLad)
    a("v_lshlrev_b32 v%d, 2, v%d" % (vLad, vLad))
    a("s_lshl_b32 s%d, s%d, 4" % (t0, sC))
    a("s_add_u32 s%d, s%d, %d" % (t0, t0, MX))
    a("v_add_u32 v%d, s%d, v%d" % (vLad, t0, vLad))
    useful_lane_offset(vOad, vT, 2, OPS)
    a("s_mul_i32 s%d, s%d, %d" % (t0, sC, 2 * OPS))
    a("s_add_u32 s%d, s%d, %d" % (t0, t0, OP))
    a("v_add_u32 v%d, s%d, v%d" % (vOad, t0, vOad))
    a("s_mov_b32 s%d, 0x01010101" % sOne)
    a("s_mov_b32 s%d, 0x01010101" % (sOne + 1))
    a("s_mov_b32 s%d, 0x%08x" % (sScale, f32bits(192 ** -0.5 * math.log2(math.e))))
    a("s_waitcnt lgkmcnt(0)")
    a("s_barrier")
    a("v_and_b32 v%d, 7, v0" % vT)
    a("v_lshlrev_b32 v%d, 4, v%d" % (vT, vT))
    a("v_add_u32 v%d, %d, v%d" % (vT, Q, vT))
    for i in range(3):
        a("ds_read_b128 v[%d:%d], v%d offset:%d" % (vQ + 4 * i, vQ + 4 * i + 3, vT, 128 * i))
    a("s_mov_b32 s%d, 0" % sRound)
    a("s_mov_b32 s%d, 1" % sIn)
    a("s_mov_b32 s%d, 0" % sSc)

    def data_reads():
        a("v_add_u32 v%d, s%d, v%d" % (vAd0, sA0, vL16))
        a("v_add_u32 v%d, s%d, v%d" % (vAd1, sA1, vL16))
        for u, ad in ((0, vAd0), (1, vAd1)):
            for i in range(3):
                r = vD + 12 * u + 4 * i
                a("ds_read_b128 v[%d:%d], v%d offset:%d" % (r, r + 3, ad, 1024 * i))
        for s in (sA0, sA1):
            a("s_add_u32 s%d, s%d, %d" % (s, s, RS * UNIT))
            a("s_cmp_ge_u32 s%d, %d" % (s, RING))
            a("s_cselect_b32 s%d, %d, 0" % (t0, RING))
            a("s_sub_u32 s%d, s%d, s%d" % (s, s, t0))

    lab("L_c_k")
    data_reads()
    for u in range(2):
        for i in range(3):
            a("s_waitcnt lgkmcnt(%d)" % (5 - 3 * u - i))
            for k in range(4):
                src = "0" if (i == 0 and k == 0) else "v%d" % (vS + u)
                a("v_dot2_f32_bf16 v%d, v%d, v%d, %s" % (vS + u, vD + 12 * u + 4 * i + k, vQ + 4 * i + k, src))
    for step, dpp in enumerate(("quad_perm:[1,0,3,2]", "quad_perm:[2,3,0,1]", "row_half_mirror")):
        a("v_add_f32_dpp v%d, v%d, v%d %s row_mask:0xf bank_mask:0xf" % (vS, vS, vS, dpp))
        a("s_nop %d" % (1 if step == 0 else 0))
        a("v_add_f32_dpp v%d, v%d, v%d %s row_mask:0xf bank_mask:0xf" % (vS + 1, vS + 1, vS + 1, dpp))
    a("s_add_u32 s%d, s%d, 1" % (sSc, sSc))
    a("v_max3_f32 v%d, v%d, v%d, v%d" % (vM, vM, vS, vS + 1))
    a("s_mov_b64 exec, s[%d:%d]" % (sOne, sOne + 1))
    a("ds_write_b64 v%d, v[%d:%d]" % (vSA, vS, vS + 1))
    a("s_mov_b64 exec, -1")
    a("v_add_u32 v%d, 128, v%d" % (vSA, vSA))
    a("s_cmp_eq_u32 s%d, 128" % sSc)
    a("s_cbranch_scc1 L_c_kdone")
    a("s_sub_u32 s%d, s%d, 1" % (sIn, sIn))
    a("s_cmp_lg_u32 s%d, 0" % sIn)
    a("s_cbranch_scc1 L_c_k")
    a("s_add_u32 s%d, s%d, 1" % (sRound, sRound))
    a("s_cmp_lt_u32 s%d, %d" % (sRound, 1 + ndouble))
    a("s_cselect_b32 s%d, 2, 1" % sIn)
    a("s_barrier")
    a("s_branch L_c_k")
    lab("L_c_kdone")
    assert 1 + 2 * ndouble < 128
    c("exact row max over all 4096 scores, shared through LDS")
    a("s_nop 1")
    a("v_max_f32_dpp v%d, v%d, v%d row_ror:8 row_mask:0xf bank_mask:0xf" % (vM, vM, vM))
    a("ds_write_b32 v%d, v%d" % (vLad, vM))
    a("v_subrev_u32 v%d, %d, v%d" % (vSA, 16384, vSA))
    a("s_waitcnt lgkmcnt(0)")
    a("s_barrier")
    a("v_mov_b32 v%d, %d" % (vT, MX))
    a("ds_read_b128 v[%d:%d], v%d" % (vAop, vAop + 3, vT))
    a("ds_read_b128 v[%d:%d], v%d offset:16" % (vAop + 4, vAop + 7, vT))
    a("s_waitcnt lgkmcnt(0)")
    a("v_max3_f32 v%d, v%d, v%d, v%d" % (vM, vAop, vAop + 1, vAop + 2))
    a("v_max3_f32 v%d, v%d, v%d, v%d" % (vM, vM, vAop + 3, vAop + 4))
    a("v_max3_f32 v%d, v%d, v%d, v%d" % (vM, vM, vAop + 5, vAop + 6))
    a("v_max_f32 v%d, v%d, v%d" % (vM, vM, vAop + 7))
    a("v_mul_f32 v%d, s%d, v%d" % (vMc, sScale, vM))
    a("s_mov_b32 s%d, 0" % sSc)
    lab("L_c_v")
    a("ds_read_b64 v[%d:%d], v%d" % (vS, vS + 1, vSA))
    data_reads()
    a("v_add_u32 v%d, 128, v%d" % (vSA, vSA))
    a("s_waitcnt lgkmcnt(6)")
    a("v_fma_f32 v%d, v%d, s%d, -v%d" % (vS, vS, sScale, vMc))
    a("v_fma_f32 v%d, v%d, s%d, -v%d" % (vS + 1, vS + 1, sScale, vMc))
    a("v_exp_f32 v%d, v%d" % (vS, vS))
    a("v_exp_f32 v%d, v%d" % (vS + 1, vS + 1))
    a("s_add_u32 s%d, s%d, 1" % (sSc, sSc))
    a("v_cvt_pk_bf16_f32 v%d, v%d, v%d" % (vT, vS, vS))
    a("v_cvt_pk_bf16_f32 v%d, v%d, v%d" % (vT + 1, vS + 1, vS + 1))
    for u in range(2):
        for j in range(4):
            a("v_and_b32 v%d, v%d, v%d" % (vAop + 4 * u + j, vMask + j, vT + u))
    a("v_add_f32 v%d, v%d, v%d" % (vLsum, vLsum, vS))
    a("v_add_f32 v%d, v%d, v%d" % (vLsum, vLsum, vS + 1))
    for u in range(2):
        for i in range(3):
            a("s_waitcnt lgkmcnt(%d)" % (5 - 3 * u - i))
            r = vD + 12 * u + 4 * i
            a("v_mfma_f32_16x16x32_bf16 v[%d:%d], v[%d:%d], v[%d:%d], v[%d:%d]" % (
                vAcc + 4 * i, vAcc + 4 * i + 3, vAop + 4 * u, vAop + 4 * u + 3, r, r + 3, vAcc + 4 * i, vAcc + 4 * i + 3))
    a("s_cmp_eq_u32 s%d, 128" % sSc)
    a("s_cbranch_scc1 L_c_vdone")
    a("s_barrier")
    a("s_branch L_c_v")
    lab("L_c_vdone")
    c("publish the unnormalised o partials (bf16) and the weight sums")
    a("v_add_f32_dpp v%d, v%d, v%d row_ror:8 row_mask:0xf bank_mask:0xf" % (vLsum, vLsum, vLsum))
    a("ds_write_b32 v%d, v%d offset:%d" % (vLad, vLsum, LS - MX))
    set_useful_exec()
    a("s_nop 1")
    for i in range(3):
        a("v_cvt_pk_bf16_f32 v%d, v%d, v%d" % (vD + 2 * i, vAcc + 4 * i, vAcc + 4 * i + 1))
        a("v_cvt_pk_bf16_f32 v%d, v%d, v%d" % (vD + 2 * i + 1, vAcc + 4 * i + 2, vAcc + 4 * i + 3))
        a("ds_write_b64 v%d, v[%d:%d] offset:%d" % (vOad, vD + 2 * i, vD + 2 * i + 1, 128 * i))
    a("s_waitcnt lgkmcnt(0)")
    a("s_barrier")
    a("s_endpgm")

    c("======== holders ========")
    lab("L_holder")
    sHj, sO, sTag, sTk, sLoop, sTry = 54, 55, 56, 57, 58, 59
    sPlo, sPhi = 60, 61
    vWq, vWo, vY, vTmp = 4, 5, 6, 7
    vX = 8
    vTag = 28
    blk = lambda k: 32 + 32 * k
    a("s_sub_u32 s%d, s%d, 3" % (sHj, sW))
    a("s_mov_b32 s%d, 0x05040100" % sPlo)
    a("s_mov_b32 s%d, 0x07060302" % sPhi)
    a("s_cmp_lg_u32 s%d, %d" % (sHj, qw))
    a("s_cbranch_scc1 L_h_setup")
    c("q projection, shared by the 8 workgroups of the head: workgroup b < 6 multiplies x (all 8 rows) by")
    c("rows [320*(b/3), +320) x columns [64*(b%3), +64) of the head's wq slice and sends each row to its owner")
    a("v_and_b32 v1, 7, v0")
    a("v_bfe_u32 v2, v0, 3, 1")
    a("v_lshrrev_b32 v3, 4, v0")
    a("v_lshl_add_u32 v29, v2, 2, v3")
    a("v_mul_u32_u24 v%d, %d, v29" % (vWq, 12288 if dbg & 1 else 8 * 12288))
    a("v_lshl_add_u32 v%d, v1, 4, v%d" % (vWq, vWq))
    a("v_mul_u32_u24 v30, 1280, v1")
    a("v_lshl_add_u32 v30, v29, 4, v30")
    a("v_lshlrev_b32 v31, 11, v1")
    a("s_cmp_ge_u32 s%d, 3" % sB)
    a("s_cselect_b32 s%d, 320, 0" % t2)
    a("s_cselect_b32 s%d, 3, 0" % t3)
    a("s_sub_u32 s%d, s%d, s%d" % (t3, sB, t3))
    a("s_mul_i32 s%d, s%d, 12288" % (sO, t2))
    a("s_lshl_b32 s%d, s%d, 7" % (t3, t3))
    a("s_add_u32 s%d, s%d, s%d" % (sO, sO, t3))
    if dbg & 2:
        a("s_mul_i32 s%d, s%d, %d" % (sO, sB, 104 * 12288))
    a("s_lshl_b32 s%d, s%d, 1" % (t2, t2))
    a("s_mul_i32 s%d, s%d, 384" % (t0, sH))
    a("s_lshl_b32 s%d, s%d, 14" % (t1, sH))
    a("s_add_u32 s%d, s%d, 0x%x" % (t1, t1, QB))
    a("s_waitcnt lgkmcnt(0)")
    srd(YS, 18, 19, t1, 16384)
    a("buffer_load_dword v%d, v31, s[%d:%d], 0 offen offset:1536 sc1" % (vTag, YS, YS + 3))
    a("s_cmp_ge_u32 s%d, 6" % sB)
    a("s_cbranch_scc1 L_q_tag")
    srd(WQ, 10, 11, t0, "s_sub_u32 s%%d, 7864320, s%d" % t0)
    a("s_mov_b32 s%d, s4" % XS)
    a("s_mov_b32 s%d, s5" % (XS + 1))
    a("s_mov_b32 s%d, 10240" % (XS + 2))
    a("s_mov_b32 s%d, 0x20000" % (XS + 3))
    for rb in range(5):
        for i in range(8):
            r = blk(rb + 1) + 4 * i
            a("buffer_load_dwordx4 v[%d:%d], v%d, s[%d:%d], s%d offen %s" % (r, r + 3, vWq, WQ, WQ + 3, sO, wqpol))
            if dbg & 2:
                a("s_add_u32 s%d, s%d, %d" % (sO, sO, 128 if (rb * 8 + i) % 3 < 2 else 8 * 12288 - 256))
            else:
                a("s_add_u32 s%d, s%d, %d" % (sO, sO, 8 * 12288 if dbg & 1 else (12288 if i < 7 else 57 * 12288)))
        a("buffer_load_dwordx4 v[%d:%d], v30, s[%d:%d], s%d offen offset:%d" % (vX + 4 * rb, vX + 4 * rb + 3, XS, XS + 3, t2, 128 * rb))
    a("v_lshl_add_u32 v31, v29, 4, v31")
    a("s_lshl_b32 s%d, s%d, 8" % (sO, sB))
    qacc = blk(6)

    def transpose(dst, src, col):
        for p in range(4):
            a("v_perm_b32 v%d, v%d, v%d, s%d" % (dst + 4 * col + p, src + 4 * (2 * p + 1) + col // 2, src + 4 * (2 * p) + col // 2, sPhi if col % 2 else sPlo))

    for rb in range(5):
        a("s_waitcnt vmcnt(%d)" % (9 * (4 - rb)))
        transpose(blk(0), blk(rb + 1), 0)
        for col in range(8):
            if col < 7:
                transpose(blk(0), blk(rb + 1), col + 1)
            else:
                a("s_nop 0")
            d = qacc + 4 * col
            srcc = "0" if rb == 0 else "v[%d:%d]" % (d, d + 3)
            a("v_mfma_f32_16x16x32_bf16 v[%d:%d], v[%d:%d], v[%d:%d], %s" % (d, d + 3, blk(0) + 4 * col, blk(0) + 4 * col + 3, vX + 4 * rb, vX + 4 * rb + 3, srcc))
    a("v_add_u32 v%d, 0x01010101, v%d" % (vTag, vTag))
    for r in range(4):
        a("s_mov_b32 s%d, 0x%08x" % (t0 + r, 0x07060500 + r))
    a("s_nop 3")
    c("add the two 32-row halves; lanes 0-7 / 8-15 of each row end up with even / odd columns")
    for col in range(4):
        for r in range(4):
            a("v_permlane32_swap_b32 v%d, v%d" % (qacc + 4 * col + r, qacc + 4 * (col + 4) + r))
    for st in range(2):
        for r in range(4):
            t = vX + 4 * st + r
            a("v_add_f32_dpp v%d, v%d, v%d row_ror:8 row_mask:0xf bank_mask:0x3" % (t, qacc + 4 * (2 * st + 4) + r, qacc + 4 * (2 * st) + r))
            a("v_add_f32_dpp v%d, v%d, v%d row_ror:8 row_mask:0xf bank_mask:0xc" % (t, qacc + 4 * (2 * st + 1) + r, qacc + 4 * (2 * st + 5) + r))
    c("the low byte of each word carries one byte of the receiver's tag for this launch")
    for st in range(2):
        for r in range(4):
            t = vX + 4 * st + r
            a("v_perm_b32 v%d, v%d, v%d, s%d" % (t, t, vTag, t0 + r))
        a("buffer_store_dwordx4 v[%d:%d], v31, s[%d:%d], s%d offen offset:%d sc1" % (vX + 4 * st, vX + 4 * st + 3, YS, YS + 3, sO, 128 * st))
    a("s_branch L_q_gather")
    lab("L_q_tag")
    a("s_waitcnt vmcnt(0)")
    a("v_add_u32 v%d, 0x01010101, v%d" % (vTag, vTag))
    lab("L_q_gather")
    stamp(4)
    a("v_lshlrev_b32 v1, 4, v0")
    a("v_readlane_b32 s%d, v%d, s%d" % (sTag, vTag, sB))
    a("s_lshl_b32 s%d, s%d, 11" % (sO, sB))
    a("s_mov_b32 s%d, 0" % sTry)
    a("s_mov_b32 s%d, 0x0c0c0400" % t0)
    a("s_mov_b32 s%d, 0x04000c0c" % t1)
    a("s_mov_b32 s%d, 0x07060500" % t2)
    a("s_mov_b32 exec_hi, 0xffff")
    GA, GB = 16, 20
    lab("L_q_poll")
    a("buffer_load_dwordx4 v[%d:%d], v1, s[%d:%d], s%d offen sc1" % (GA, GA + 3, YS, YS + 3, sO))
    a("buffer_load_dwordx4 v[%d:%d], v1, s[%d:%d], s%d offen offset:768 sc1" % (GB, GB + 3, YS, YS + 3, sO))
    a("s_add_u32 s%d, s%d, 1" % (sTry, sTry))
    a("s_waitcnt vmcnt(0)")
    for g, t in ((GA, 24), (GB, 26)):
        a("v_perm_b32 v%d, v%d, v%d, s%d" % (t, g + 1, g, t0))
        a("v_perm_b32 v%d, v%d, v%d, s%d" % (t + 1, g + 3, g + 2, t1))
        a("v_or_b32 v%d, v%d, v%d" % (t, t, t + 1))
    a("v_xor_b32 v24, s%d, v24" % sTag)
    a("v_xor_b32 v26, s%d, v26" % sTag)
    a("v_or_b32 v24, v24, v26")
    a("v_cmp_ne_u32 vcc, 0, v24")
    a("s_cbranch_vccz L_q_got")
    if sleep:
        a("s_sleep %d" % sleep)
    a("s_cmp_lt_u32 s%d, 0x100000" % sTry)
    a("s_cbranch_scc1 L_q_poll")
    lab("L_q_got")
    a("v_mov_b32 v24, 0x80")
    a("v_lshrrev_b32 v2, 4, v0")
    a("v_lshlrev_b32 v2, 6, v2")
    a("v_and_b32 v3, 1, v0")
    a("v_lshl_add_u32 v2, v3, 5, v2")
    a("v_bfe_u32 v3, v0, 2, 2")
    a("v_add_u32 v2, v2, v3")
    a("v_bfe_u32 v3, v0, 1, 1")
    a("v_lshl_add_u32 v2, v3, 2, v2")
    a("v_lshlrev_b32 v2, 1, v2")
    a("v_add_u32 v2, %d, v2" % Q)
    for r in range(8):
        a("v_perm_b32 v%d, v%d, v24, s%d" % (GA + r, GA + r, t2))
    for r in range(4):
        a("v_add_f32 v%d, v%d, v%d" % (GA + r, GA + r, GB + r))
    a("v_cvt_pk_bf16_f32 v%d, v%d, v%d" % (GA, GA, GA + 1))
    a("v_cvt_pk_bf16_f32 v%d, v%d, v%d" % (GA + 2, GA + 2, GA + 3))
    a("ds_write_b16 v2, v%d" % GA)
    a("ds_write_b16_d16_hi v2, v%d offset:16" % GA)
    a("ds_write_b16 v2, v%d offset:32" % (GA + 2))
    a("ds_write_b16_d16_hi v2, v%d offset:48" % (GA + 2))
    c("all six senders have read this workgroup's tag word: advance it for the next launch")
    a("v_mov_b32 v3, s%d" % sTag)
    a("s_mov_b64 exec, 1")
    a("buffer_store_dword v3, v1, s[%d:%d], s%d offen offset:1536 sc1" % (YS, YS + 3, sO))
    a("s_mov_b64 exec, -1")
    stamp(14)
    lab("L_h_setup")
    a("s_mul_i32 s%d, s%d, 1280" % (t1, sB))
    a("s_waitcnt lgkmcnt(0)")
    srd(OS, 14, 15, t1, 1280)
    a("s_mul_i32 s%d, s%d, 245760" % (t0, sH))
    srd(WO, 12, 13, t0, 245760)
    a("s_mul_i32 s%d, s%d, 81920" % (t0, sB))
    srd(YS, 18, 19, t0, 81920)
    c("addresses for wo and for this wave's part of the y hand-off buffer")
    a("v_lshrrev_b32 v1, 4, v0")
    a("v_and_b32 v2, 15, v0")
    a("v_mul_u32_u24 v%d, 10240, v1" % vWo)
    a("v_lshl_add_u32 v%d, v2, 4, v%d" % (vWo, vWo))
    a("s_lshl_b32 s%d, s%d, 8" % (t0, sHj))
    a("v_add_u32 v%d, s%d, v%d" % (vWo, t0, vWo))
    a("s_lshl_b32 s%d, s%d, 14" % (t0, sHj))
    a("s_lshl_b32 s%d, s%d, 9" % (t1, sH))
    a("s_add_u32 s%d, s%d, s%d" % (t0, t0, t1))
    a("v_lshlrev_b32 v%d, 4, v0" % vY)
    a("v_add_u32 v%d, s%d, v%d" % (vY, t0, vY))
    a("s_waitcnt lgkmcnt(0)")
    a("s_barrier")
    nb = 1

    def idle(n):
        if n <= 0:
            return
        if n <= 2:
            for _ in range(n):
                a("s_barrier")
            return
        name = "L_h_idle%d" % len(L)
        a("s_mov_b32 s%d, %d" % (sLoop, n))
        lab(name)
        a("s_barrier")
        a("s_sub_u32 s%d, s%d, 1" % (sLoop, sLoop))
        a("s_cmp_lg_u32 s%d, 0" % sLoop)
        a("s_cbranch_scc1 %s" % name)

    c("mark this wave's hand-off slot empty")
    for i in range(4):
        a("v_mov_b32 v%d, -1" % (8 + i))
    a("s_mov_b32 exec_hi, 0")
    if dbg & 8 == 0:
        a("buffer_store_dwordx4 v[8:11], v%d, s[%d:%d], 0 offen %s" % (vY, YS, YS + 3, "sc1"))
    a("s_mov_b64 exec, -1")
    idle(wo_r0)
    nb += wo_r0
    n = 0
    while n < 48:
        for _ in range(wo_k):
            ks, i = divmod(n, 8)
            if i % 4 == 0:
                a("s_mov_b32 s%d, %d" % (sO, ks * 40960 + (i // 4) * 5120))
            r = blk(ks + 1) + 4 * i
            if dbg & 128 == 0:
                a("buffer_load_dwordx4 v[%d:%d], v%d, s[%d:%d], s%d offen offset:%d %s" % (r, r + 3, vWo, WO, WO + 3, sO, (i % 4) * 1280, wopol))
            n += 1
        a("s_barrier")
        nb += 1
    idle(8)
    nb += 8
    a("s_waitcnt vmcnt(0)")
    c("transpose each 8x8 block in place of the previous one: 8 rows x 8 columns -> 8 columns x 8 rows")
    for ks in range(6):
        src, dst = blk(ks + 1), blk(ks)
        for col in range(8):
            transpose(dst, src, col)
        a("s_barrier")
        nb += 1
    a("v_and_b32 v1, 3, v0")
    a("v_mul_u32_u24 v1, %d, v1" % OPS)
    a("v_lshrrev_b32 v2, 4, v0")
    a("v_lshl_add_u32 v1, v2, 4, v1")
    a("v_add_u32 v1, %d, v1" % OP)
    a("v_mov_b32 v2, %d" % LS)
    a("s_lshl_b32 s%d, s%d, %d" % (t0, sB, tshift))
    a("v_mov_b32 v3, s%d" % t0)
    a("v_mov_b32 v%d, 1" % vTmp)
    last = 31 if dbg & 56 == 0 else 1000
    a("v_lshlrev_b32 v%d, 4, v0" % vWq)
    a("s_lshl_b32 s%d, s%d, 14" % (sO, sHj))
    a("s_add_u32 s%d, s%d, 4096" % (t1, sO))
    a("s_add_u32 s%d, s%d, 8192" % (t2, sO))
    a("s_add_u32 s%d, s%d, 12288" % (t3, sO))
    a("s_mov_b32 s%d, 0" % sTry)
    a("s_lshr_b32 s%d, s%d, 1" % (sTag, sH))
    a("s_lshl_b32 s%d, s%d, 2" % (sTag, sTag))
    a("s_bitcmp1_b32 s%d, 0" % sH)
    a("s_cselect_b32 s%d, 0, -1" % sPlo)
    a("s_cselect_b32 s%d, -1, 0" % sPhi)
    idle(NB - hint - nb)
    nb = NB - hint
    c("arrival ticket of this batch row: the last arriver sums the row; every slot is marked empty by then")
    a("s_cmp_lg_u32 s%d, 0" % sHj)
    a("s_cbranch_scc1 L_h_noticket")
    a("s_mov_b64 exec, 1")
    if dbg & 32 == 0:
        a("global_atomic_add v%d, v3, v%d, s[16:17] sc0 sc1" % (vTmp, vTmp))
    a("s_mov_b64 exec, -1")
    lab("L_h_noticket")
    idle(hint)
    a("s_cmp_lg_u32 s%d, 0" % sHj)
    a("s_cbranch_scc1 L_h_noshare")
    a("s_waitcnt vmcnt(0)")
    a("s_mov_b64 exec, 1")
    a("ds_write_b32 v2, v%d offset:32" % vTmp)
    a("s_mov_b64 exec, -1")
    a("s_waitcnt lgkmcnt(0)")
    lab("L_h_noshare")
    a("s_barrier")
    stamp(5)
    oacc = blk(6)
    G = blk(0)
    a("ds_read_b32 v%d, v2 offset:32" % vTmp)
    for ks in range(6):
        a("ds_read_b128 v[%d:%d], v1 offset:%d" % (8 + 4 * ks, 11 + 4 * ks, 64 * ks))

    def gather():
        for k in range(16):
            so = (sO, t1, t2, t3)[k // 4]
            a("buffer_load_dwordx4 v[%d:%d], v%d, s[%d:%d], s%d offen offset:%d sc1" % (G + 4 * k, G + 4 * k + 3, vWq, YS, YS + 3, so, 1024 * (k % 4)))

    for ks in range(6):
        a("s_waitcnt lgkmcnt(%d)" % (5 - ks))
        if ks == 0:
            a("v_readfirstlane_b32 s%d, v%d" % (sTk, vTmp))
        for col in range(8):
            r = blk(ks) + 4 * col
            srcc = "0" if ks == 0 else "v[%d:%d]" % (oacc + 4 * col, oacc + 4 * col + 3)
            a("v_mfma_f32_16x16x32_bf16 v[%d:%d], v[%d:%d], v[%d:%d], %s" % (oacc + 4 * col, oacc + 4 * col + 3, 8 + 4 * ks, 11 + 4 * ks, r, r + 3, srcc))
        if ks == 1:
            a("ds_read_b128 v[8:11], v2")
            a("ds_read_b128 v[12:15], v2 offset:16")
            if pregather:
                c("the last-arriving workgroup starts fetching the other heads' rows")
                a("s_cmp_lg_u32 s%d, %d" % (sTk, last))
                a("s_cbranch_scc1 L_h_nogather")
                gather()
                lab("L_h_nogather")
        if ks == 4:
            a("s_waitcnt lgkmcnt(0)")
            a("v_add_f32 v8, v8, v9")
            a("v_add_f32 v10, v10, v11")
            a("v_add_f32 v12, v12, v13")
            a("v_add_f32 v14, v14, v15")
            a("v_add_f32 v8, v8, v10")
            a("v_add_f32 v12, v12, v14")
            a("v_add_f32 v8, v8, v12")
            a("v_rcp_f32 v9, v8")
            a("s_nop 0")
            a("v_fma_f32 v10, -v8, v9, 1.0")
            a("v_fma_f32 v9, v10, v9, v9")
    for col in range(8):
        r = oacc + 4 * col
        if col == 0:
            a("s_cmp_eq_u32 s%d, %d" % (sTk, last))
        a("v_add_f32 v%d, v%d, v%d" % (r, r, r + 1))
        a("v_add_f32 v%d, v%d, v%d" % (r + 2, r + 2, r + 3))
        a("v_add_f32 v%d, v%d, v%d" % (r, r, r + 2))
        a("v_mul_f32 v%d, v9, v%d" % (16 + col, r))
        a("v_min_u32 v%d, -2, v%d" % (16 + col, 16 + col))
    if pregather:
        a("s_cbranch_scc1 L_r_own")
    a("s_mov_b64 exec, 0xffff")
    if dbg & 16 == 0:
        a("buffer_store_dwordx4 v[16:19], v%d, s[%d:%d], 0 offen sc1" % (vY, YS, YS + 3))
        a("buffer_store_dwordx4 v[20:23], v%d, s[%d:%d], 0 offen offset:256 sc1" % (vY, YS, YS + 3))
    a("s_mov_b64 exec, -1")
    stamp(6)
    c("in the last-arriving workgroup each wave sums its 128 columns over the 32 heads, in head order")
    if pregather:
        a("s_branch L_h_done")
        lab("L_r_own")
        stamp(6)
        a("s_mov_b32 vcc_lo, 0xffff0000")
        a("s_mov_b32 vcc_hi, 0xffff0000")
        for i in range(4):
            a("v_cndmask_b32 v%d, v%d, v%d, vcc" % (16 + i, 16 + i, 20 + i))
        a("s_branch L_r_wait")
        lab("L_r_poll")
        gather()
        lab("L_r_wait")
        a("s_waitcnt vmcnt(0)")
        a("s_mov_b64 exec, s[%d:%d]" % (sPlo, sPhi))
        a("s_set_gpr_idx_on s%d, gpr_idx(DST)" % sTag)
        for i in range(4):
            a("v_mov_b32 v%d, v%d" % (G + i, 16 + i))
        a("s_set_gpr_idx_off")
        a("s_mov_b64 exec, -1")
        for k in range(1, 16):
            for i in range(4):
                a("v_add_f32 v%d, v%d, v%d" % (8 + i, G + i if k == 1 else 8 + i, G + 4 * k + i))
    else:
        a("s_cbranch_scc0 L_h_done")
        lab("L_r_poll")
        gather()
        for k in range(1, 16):
            a("s_waitcnt vmcnt(%d)" % (15 - k))
            for i in range(4):
                a("v_add_f32 v%d, v%d, v%d" % (8 + i, G + i if k == 1 else 8 + i, G + 4 * k + i))
    a("v_cmp_u_f32 vcc, v8, v9")
    a("v_cmp_u_f32 s[62:63], v10, v11")
    a("s_nop 1")
    a("s_or_b64 vcc, vcc, s[62:63]")
    a("s_cbranch_vccz L_r_sum")
    c("a NaN sum: either an empty slot (poll again) or a NaN in the data")
    a("v_max3_u32 v12, v%d, v%d, v%d" % (G, G + 1, G + 2))
    for k in range(3, 63, 2):
        a("v_max3_u32 v12, v12, v%d, v%d" % (G + k, G + k + 1))
    a("v_max_u32 v12, v12, v%d" % (G + 63))
    a("v_cmp_eq_u32 vcc, -1, v12")
    a("s_add_u32 s%d, s%d, 1" % (sTry, sTry))
    a("s_cbranch_vccz L_r_sum")
    a("s_cmp_lt_u32 s%d, 0x100000" % sTry)
    a("s_cbranch_scc1 L_r_poll")
    lab("L_r_sum")
    for i in range(4):
        a("v_mov_b32 v%d, v%d" % (12 + i, 8 + i))
    a("v_and_b32 v2, 15, v0")
    a("v_bfe_u32 v3, v0, 4, 1")
    for i in range(4):
        a("v_permlane32_swap_b32 v%d, v%d" % (8 + i, 12 + i))
    a("v_lshlrev_b32 v2, 4, v2")
    a("v_lshl_add_u32 v2, v3, 3, v2")
    for i in range(4):
        a("v_add_f32 v%d, v%d, v%d" % (8 + i, 8 + i, 12 + i))
    a("s_lshl_b32 s%d, s%d, 8" % (t0, sHj))
    a("v_cvt_pk_bf16_f32 v8, v8, v9")
    a("v_cvt_pk_bf16_f32 v9, v10, v11")
    a("s_mov_b32 exec_hi, 0")
    a("buffer_store_dwordx2 v[8:9], v2, s[%d:%d], s%d offen" % (OS, OS + 3, t0))
    a("s_mov_b64 exec, -1")
    lab("L_h_done")
    if stamps:
        a("s_waitcnt vmcnt(0)")
        stamp(7)
        a("s_cmp_lg_u32 s%d, %d" % (sHj, qw))
        a("s_cbranch_scc1 L_end")
        flush_stamps([4, 5, 6, 7, 14])
    lab("L_end")
    a("s_endpgm")
    return HEADER.format(lds=LDS, name=NAME) + "\n".join(L) + FOOTER.format(name=NAME)


if __name__ == "__main__":
    spec = json.loads(sys.argv[1])
    names = []
    for cfg in spec:
        cfg = dict(cfg)
        out = cfg.pop("out", None)
        name = out or ("work/k_" + "_".join("%s%s" % (k, str(v).replace(" ", "")) for k, v in cfg.items()) + ".s")
        open("code/" + name, "w").write(gen(**cfg))
        names.append(name)
    print(" ".join(names))
```

```python
import re, sys
sys.path.insert(0, "work")
import gen_kernel as g

def make(out, kend, k, base_ticks, **kw):
    s = g.gen(stamps=1, **kw)
    m = re.search(r'; @launch grid=(.*)\n', s)
    line = '; @launch kernel=%s grid=%s\n; @launch kernel=probe_kernel grid=(1,1,1) block=(64,1,1) lds=0\n' % (g.NAME, m.group(1))
    s = s.replace(m.group(0), line)
    L = []
    a = L.append
    a(".text\n.globl probe_kernel\n.p2align 8\n.type probe_kernel,@function\nprobe_kernel:")
    a("s_cmp_lg_u32 s2, 0")
    a("s_cbranch_scc1 P_end")
    a("s_load_dwordx2 s[4:5], s[0:1], 56")
    a("s_memrealtime s[10:11]")
    a("v_lshlrev_b32 v1, 7, v0")
    a("v_add_u32 v1, 0x4000000, v1")
    a("s_waitcnt lgkmcnt(0)")
    for i in range(4):
        a("global_load_dword v%d, v1, s[4:5]" % (2 + i))
        a("global_load_dword v%d, v1, s[4:5] offset:%d" % (6 + i, 8 * kend))
        a("v_add_u32 v1, 8192, v1")
    a("s_waitcnt vmcnt(0)")
    a("v_readfirstlane_b32 s12, v2")
    a("s_nop 1")
    a("s_sub_u32 s12, s12, 1000")
    for i in range(8):
        a("v_subrev_u32 v%d, s12, v%d" % (2 + i, 2 + i))
    a("v_min_u32 v2, v2, v3\nv_min_u32 v4, v4, v5\nv_min_u32 v2, v2, v4")
    a("v_max_u32 v6, v6, v7\nv_max_u32 v8, v8, v9\nv_max_u32 v6, v6, v8")
    a("s_mov_b32 s13, -1\ns_mov_b32 s14, 0\ns_mov_b32 s15, 0")
    a("P_red:")
    a("s_nop 4")
    a("v_readlane_b32 s16, v2, s15\nv_readlane_b32 s17, v6, s15")
    a("s_nop 1")
    a("s_min_u32 s13, s13, s16\ns_max_u32 s14, s14, s17")
    a("s_add_u32 s15, s15, 1\ns_cmp_lt_u32 s15, 64\ns_cbranch_scc1 P_red")
    a("s_sub_u32 s14, s14, s13")
    a("s_sub_i32 s14, s14, %d" % base_ticks)
    a("s_max_i32 s14, s14, 0")
    a("s_min_i32 s14, s14, 5000")
    a("s_mul_i32 s14, s14, %d" % k)
    a("s_add_u32 s14, s14, 1000")
    a("P_wait:")
    a("s_memrealtime s[18:19]")
    a("s_waitcnt lgkmcnt(0)")
    a("s_sub_u32 s18, s18, s10")
    a("s_cmp_lt_u32 s18, s14")
    a("s_cbranch_scc1 P_wait")
    a("P_end:")
    a("s_endpgm")
    a("""
.section .rodata,"a"
.p2align 6
.amdhsa_kernel probe_kernel
  .amdhsa_next_free_vgpr 16
  .amdhsa_next_free_sgpr 32
  .amdhsa_accum_offset 16
  .amdhsa_group_segment_fixed_size 0
  .amdhsa_kernarg_size 64
  .amdhsa_user_sgpr_count 2
  .amdhsa_user_sgpr_kernarg_segment_ptr 1
  .amdhsa_system_sgpr_workgroup_id_x 1
.end_amdhsa_kernel
""")
    open("code/" + out, "w").write(s + "\n".join(L))

make("work/pr_a.s", 7, 0, 10000)
make("work/pr_b.s", 7, 10, 10000)
make("work/pr_c.s", 11, 10, 5000)
make("work/pr_d.s", 8, 10, 0)
make("work/pr_e.s", 10, 10, 2500)
make("work/pr_f.s", 12, 10, 7500)
```

```python
import json
import math
import struct
import sys

NAME = "standalone__mha_block_cached__sampling_kernel"

HEADER = """; Kernarg layout for this problem (64 bytes, ptrs only, base s[0:1]):
; @launch grid=(256,1,1) block=(512,1,1) lds={lds}
.amdgcn_target "amdgcn-amd-amdhsa--gfx950"
.text
.globl {name}
.p2align 8
.type {name},@function
{name}:
"""
FOOTER = """
.section .rodata,"a"
.p2align 6
.amdhsa_kernel {name}
  .amdhsa_next_free_vgpr 256
  .amdhsa_next_free_sgpr 96
  .amdhsa_accum_offset 256
  .amdhsa_group_segment_fixed_size 0
  .amdhsa_kernarg_size 64
  .amdhsa_user_sgpr_count 2
  .amdhsa_user_sgpr_kernarg_segment_ptr 1
  .amdhsa_system_sgpr_workgroup_id_x 1
  .amdhsa_float_denorm_mode_32 3
.end_amdhsa_kernel
"""

BH = 1572864
UNIT = 3072
RS = 4


def f32bits(x):
    return struct.unpack("<I", struct.pack("<f", x))[0]


def gen(w1=18, w0=17, NSLOT=44, wo_r0=14, wo_k=1, hint=4, stamps=0, wqpol="nt", wopol="", prio=3, sleep=16,
        tshift=5, dbg=0, pregather=1, qw=0, delay=0, dstamp=0, ctl=1, pp=2, gain=96, bias=16, wlim=2, c0=12, spol="", lpol="sc1", ways=2, skA=172, skB=168, perm=0, sj=11, sx=0, smod=42, g2=0, b2=96, xs=4, par=0):
    L = []

    def a(s):
        L.append("    " + s)

    def lab(s):
        L.append(s + ":")

    def c(s):
        L.append("    ; " + s)

    RING = NSLOT * UNIT
    SC = RING
    MISC = SC + 16384
    Q = MISC
    MX = MISC + 384
    LS = MISC + 416
    LDS = MISC + 512
    OP = SC
    OPS = 400
    QB = 0x100000
    assert LDS <= 163840

    WIN = MISC + 452
    PB = 0x200000
    R = -(-(w1 + (wlim if ctl else 0)) // 3) + 1
    N0 = NSLOT - RS
    L0 = (N0 - R) // RS * RS
    NB = (1024 - L0) // RS + 1
    ndouble = L0 // RS - 1
    steps = [1] + [2] * ndouble + [1] * (NB - 1 - ndouble)
    assert sum(steps) == 256 and len(steps) == NB
    cons = 0
    for j, s in enumerate(steps):
        assert min(1024, N0 + (j + 1) * RS) - NSLOT <= cons
        cons += RS * s
        assert cons <= L0 + RS * j

    sW, sH, sB, sJ = 20, 21, 22, 23
    KV, WQ, WO, XS, YS, OS = 24, 28, 32, 36, 40, 44
    sVlo, sVhi = 48, 49
    t0, t1, t2, t3 = 50, 51, 52, 53
    stamp_reg = {k: 64 + 2 * k for k in range(15)}

    def stamp(k):
        if stamps:
            a("s_memrealtime s[%d:%d]" % (stamp_reg[k], stamp_reg[k] + 1))

    def flush_stamps(ks):
        if not stamps:
            return
        if dstamp:
            a("s_waitcnt lgkmcnt(0)")
            a("s_mov_b64 exec, 1")
            for k in ks:
                slot = {0: 1, 3: 2, 7: 3, 8: 4, 11: 5, 14: 6}.get(k)
                if slot is None:
                    continue
                a("v_mov_b32 v1, %d" % (4 * slot))
                if k == 0:
                    a("s_not_b32 s%d, s%d" % (t0, stamp_reg[k]))
                    a("v_mov_b32 v2, s%d" % t0)
                else:
                    a("v_mov_b32 v2, s%d" % stamp_reg[k])
                a("global_atomic_umax v1, v2, s[16:17] sc1")
            return
        a("s_waitcnt lgkmcnt(0)")
        a("s_lshl_b32 s%d, s2, 7" % t0)
        a("s_add_u32 s%d, s%d, 0x4000000" % (t0, t0))
        a("v_mov_b32 v1, s%d" % t0)
        for k in ks:
            a("v_mov_b32 v2, s%d" % stamp_reg[k])
            a("v_mov_b32 v3, s%d" % (stamp_reg[k] + 1))
            a("global_store_dwordx2 v1, v[2:3], s[18:19] offset:%d" % (8 * k))
            a("s_nop 1")

    def srd(d, lo, hi, off_sreg, nbytes):
        a("s_add_u32 s%d, s%d, s%d" % (d, lo, off_sreg))
        a("s_addc_u32 s%d, s%d, 0" % (d + 1, hi))
        if isinstance(nbytes, int):
            a("s_mov_b32 s%d, %d" % (d + 2, nbytes))
        else:
            a(nbytes % (d + 2))
        a("s_mov_b32 s%d, 0x20000" % (d + 3))

    def masks(base, tmp):
        c("lane-constant masks: element (lane & 7) of an 8 x bf16 operand")
        a("v_and_b32 v%d, 1, v0" % tmp)
        a("v_lshlrev_b32 v%d, 4, v%d" % (tmp, tmp))
        a("v_mov_b32 v%d, 0xffff" % (tmp + 1))
        a("v_lshlrev_b32 v%d, v%d, v%d" % (tmp, tmp, tmp + 1))
        a("v_bfe_u32 v%d, v0, 1, 2" % (tmp + 1))
        for j in range(4):
            a("v_cmp_eq_u32 vcc, %d, v%d" % (j, tmp + 1))
            a("s_nop 1")
            a("v_cndmask_b32 v%d, 0, v%d, vcc" % (base + j, tmp))

    def useful_lane_offset(dst, tmp, esize, rowstride):
        c("byte offset of this lane's 4 accumulator values: half * rowstride + (8*(n&7) + 4*(q&1)) * esize")
        a("v_and_b32 v%d, 7, v0" % dst)
        a("v_bfe_u32 v%d, v0, 4, 1" % tmp)
        a("v_lshl_add_u32 v%d, v%d, 1, v%d" % (dst, dst, tmp))
        a("v_mul_u32_u24 v%d, %d, v%d" % (dst, 4 * esize, dst))
        a("v_lshrrev_b32 v%d, 5, v0" % tmp)
        a("v_mul_u32_u24 v%d, %d, v%d" % (tmp, rowstride, tmp))
        a("v_add_u32 v%d, v%d, v%d" % (dst, dst, tmp))

    def set_useful_exec():
        a("s_mov_b32 exec_lo, 0x00ff00ff")
        a("s_mov_b32 exec_hi, 0xff00ff00")

    stamp(0)
    a("s_cmp_ge_u32 s2, 256")
    a("s_cbranch_scc1 L_end")
    a("s_load_dwordx16 s[4:19], s[0:1], 0")
    a("v_lshrrev_b32 v1, 6, v0")
    a("v_and_b32 v0, 63, v0")
    a("s_and_b32 s%d, s2, 7" % t0)
    a("v_readfirstlane_b32 s%d, v1" % sW)
    a("s_lshr_b32 s%d, s2, 3" % sJ)
    a("s_lshl_b32 s%d, s%d, 2" % (t0, t0))
    a("s_and_b32 s%d, s%d, 3" % (t1, sJ))
    a("s_add_u32 s%d, s%d, s%d" % (sH, t0, t1))
    a("s_lshr_b32 s%d, s%d, 2" % (sB, sJ))
    a("s_cmp_ge_u32 s%d, 3" % sW)
    a("s_cbranch_scc1 L_holder")
    a("s_cmp_ge_u32 s%d, 1" % sW)
    a("s_cbranch_scc1 L_consumer")

    c("======== loader ========")
    sM, sOff, sN, sCnt, sBlk, sMod = 54, 55, 56, 57, 59, 60
    vOff, vA, vB = 4, 8, 12
    BIAS = 1792
    assert NSLOT % RS == 0
    if prio:
        a("s_setprio %d" % prio)
    a("s_lshl_b32 s%d, s%d, 5" % (t0, sB))
    a("s_add_u32 s%d, s%d, s%d" % (t0, t0, sH))
    a("s_mul_i32 s%d, s%d, %d" % (t0, t0, BH))
    c("lane -> 4 keys of the low sub-stream (lanes 0-31), 4 keys of the high one (lanes 32-63);")
    c("load i uses offset:1024*i (added to both addresses), so its lane offset carries 896*(2-i)")
    kpw = 8 // ways
    lg = kpw.bit_length() - 1
    STEP = kpw * 384
    uA, uB = skA // kpw, skB // kpw
    assert skA % kpw == 0 and skB % kpw == 0 and 4096 % (ways * (2 * skA + skB)) == 0
    NBLK = 3 * 4096 // (ways * (2 * skA + skB))
    if perm:
        a("v_lshrrev_b32 v1, %d, v0" % (6 - lg))
        a("v_bfe_u32 v3, v0, 3, %d" % (3 - lg))
    else:
        if lg:
            a("v_bfe_u32 v1, v0, 3, %d" % lg)
        else:
            a("v_mov_b32 v1, 0")
        a("v_lshrrev_b32 v3, %d, v0" % (3 + lg))
    a("v_mul_u32_u24 v1, 384, v1")
    a("v_and_b32 v2, 7, v0")
    a("v_lshl_add_u32 v1, v2, 4, v1")
    a("v_mul_u32_u24 v2, %d, v3" % (skA * 384))
    a("v_add_u32 v%d, v1, v2" % (vA + 2))
    a("v_mul_u32_u24 v2, %d, v3" % (skB * 384))
    a("v_add_u32 v%d, v1, v2" % (vB + 2))
    for base in (vA, vB):
        a("v_add_u32 v%d, 896, v%d" % (base + 1, base + 2))
        a("v_add_u32 v%d, 1792, v%d" % (base, base + 2))
    for i in range(3):
        a("v_mov_b32 v%d, v%d" % (vOff + i, vA + i))
    sRot, sSkip = 62, 58
    c("the unit sequence starts sRot units into the first block and ends with the units skipped")
    a("s_and_b32 s%d, s2, 7" % t1)
    a("s_mul_i32 s%d, s%d, %d" % (t1, t1, sx))
    a("s_mul_i32 s%d, s%d, %d" % (t2, sJ, sj))
    a("s_add_u32 s%d, s%d, s%d" % (t1, t1, t2))
    a("s_lshr_b32 s%d, s%d, 4" % (t1, t1))
    a("s_mul_hi_u32 s%d, s%d, %d" % (t2, t1, -(-(1 << 32) // smod)))
    a("s_mul_i32 s%d, s%d, %d" % (t2, t2, smod))
    a("s_sub_u32 s%d, s%d, s%d" % (sRot, t1, t2))
    a("s_add_u32 s%d, s%d, 1" % (sRot, sRot))
    assert smod < uA
    a("s_mov_b32 s%d, %d" % (sM, RING - RS * UNIT))
    a("s_mov_b32 s%d, 0" % sBlk)
    a("s_mul_i32 s%d, s%d, %d" % (sOff, sRot, STEP))
    a("s_mov_b32 s%d, 0" % sMod)
    a("s_sub_u32 s%d, %d, s%d" % (sCnt, uA - 1, sRot))
    a("s_mov_b32 s%d, %d" % (sSkip, N0 // RS))
    a("s_waitcnt lgkmcnt(0)")
    a("s_sub_u32 s6, s6, %d" % BIAS)
    a("s_subb_u32 s7, s7, 0")
    a("s_sub_u32 s8, s8, %d" % BIAS)
    a("s_subb_u32 s9, s9, 0")
    a("s_add_u32 s%d, s8, s%d" % (sVlo, t0))
    a("s_addc_u32 s%d, s9, 0" % sVhi)
    srd(KV, 6, 7, t0, BH + BIAS)

    def loads():
        for i in range(3):
            a("buffer_load_dwordx4 v%d, s[%d:%d], s%d offen offset:%d nt lds" % (vOff + i, KV, KV + 3, sOff, 1024 * i))

    phase = 0
    if stamps:
        a("s_mov_b32 s63, 0")
        a("s_memtime s[94:95]")
    wins = list(range(w1 - wlim, w1 + wlim + 1)) if ctl else [w1]
    order = sorted(wins, key=lambda w: abs(w - w1))
    sWin, vWa, vWv = 61, 16, 17
    if ctl:
        a("v_mov_b32 v%d, %d" % (vWa, WIN))
        a("v_mov_b32 v%d, %d" % (vWv, w1))
    lab("L_ld")
    c("no barriers until the ring is full")
    a("s_sub_u32 s%d, s%d, 1" % (sSkip, sSkip))
    a("s_cbranch_scc0 L_ld_w%d" % order[0])
    if stamps:
        a("s_cmp_lg_u32 s63, 0")
        a("s_cbranch_scc1 L_st1")
        a("s_mov_b32 s63, 1")
        stamp(1)
        lab("L_st1")
    a("s_mov_b32 s%d, 0" % sSkip)
    if ctl:
        a("s_waitcnt lgkmcnt(0)")
        a("v_readfirstlane_b32 s%d, v%d" % (sWin, vWv))
        a("s_barrier")
        a("ds_read_b32 v%d, v%d" % (vWv, vWa))
        for w in order[1:]:
            a("s_cmp_eq_u32 s%d, %d" % (sWin, w))
            a("s_cbranch_scc1 L_ld_w%d" % w)
    else:
        a("s_barrier")
    for w in order:
        lab("L_ld_w%d" % w)
        for u in range(RS):
            slot = (phase + u) % RS
            if slot == 0:
                a("s_add_u32 s%d, s%d, %d" % (sM, sM, RS * UNIT))
                a("s_cmp_eq_u32 s%d, %d" % (sM, RING))
                a("s_cselect_b32 s%d, 0, s%d" % (sM, sM))
                a("s_mov_b32 m0, s%d" % sM)
            else:
                a("s_add_u32 m0, s%d, %d" % (sM, slot * UNIT))
            a("s_waitcnt vmcnt(%d)" % w)
            loads()
            a("s_add_u32 s%d, s%d, %d" % (sOff, sOff, STEP))
            a("s_sub_u32 s%d, s%d, 1" % (sCnt, sCnt))
            a("s_cbranch_scc1 L_ld_block_%d_%d" % (w, u))
            lab("L_ld_cont_%d_%d" % (w, u))
        a("s_branch L_ld")
    for w in order:
        for u in range(RS):
            lab("L_ld_block_%d_%d" % (w, u))
            a("s_mov_b32 s%d, %d" % (sN, order.index(w) * RS + u))
            if (w, u) != (order[-1], RS - 1):
                a("s_branch L_ld_block")
    lab("L_ld_block")
    c("end of a block of two sub-streams: skip the high one, pick the next block's shape")
    a("s_cmp_eq_u32 s%d, 2" % sMod)
    a("s_cselect_b32 s%d, 0, %d" % (t0, (ways - 1) * (skA - skB) * 384))
    a("s_add_u32 s%d, s%d, %d" % (t0, t0, (ways - 1) * skB * 384))
    a("s_add_u32 s%d, s%d, s%d" % (sOff, sOff, t0))
    a("s_add_u32 s%d, s%d, 1" % (sMod, sMod))
    a("s_cmp_eq_u32 s%d, 3" % sMod)
    a("s_cselect_b32 s%d, 0, s%d" % (sMod, sMod))
    a("s_cmp_eq_u32 s%d, 2" % sMod)
    a("s_cselect_b32 s%d, 0, %d" % (sCnt, uA - uB))
    a("s_cselect_b64 vcc, -1, 0")
    a("s_add_u32 s%d, s%d, %d" % (sCnt, sCnt, uB - 1))
    for i in range(3):
        a("v_cndmask_b32 v%d, v%d, v%d, vcc" % (vOff + i, vA + i, vB + i))
    a("s_add_u32 s%d, s%d, 1" % (sBlk, sBlk))
    a("s_cmp_eq_u32 s%d, %d" % (sBlk, NBLK))
    a("s_cbranch_scc1 L_ld_wrap")
    a("s_cmp_eq_u32 s%d, %d" % (sBlk, 2 * NBLK + 1))
    a("s_cbranch_scc1 L_ld_wrap")
    a("s_cmp_lg_u32 s%d, %d" % (sBlk, NBLK + 1))
    a("s_cbranch_scc1 L_ld_next")
    c("K done: same sequence over V")
    a("s_mov_b32 s%d, s%d" % (KV, sVlo))
    a("s_mov_b32 s%d, s%d" % (KV + 1, sVhi))
    a("s_mul_i32 s%d, s%d, %d" % (sOff, sRot, STEP))
    a("s_sub_u32 s%d, %d, s%d" % (sCnt, uA - 1, sRot))
    a("s_mov_b32 s%d, 0" % sMod)
    a("s_branch L_ld_next")
    lab("L_ld_wrap")
    a("s_mov_b32 s%d, 0" % sOff)
    a("s_sub_u32 s%d, s%d, 1" % (sCnt, sRot))
    lab("L_ld_next")
    if stamps:
        for k, bn in ((8, 1), (9, max(1, NBLK // 4)), (10, NBLK // 2), (11, NBLK + 1), (12, NBLK * 3 // 2 + 1)):
            a("s_cmp_lg_u32 s%d, %d" % (sBlk, bn))
            a("s_cbranch_scc1 L_st%d" % k)
            stamp(k)
            lab("L_st%d" % k)
    a("s_cmp_eq_u32 s%d, %d" % (sBlk, 2 * NBLK + 2))
    a("s_cbranch_scc1 L_ld_done")
    targets = [(w, u) for w in order for u in range(RS)]
    for k, (w, u) in enumerate(targets[:-1]):
        a("s_cmp_eq_u32 s%d, %d" % (sN, k))
        a("s_cbranch_scc1 L_ld_cont_%d_%d" % (w, u))
    a("s_branch L_ld_cont_%d_%d" % targets[-1])
    lab("L_ld_done")
    stamp(2)
    jdone = (1023 - N0) // RS
    for j in range(jdone + 1, NB):
        a("s_waitcnt vmcnt(%d)" % (3 * (1024 - (L0 + RS * j))))
        a("s_barrier")
    stamp(3)
    if stamps:
        a("s_memtime s[90:91]")
        a("s_waitcnt lgkmcnt(0)")
        a("s_sub_u32 s90, s90, s94")
        a("s_lshr_b32 s90, s90, 4")
        a("s_add_u32 s90, s90, s64")
        a("s_addc_u32 s91, s65, 0")
    flush_stamps([0, 1, 2, 3, 8, 9, 10, 11, 12, 13])
    a("s_endpgm")

    c("======== consumers ========")
    lab("L_consumer")
    sC, sA0, sA1, sSc, sRound, sIn, sScale = 54, 55, 56, 57, 58, 59, 60
    sOne = 62
    vL16, vAd0, vAd1, vSA, vM, vLsum, vMc = 4, 5, 6, 7, 8, 9, 10
    vS = 12
    vT = 14
    vMask = 16
    vQ = 20
    vAcc = 32
    vAop = 44
    vD = 52
    a("s_sub_u32 s%d, s%d, 1" % (sC, sW))
    a("v_lshlrev_b32 v%d, 4, v0" % vL16)
    masks(vMask, vT)
    a("s_mul_i32 s%d, s%d, %d" % (sA0, sC, 2 * UNIT))
    a("s_add_u32 s%d, s%d, %d" % (sA1, sA0, UNIT))
    a("v_lshrrev_b32 v%d, 3, v0" % vSA)
    a("v_lshlrev_b32 v%d, 3, v%d" % (vSA, vSA))
    a("s_lshl_b32 s%d, s%d, 6" % (t0, sC))
    a("s_add_u32 s%d, s%d, %d" % (t0, t0, SC))
    a("v_add_u32 v%d, s%d, v%d" % (vSA, t0, vSA))
    a("v_mov_b32 v%d, 0xff800000" % vM)
    a("v_mov_b32 v%d, 0" % vLsum)
    for i in range(12):
        a("v_mov_b32 v%d, 0" % (vAcc + i))
    vLad, vOad = 76, 77
    a("v_lshrrev_b32 v%d, 4, v0" % vLad)
    a("v_lshlrev_b32 v%d, 2, v%d" % (vLad, vLad))
    a("s_lshl_b32 s%d, s%d, 4" % (t0, sC))
    a("s_add_u32 s%d, s%d, %d" % (t0, t0, MX))
    a("v_add_u32 v%d, s%d, v%d" % (vLad, t0, vLad))
    useful_lane_offset(vOad, vT, 2, OPS)
    a("s_mul_i32 s%d, s%d, %d" % (t0, sC, 2 * OPS))
    a("s_add_u32 s%d, s%d, %d" % (t0, t0, OP))
    a("v_add_u32 v%d, s%d, v%d" % (vOad, t0, vOad))
    a("s_mov_b32 s%d, 0x01010101" % sOne)
    a("s_mov_b32 s%d, 0x01010101" % (sOne + 1))
    a("s_mov_b32 s%d, 0x%08x" % (sScale, f32bits(192 ** -0.5 * math.log2(math.e))))
    a("s_waitcnt lgkmcnt(0)")
    sNext, sPub = 64, 65
    vPa, vPo, vPv, vPw, vWin, vPr, vBo, vXo, vXv, vPa2 = 78, 79, 80, 81, 82, 83, 84, 85, 86, 87
    sOld, sRd, sTr, sInv = 66, 67, 68, 69
    if ctl:
        c("progress words of the 32 workgroups dispatched like this one (same id mod 8), one line")
        a("s_and_b32 s%d, s2, 7" % t0)
        a("s_lshl_b32 s%d, s%d, 12" % (t0, t0))
        a("s_add_u32 s%d, s%d, 0x%x" % (t0, t0, PB))
        a("v_and_b32 v%d, 31, v0" % vPa)
        a("v_lshl_add_u32 v%d, v%d, 2, s%d" % (vPa, vPa, t0))
        a("s_lshl_b32 s%d, s%d, 2" % (t1, sJ))
        a("s_add_u32 s%d, s%d, s%d" % (t0, t0, t1))
        a("v_mov_b32 v%d, s%d" % (vPo, t0))
        if g2:
            c("lane 32: this group's offset word; lanes 48-55 (on duty only): the 8 group totals")
            a("s_sub_u32 s%d, s%d, s%d" % (t0, t0, t1))
            a("s_add_u32 s%d, s%d, 128" % (t0, t0))
            a("v_mov_b32 v%d, s%d" % (vBo, t0))
            a("v_writelane_b32 v%d, s%d, 32" % (vPa, t0))
            a("s_and_b32 s%d, s2, 7" % t0)
            a("s_lshl_b32 s%d, s%d, 12" % (t0, t0))
            a("s_add_u32 s%d, s%d, 0x%x" % (t0, t0, PB + 2048))
            a("v_mov_b32 v%d, s%d" % (vXo, t0))
            a("v_and_b32 v%d, 7, v0" % vPr)
            a("v_lshlrev_b32 v%d, 12, v%d" % (vPr, vPr))
            a("v_add_u32 v%d, 0x%x, v%d" % (vPr, PB + 2048, vPr))
            a("s_mov_b32 vcc_lo, 0")
            a("s_mov_b32 vcc_hi, 0x00ff0000")
            a("v_cndmask_b32 v%d, v%d, v%d, vcc" % (vPa2, vPa, vPr))
            a("v_mov_b32 v%d, 0" % vPr)
            a("s_mov_b32 s%d, 0" % sRd)
            a("s_mov_b32 s%d, 0" % sTr)
            a("s_mov_b32 s%d, 0" % sInv)
            a("s_cmp_lg_u32 s%d, 0" % sJ)
            a("s_cbranch_scc1 L_c_norep")
            a("s_cmp_lg_u32 s%d, 1" % sC)
            a("s_cbranch_scc1 L_c_norep")
            a("s_mov_b64 exec, 1")
            a("global_store_dword v%d, v%d, s[18:19]" % (vBo, vPr))
            a("s_mov_b64 exec, -1")
            lab("L_c_norep")
        a("v_mov_b32 v%d, %d" % (vWin, WIN))
        a("v_mov_b32 v%d, %d" % (vPw, w1))
        a("v_mov_b32 v%d, 0" % vPv)
        a("s_mov_b32 s%d, 0" % sPub)
        if par:
            a("s_bitcmp1_b32 s2, 0")
            a("s_cselect_b32 s70, %d, %d" % (bias - par, bias + par))
        a("s_cmp_eq_u32 s%d, 1" % sC)
        a("s_cselect_b32 s%d, %d, 0x7fffffff" % (sNext, c0))
        a("ds_write_b32 v%d, v%d" % (vWin, vPw))
        a("s_waitcnt lgkmcnt(0)")

    def control(tag):
        if not ctl:
            return
        a("s_cmp_lt_u32 s%d, s%d" % (sRound, sNext))
        a("s_cbranch_scc1 L_c_noctl%s" % tag)
        if g2:
            a("s_waitcnt vmcnt(1)")
            a("s_cmp_eq_u32 s%d, 1" % sTr)
            a("s_cbranch_scc1 L_c_waited%s" % tag)
        a("s_waitcnt vmcnt(0)")
        if g2:
            lab("L_c_waited%s" % tag)
            a("v_mov_b32 v%d, v%d" % (vPr, vPv))
            a("s_lshl_b32 s%d, s%d, 5" % (sOld, sPub))
        a("v_subrev_u32 v%d, s%d, v%d" % (vPv, sPub, vPv))
        a("v_add_u32 v%d, 24, v%d" % (vPw, vPv))
        a("v_cmp_gt_u32 vcc, 48, v%d" % vPw)
        a("s_mov_b32 s%d, s%d" % (sPub, sRound))
        a("s_add_u32 s%d, s%d, %d" % (sNext, sRound, pp))
        a("v_cndmask_b32 v%d, 0, v%d, vcc" % (vPw, vPv))
        a("v_mov_b32 v%d, s%d" % (vPv, sPub))
        a("s_mov_b64 exec, 1")
        a("global_store_dword v%d, v%d, s[18:19] %s" % (vPo, vPv, spol))
        a("s_mov_b64 exec, -1")
        for dpp in ("quad_perm:[1,0,3,2]", "quad_perm:[2,3,0,1]", "row_half_mirror", "row_mirror"):
            a("v_add_u32_dpp v%d, v%d, v%d %s row_mask:0xf bank_mask:0xf" % (vPw, vPw, vPw, dpp))
            a("s_nop 1")
        if not g2:
            a("global_load_dword v%d, v%d, s[18:19] %s" % (vPv, vPa, lpol))
        a("v_readlane_b32 s%d, v%d, 0" % (t0, vPw))
        a("v_readlane_b32 s%d, v%d, 16" % (t1, vPw))
        a("s_nop 1")
        a("s_add_i32 s%d, s%d, s%d" % (t0, t0, t1))
        if g2:
            a("s_add_i32 s%d, s%d, s%d" % (sOld, sOld, t0))
            a("s_cmp_eq_u32 s%d, 0" % sRd)
            a("s_cbranch_scc1 L_c_noread%s" % tag)
            a("v_subrev_u32 v%d, s%d, v%d" % (vXv, sOld, vPr))
            a("v_add_u32 v%d, %d, v%d" % (vXv, b2, vXv))
            a("v_add_u32 v%d, 0x200, v%d" % (vPw, vXv))
            a("v_cmp_gt_u32 vcc, 0x400, v%d" % vPw)
            a("s_nop 1")
            a("v_cndmask_b32 v%d, 0, v%d, vcc" % (vXv, vXv))
            for dpp in ("quad_perm:[1,0,3,2]", "quad_perm:[2,3,0,1]", "row_half_mirror"):
                a("s_nop 1")
                a("v_add_u32_dpp v%d, v%d, v%d %s row_mask:0xf bank_mask:0xf" % (vXv, vXv, vXv, dpp))
            a("v_ashrrev_i32 v%d, 3, v%d" % (vXv, vXv))
            a("s_mov_b32 exec_lo, 0")
            a("s_mov_b32 exec_hi, 0x10000")
            a("global_store_dword v%d, v%d, s[18:19]" % (vBo, vXv))
            a("s_mov_b64 exec, -1")
            lab("L_c_noread%s" % tag)
            a("s_add_u32 s%d, s%d, 1" % (sInv, sInv))
            a("s_mul_i32 s%d, s%d, %d" % (t1, sJ, xs))
            a("s_add_u32 s%d, s%d, %d" % (t1, t1, xs // 2 + 2))
            a("s_sub_u32 s%d, s%d, s%d" % (t1, t1, sInv))
            a("s_and_b32 s%d, s%d, %d" % (t1, t1, 32 * xs - 1))
            a("s_cselect_b32 s%d, 0, 1" % sRd)
            a("s_cbranch_scc0 L_c_duty%s" % tag)
            a("global_load_dword v%d, v%d, s[18:19] %s" % (vPv, vPa, lpol))
            a("s_branch L_c_loaded%s" % tag)
            lab("L_c_duty%s" % tag)
            a("global_load_dword v%d, v%d, s[18:19] %s" % (vPv, vPa2, lpol))
            lab("L_c_loaded%s" % tag)
            a("s_xor_b32 s%d, s%d, s%d" % (t1, sInv, sJ))
            a("s_and_b32 s%d, s%d, 31" % (t1, t1))
            a("s_cselect_b32 s%d, 0, 1" % sTr)
            a("s_cbranch_scc1 L_c_nopub%s" % tag)
            a("v_mov_b32 v%d, s%d" % (vXv, sOld))
            a("s_mov_b64 exec, 1")
            a("global_store_dword v%d, v%d, s[18:19] sc1" % (vXo, vXv))
            a("s_mov_b64 exec, -1")
            lab("L_c_nopub%s" % tag)
            a("v_readlane_b32 s%d, v%d, 32" % (t1, vPr))
            a("s_nop 1")
            a("s_add_u32 s%d, s%d, 0x200" % (t2, t1))
            a("s_cmp_lt_u32 s%d, 0x400" % t2)
            a("s_cselect_b32 s%d, s%d, 0" % (t1, t1))
            a("s_mul_i32 s%d, s%d, %d" % (t1, t1, g2))
            a("s_ashr_i32 s%d, s%d, 4" % (t1, t1))
            a("s_add_i32 s%d, s%d, s%d" % (t0, t0, t1))
        if par:
            a("s_add_i32 s%d, s%d, s70" % (t0, t0))
        else:
            a("s_add_i32 s%d, s%d, %d" % (t0, t0, bias))
        a("s_mul_i32 s%d, s%d, %d" % (t0, t0, gain))
        a("s_add_i32 s%d, s%d, 2048" % (t0, t0))
        a("s_ashr_i32 s%d, s%d, 12" % (t0, t0))
        a("s_max_i32 s%d, s%d, %d" % (t0, t0, -wlim))
        a("s_min_i32 s%d, s%d, %d" % (t0, t0, wlim))
        a("s_add_i32 s%d, s%d, %d" % (t0, t0, w1))
        a("v_mov_b32 v%d, s%d" % (vPw, t0))
        a("ds_write_b32 v%d, v%d" % (vWin, vPw))
        lab("L_c_noctl%s" % tag)

    a("s_barrier")
    a("v_and_b32 v%d, 7, v0" % vT)
    a("v_lshlrev_b32 v%d, 4, v%d" % (vT, vT))
    a("v_add_u32 v%d, %d, v%d" % (vT, Q, vT))
    for i in range(3):
        a("ds_read_b128 v[%d:%d], v%d offset:%d" % (vQ + 4 * i, vQ + 4 * i + 3, vT, 128 * i))
    a("s_mov_b32 s%d, 0" % sRound)
    a("s_mov_b32 s%d, 1" % sIn)
    a("s_mov_b32 s%d, 0" % sSc)

    def data_reads():
        a("v_add_u32 v%d, s%d, v%d" % (vAd0, sA0, vL16))
        a("v_add_u32 v%d, s%d, v%d" % (vAd1, sA1, vL16))
        for u, ad in ((0, vAd0), (1, vAd1)):
            for i in range(3):
                r = vD + 12 * u + 4 * i
                a("ds_read_b128 v[%d:%d], v%d offset:%d" % (r, r + 3, ad, 1024 * i))
        for s in (sA0, sA1):
            a("s_add_u32 s%d, s%d, %d" % (s, s, RS * UNIT))
            a("s_cmp_ge_u32 s%d, %d" % (s, RING))
            a("s_cselect_b32 s%d, %d, 0" % (t0, RING))
            a("s_sub_u32 s%d, s%d, s%d" % (s, s, t0))

    lab("L_c_k")
    data_reads()
    for u in range(2):
        for i in range(3):
            a("s_waitcnt lgkmcnt(%d)" % (5 - 3 * u - i))
            for k in range(4):
                src = "0" if (i == 0 and k == 0) else "v%d" % (vS + u)
                a("v_dot2_f32_bf16 v%d, v%d, v%d, %s" % (vS + u, vD + 12 * u + 4 * i + k, vQ + 4 * i + k, src))
    for step, dpp in enumerate(("quad_perm:[1,0,3,2]", "quad_perm:[2,3,0,1]", "row_half_mirror")):
        a("v_add_f32_dpp v%d, v%d, v%d %s row_mask:0xf bank_mask:0xf" % (vS, vS, vS, dpp))
        a("s_nop %d" % (1 if step == 0 else 0))
        a("v_add_f32_dpp v%d, v%d, v%d %s row_mask:0xf bank_mask:0xf" % (vS + 1, vS + 1, vS + 1, dpp))
    a("s_add_u32 s%d, s%d, 1" % (sSc, sSc))
    a("v_max3_f32 v%d, v%d, v%d, v%d" % (vM, vM, vS, vS + 1))
    a("s_mov_b64 exec, s[%d:%d]" % (sOne, sOne + 1))
    a("ds_write_b64 v%d, v[%d:%d]" % (vSA, vS, vS + 1))
    a("s_mov_b64 exec, -1")
    a("v_add_u32 v%d, 128, v%d" % (vSA, vSA))
    a("s_cmp_eq_u32 s%d, 128" % sSc)
    a("s_cbranch_scc1 L_c_kdone")
    a("s_sub_u32 s%d, s%d, 1" % (sIn, sIn))
    a("s_cmp_lg_u32 s%d, 0" % sIn)
    a("s_cbranch_scc1 L_c_k")
    a("s_add_u32 s%d, s%d, 1" % (sRound, sRound))
    control("k")
    a("s_cmp_lt_u32 s%d, %d" % (sRound, 1 + ndouble))
    a("s_cselect_b32 s%d, 2, 1" % sIn)
    a("s_barrier")
    a("s_branch L_c_k")
    lab("L_c_kdone")
    assert 1 + 2 * ndouble < 128
    c("exact row max over all 4096 scores, shared through LDS")
    a("s_nop 1")
    a("v_max_f32_dpp v%d, v%d, v%d row_ror:8 row_mask:0xf bank_mask:0xf" % (vM, vM, vM))
    a("ds_write_b32 v%d, v%d" % (vLad, vM))
    a("s_add_u32 s%d, s%d, 1" % (sRound, sRound))
    a("v_subrev_u32 v%d, %d, v%d" % (vSA, 16384, vSA))
    a("s_waitcnt lgkmcnt(0)")
    a("s_barrier")
    a("v_mov_b32 v%d, %d" % (vT, MX))
    a("ds_read_b128 v[%d:%d], v%d" % (vAop, vAop + 3, vT))
    a("ds_read_b128 v[%d:%d], v%d offset:16" % (vAop + 4, vAop + 7, vT))
    a("s_waitcnt lgkmcnt(0)")
    a("v_max3_f32 v%d, v%d, v%d, v%d" % (vM, vAop, vAop + 1, vAop + 2))
    a("v_max3_f32 v%d, v%d, v%d, v%d" % (vM, vM, vAop + 3, vAop + 4))
    a("v_max3_f32 v%d, v%d, v%d, v%d" % (vM, vM, vAop + 5, vAop + 6))
    a("v_max_f32 v%d, v%d, v%d" % (vM, vM, vAop + 7))
    a("v_mul_f32 v%d, s%d, v%d" % (vMc, sScale, vM))
    a("s_mov_b32 s%d, 0" % sSc)
    lab("L_c_v")
    a("ds_read_b64 v[%d:%d], v%d" % (vS, vS + 1, vSA))
    data_reads()
    a("v_add_u32 v%d, 128, v%d" % (vSA, vSA))
    a("s_waitcnt lgkmcnt(6)")
    a("v_fma_f32 v%d, v%d, s%d, -v%d" % (vS, vS, sScale, vMc))
    a("v_fma_f32 v%d, v%d, s%d, -v%d" % (vS + 1, vS + 1, sScale, vMc))
    a("v_exp_f32 v%d, v%d" % (vS, vS))
    a("v_exp_f32 v%d, v%d" % (vS + 1, vS + 1))
    a("s_add_u32 s%d, s%d, 1" % (sSc, sSc))
    a("v_cvt_pk_bf16_f32 v%d, v%d, v%d" % (vT, vS, vS))
    a("v_cvt_pk_bf16_f32 v%d, v%d, v%d" % (vT + 1, vS + 1, vS + 1))
    for u in range(2):
        for j in range(4):
            a("v_and_b32 v%d, v%d, v%d" % (vAop + 4 * u + j, vMask + j, vT + u))
    a("v_add_f32 v%d, v%d, v%d" % (vLsum, vLsum, vS))
    a("v_add_f32 v%d, v%d, v%d" % (vLsum, vLsum, vS + 1))
    for u in range(2):
        for i in range(3):
            a("s_waitcnt lgkmcnt(%d)" % (5 - 3 * u - i))
            r = vD + 12 * u + 4 * i
            a("v_mfma_f32_16x16x32_bf16 v[%d:%d], v[%d:%d], v[%d:%d], v[%d:%d]" % (
                vAcc + 4 * i, vAcc + 4 * i + 3, vAop + 4 * u, vAop + 4 * u + 3, r, r + 3, vAcc + 4 * i, vAcc + 4 * i + 3))
    a("s_cmp_eq_u32 s%d, 128" % sSc)
    a("s_cbranch_scc1 L_c_vdone")
    if ctl:
        a("s_add_u32 s%d, s%d, 1" % (sRound, sRound))
        control("v")
    a("s_barrier")
    a("s_branch L_c_v")
    lab("L_c_vdone")
    c("publish the unnormalised o partials (bf16) and the weight sums")
    a("v_add_f32_dpp v%d, v%d, v%d row_ror:8 row_mask:0xf bank_mask:0xf" % (vLsum, vLsum, vLsum))
    a("ds_write_b32 v%d, v%d offset:%d" % (vLad, vLsum, LS - MX))
    set_useful_exec()
    a("s_nop 1")
    for i in range(3):
        a("v_cvt_pk_bf16_f32 v%d, v%d, v%d" % (vD + 2 * i, vAcc + 4 * i, vAcc + 4 * i + 1))
        a("v_cvt_pk_bf16_f32 v%d, v%d, v%d" % (vD + 2 * i + 1, vAcc + 4 * i + 2, vAcc + 4 * i + 3))
        a("ds_write_b64 v%d, v[%d:%d] offset:%d" % (vOad, vD + 2 * i, vD + 2 * i + 1, 128 * i))
    a("s_waitcnt lgkmcnt(0)")
    a("s_barrier")
    a("s_endpgm")

    c("======== holders ========")
    lab("L_holder")
    sHj, sO, sTag, sTk, sLoop, sTry = 54, 55, 56, 57, 58, 59
    sPlo, sPhi = 60, 61
    vWq, vWo, vY, vTmp = 4, 5, 6, 7
    vX = 8
    vTag = 28
    blk = lambda k: 32 + 32 * k
    a("s_sub_u32 s%d, s%d, 3" % (sHj, sW))
    a("s_mov_b32 s%d, 0x05040100" % sPlo)
    a("s_mov_b32 s%d, 0x07060302" % sPhi)
    a("s_cmp_lg_u32 s%d, %d" % (sHj, qw))
    a("s_cbranch_scc1 L_h_setup")
    c("q projection, shared by the 8 workgroups of the head: workgroup b < 6 multiplies x (all 8 rows) by")
    c("rows [320*(b/3), +320) x columns [64*(b%3), +64) of the head's wq slice and sends each row to its owner")
    a("v_and_b32 v1, 7, v0")
    a("v_bfe_u32 v2, v0, 3, 1")
    a("v_lshrrev_b32 v3, 4, v0")
    a("v_lshl_add_u32 v29, v2, 2, v3")
    a("v_mul_u32_u24 v%d, %d, v29" % (vWq, 12288 if dbg & 1 else 8 * 12288))
    a("v_lshl_add_u32 v%d, v1, 4, v%d" % (vWq, vWq))
    a("v_mul_u32_u24 v30, 1280, v1")
    a("v_lshl_add_u32 v30, v29, 4, v30")
    a("v_lshlrev_b32 v31, 11, v1")
    a("s_cmp_ge_u32 s%d, 3" % sB)
    a("s_cselect_b32 s%d, 320, 0" % t2)
    a("s_cselect_b32 s%d, 3, 0" % t3)
    a("s_sub_u32 s%d, s%d, s%d" % (t3, sB, t3))
    a("s_mul_i32 s%d, s%d, 12288" % (sO, t2))
    a("s_lshl_b32 s%d, s%d, 7" % (t3, t3))
    a("s_add_u32 s%d, s%d, s%d" % (sO, sO, t3))
    if dbg & 2:
        a("s_mul_i32 s%d, s%d, %d" % (sO, sB, 104 * 12288))
    a("s_lshl_b32 s%d, s%d, 1" % (t2, t2))
    a("s_mul_i32 s%d, s%d, 384" % (t0, sH))
    a("s_lshl_b32 s%d, s%d, 14" % (t1, sH))
    a("s_add_u32 s%d, s%d, 0x%x" % (t1, t1, QB))
    a("s_waitcnt lgkmcnt(0)")
    srd(YS, 18, 19, t1, 16384)
    a("buffer_load_dword v%d, v31, s[%d:%d], 0 offen offset:1536 sc1" % (vTag, YS, YS + 3))
    a("s_cmp_ge_u32 s%d, 6" % sB)
    a("s_cbranch_scc1 L_q_tag")
    srd(WQ, 10, 11, t0, "s_sub_u32 s%%d, 7864320, s%d" % t0)
    a("s_mov_b32 s%d, s4" % XS)
    a("s_mov_b32 s%d, s5" % (XS + 1))
    a("s_mov_b32 s%d, 10240" % (XS + 2))
    a("s_mov_b32 s%d, 0x20000" % (XS + 3))
    for rb in range(5):
        for i in range(8):
            r = blk(rb + 1) + 4 * i
            a("buffer_load_dwordx4 v[%d:%d], v%d, s[%d:%d], s%d offen %s" % (r, r + 3, vWq, WQ, WQ + 3, sO, wqpol))
            if dbg & 2:
                a("s_add_u32 s%d, s%d, %d" % (sO, sO, 128 if (rb * 8 + i) % 3 < 2 else 8 * 12288 - 256))
            else:
                a("s_add_u32 s%d, s%d, %d" % (sO, sO, 8 * 12288 if dbg & 1 else (12288 if i < 7 else 57 * 12288)))
        a("buffer_load_dwordx4 v[%d:%d], v30, s[%d:%d], s%d offen offset:%d" % (vX + 4 * rb, vX + 4 * rb + 3, XS, XS + 3, t2, 128 * rb))
    a("v_lshl_add_u32 v31, v29, 4, v31")
    a("s_lshl_b32 s%d, s%d, 8" % (sO, sB))
    qacc = blk(6)

    def transpose(dst, src, col):
        for p in range(4):
            a("v_perm_b32 v%d, v%d, v%d, s%d" % (dst + 4 * col + p, src + 4 * (2 * p + 1) + col // 2, src + 4 * (2 * p) + col // 2, sPhi if col % 2 else sPlo))

    for rb in range(5):
        a("s_waitcnt vmcnt(%d)" % (9 * (4 - rb)))
        transpose(blk(0), blk(rb + 1), 0)
        for col in range(8):
            if col < 7:
                transpose(blk(0), blk(rb + 1), col + 1)
            else:
                a("s_nop 0")
            d = qacc + 4 * col
            srcc = "0" if rb == 0 else "v[%d:%d]" % (d, d + 3)
            a("v_mfma_f32_16x16x32_bf16 v[%d:%d], v[%d:%d], v[%d:%d], %s" % (d, d + 3, blk(0) + 4 * col, blk(0) + 4 * col + 3, vX + 4 * rb, vX + 4 * rb + 3, srcc))
    a("v_add_u32 v%d, 0x01010101, v%d" % (vTag, vTag))
    for r in range(4):
        a("s_mov_b32 s%d, 0x%08x" % (t0 + r, 0x07060500 + r))
    a("s_nop 3")
    c("add the two 32-row halves; lanes 0-7 / 8-15 of each row end up with even / odd columns")
    for col in range(4):
        for r in range(4):
            a("v_permlane32_swap_b32 v%d, v%d" % (qacc + 4 * col + r, qacc + 4 * (col + 4) + r))
    for st in range(2):
        for r in range(4):
            t = vX + 4 * st + r
            a("v_add_f32_dpp v%d, v%d, v%d row_ror:8 row_mask:0xf bank_mask:0x3" % (t, qacc + 4 * (2 * st + 4) + r, qacc + 4 * (2 * st) + r))
            a("v_add_f32_dpp v%d, v%d, v%d row_ror:8 row_mask:0xf bank_mask:0xc" % (t, qacc + 4 * (2 * st + 1) + r, qacc + 4 * (2 * st + 5) + r))
    c("the low byte of each word carries one byte of the receiver's tag for this launch")
    for st in range(2):
        for r in range(4):
            t = vX + 4 * st + r
            a("v_perm_b32 v%d, v%d, v%d, s%d" % (t, t, vTag, t0 + r))
        a("buffer_store_dwordx4 v[%d:%d], v31, s[%d:%d], s%d offen offset:%d sc1" % (vX + 4 * st, vX + 4 * st + 3, YS, YS + 3, sO, 128 * st))
    a("s_branch L_q_gather")
    lab("L_q_tag")
    a("s_waitcnt vmcnt(0)")
    a("v_add_u32 v%d, 0x01010101, v%d" % (vTag, vTag))
    lab("L_q_gather")
    stamp(4)
    a("v_lshlrev_b32 v1, 4, v0")
    a("v_readlane_b32 s%d, v%d, s%d" % (sTag, vTag, sB))
    a("s_lshl_b32 s%d, s%d, 11" % (sO, sB))
    a("s_mov_b32 s%d, 0" % sTry)
    a("s_mov_b32 s%d, 0x0c0c0400" % t0)
    a("s_mov_b32 s%d, 0x04000c0c" % t1)
    a("s_mov_b32 s%d, 0x07060500" % t2)
    a("s_mov_b32 exec_hi, 0xffff")
    GA, GB = 16, 20
    lab("L_q_poll")
    a("buffer_load_dwordx4 v[%d:%d], v1, s[%d:%d], s%d offen sc1" % (GA, GA + 3, YS, YS + 3, sO))
    a("buffer_load_dwordx4 v[%d:%d], v1, s[%d:%d], s%d offen offset:768 sc1" % (GB, GB + 3, YS, YS + 3, sO))
    a("s_add_u32 s%d, s%d, 1" % (sTry, sTry))
    a("s_waitcnt vmcnt(0)")
    for g, t in ((GA, 24), (GB, 26)):
        a("v_perm_b32 v%d, v%d, v%d, s%d" % (t, g + 1, g, t0))
        a("v_perm_b32 v%d, v%d, v%d, s%d" % (t + 1, g + 3, g + 2, t1))
        a("v_or_b32 v%d, v%d, v%d" % (t, t, t + 1))
    a("v_xor_b32 v24, s%d, v24" % sTag)
    a("v_xor_b32 v26, s%d, v26" % sTag)
    a("v_or_b32 v24, v24, v26")
    a("v_cmp_ne_u32 vcc, 0, v24")
    a("s_cbranch_vccz L_q_got")
    if sleep:
        a("s_sleep %d" % sleep)
    a("s_cmp_lt_u32 s%d, 0x100000" % sTry)
    a("s_cbranch_scc1 L_q_poll")
    lab("L_q_got")
    a("v_mov_b32 v24, 0x80")
    a("v_lshrrev_b32 v2, 4, v0")
    a("v_lshlrev_b32 v2, 6, v2")
    a("v_and_b32 v3, 1, v0")
    a("v_lshl_add_u32 v2, v3, 5, v2")
    a("v_bfe_u32 v3, v0, 2, 2")
    a("v_add_u32 v2, v2, v3")
    a("v_bfe_u32 v3, v0, 1, 1")
    a("v_lshl_add_u32 v2, v3, 2, v2")
    a("v_lshlrev_b32 v2, 1, v2")
    a("v_add_u32 v2, %d, v2" % Q)
    for r in range(8):
        a("v_perm_b32 v%d, v%d, v24, s%d" % (GA + r, GA + r, t2))
    for r in range(4):
        a("v_add_f32 v%d, v%d, v%d" % (GA + r, GA + r, GB + r))
    a("v_cvt_pk_bf16_f32 v%d, v%d, v%d" % (GA, GA, GA + 1))
    a("v_cvt_pk_bf16_f32 v%d, v%d, v%d" % (GA + 2, GA + 2, GA + 3))
    a("ds_write_b16 v2, v%d" % GA)
    a("ds_write_b16_d16_hi v2, v%d offset:16" % GA)
    a("ds_write_b16 v2, v%d offset:32" % (GA + 2))
    a("ds_write_b16_d16_hi v2, v%d offset:48" % (GA + 2))
    c("all six senders have read this workgroup's tag word: advance it for the next launch")
    a("v_mov_b32 v3, s%d" % sTag)
    a("s_mov_b64 exec, 1")
    a("buffer_store_dword v3, v1, s[%d:%d], s%d offen offset:1536 sc1" % (YS, YS + 3, sO))
    a("s_mov_b64 exec, -1")
    stamp(14)
    lab("L_h_setup")
    a("s_mul_i32 s%d, s%d, 1280" % (t1, sB))
    a("s_waitcnt lgkmcnt(0)")
    srd(OS, 14, 15, t1, 1280)
    a("s_mul_i32 s%d, s%d, 245760" % (t0, sH))
    srd(WO, 12, 13, t0, 245760)
    a("s_mul_i32 s%d, s%d, 81920" % (t0, sB))
    srd(YS, 18, 19, t0, 81920)
    c("addresses for wo and for this wave's part of the y hand-off buffer")
    a("v_lshrrev_b32 v1, 4, v0")
    a("v_and_b32 v2, 15, v0")
    a("v_mul_u32_u24 v%d, 10240, v1" % vWo)
    a("v_lshl_add_u32 v%d, v2, 4, v%d" % (vWo, vWo))
    a("s_lshl_b32 s%d, s%d, 8" % (t0, sHj))
    a("v_add_u32 v%d, s%d, v%d" % (vWo, t0, vWo))
    a("s_lshl_b32 s%d, s%d, 14" % (t0, sHj))
    a("s_lshl_b32 s%d, s%d, 9" % (t1, sH))
    a("s_add_u32 s%d, s%d, s%d" % (t0, t0, t1))
    a("v_lshlrev_b32 v%d, 4, v0" % vY)
    a("v_add_u32 v%d, s%d, v%d" % (vY, t0, vY))
    a("s_waitcnt lgkmcnt(0)")
    a("s_barrier")
    nb = 1

    def idle(n):
        if n <= 0:
            return
        if n <= 2:
            for _ in range(n):
                a("s_barrier")
            return
        name = "L_h_idle%d" % len(L)
        a("s_mov_b32 s%d, %d" % (sLoop, n))
        lab(name)
        a("s_barrier")
        a("s_sub_u32 s%d, s%d, 1" % (sLoop, sLoop))
        a("s_cmp_lg_u32 s%d, 0" % sLoop)
        a("s_cbranch_scc1 %s" % name)

    c("mark this wave's hand-off slot empty")
    for i in range(4):
        a("v_mov_b32 v%d, -1" % (8 + i))
    a("s_mov_b32 exec_hi, 0")
    if dbg & 8 == 0:
        a("buffer_store_dwordx4 v[8:11], v%d, s[%d:%d], 0 offen %s" % (vY, YS, YS + 3, "sc1"))
    a("s_mov_b64 exec, -1")
    idle(wo_r0)
    nb += wo_r0
    n = 0
    while n < 48:
        for _ in range(wo_k):
            ks, i = divmod(n, 8)
            if i % 4 == 0:
                a("s_mov_b32 s%d, %d" % (sO, ks * 40960 + (i // 4) * 5120))
            r = blk(ks + 1) + 4 * i
            if dbg & 128 == 0:
                a("buffer_load_dwordx4 v[%d:%d], v%d, s[%d:%d], s%d offen offset:%d %s" % (r, r + 3, vWo, WO, WO + 3, sO, (i % 4) * 1280, wopol))
            n += 1
        a("s_barrier")
        nb += 1
    idle(8)
    nb += 8
    a("s_waitcnt vmcnt(0)")
    c("transpose each 8x8 block in place of the previous one: 8 rows x 8 columns -> 8 columns x 8 rows")
    for ks in range(6):
        src, dst = blk(ks + 1), blk(ks)
        for col in range(8):
            transpose(dst, src, col)
        a("s_barrier")
        nb += 1
    a("v_and_b32 v1, 3, v0")
    a("v_mul_u32_u24 v1, %d, v1" % OPS)
    a("v_lshrrev_b32 v2, 4, v0")
    a("v_lshl_add_u32 v1, v2, 4, v1")
    a("v_add_u32 v1, %d, v1" % OP)
    a("v_mov_b32 v2, %d" % LS)
    a("s_lshl_b32 s%d, s%d, %d" % (t0, sB, tshift))
    a("v_mov_b32 v3, s%d" % t0)
    a("v_mov_b32 v%d, 1" % vTmp)
    last = 31 if dbg & 56 == 0 else 1000
    a("v_lshlrev_b32 v%d, 4, v0" % vWq)
    a("s_lshl_b32 s%d, s%d, 14" % (sO, sHj))
    a("s_add_u32 s%d, s%d, 4096" % (t1, sO))
    a("s_add_u32 s%d, s%d, 8192" % (t2, sO))
    a("s_add_u32 s%d, s%d, 12288" % (t3, sO))
    a("s_mov_b32 s%d, 0" % sTry)
    a("s_lshr_b32 s%d, s%d, 1" % (sTag, sH))
    a("s_lshl_b32 s%d, s%d, 2" % (sTag, sTag))
    a("s_bitcmp1_b32 s%d, 0" % sH)
    a("s_cselect_b32 s%d, 0, -1" % sPlo)
    a("s_cselect_b32 s%d, -1, 0" % sPhi)
    idle(NB - hint - nb)
    nb = NB - hint
    c("arrival ticket of this batch row: the last arriver sums the row; every slot is marked empty by then")
    a("s_cmp_lg_u32 s%d, 0" % sHj)
    a("s_cbranch_scc1 L_h_noticket")
    a("s_mov_b64 exec, 1")
    if dbg & 32 == 0:
        a("global_atomic_add v%d, v3, v%d, s[16:17] sc0 sc1" % (vTmp, vTmp))
    a("s_mov_b64 exec, -1")
    lab("L_h_noticket")
    idle(hint)
    a("s_cmp_lg_u32 s%d, 0" % sHj)
    a("s_cbranch_scc1 L_h_noshare")
    a("s_waitcnt vmcnt(0)")
    a("s_mov_b64 exec, 1")
    a("ds_write_b32 v2, v%d offset:32" % vTmp)
    a("s_mov_b64 exec, -1")
    a("s_waitcnt lgkmcnt(0)")
    lab("L_h_noshare")
    a("s_barrier")
    stamp(5)
    oacc = blk(6)
    G = blk(0)
    a("ds_read_b32 v%d, v2 offset:32" % vTmp)
    for ks in range(6):
        a("ds_read_b128 v[%d:%d], v1 offset:%d" % (8 + 4 * ks, 11 + 4 * ks, 64 * ks))

    def gather():
        for k in range(16):
            so = (sO, t1, t2, t3)[k // 4]
            a("buffer_load_dwordx4 v[%d:%d], v%d, s[%d:%d], s%d offen offset:%d sc1" % (G + 4 * k, G + 4 * k + 3, vWq, YS, YS + 3, so, 1024 * (k % 4)))

    for ks in range(6):
        a("s_waitcnt lgkmcnt(%d)" % (5 - ks))
        if ks == 0:
            a("v_readfirstlane_b32 s%d, v%d" % (sTk, vTmp))
        for col in range(8):
            r = blk(ks) + 4 * col
            srcc = "0" if ks == 0 else "v[%d:%d]" % (oacc + 4 * col, oacc + 4 * col + 3)
            a("v_mfma_f32_16x16x32_bf16 v[%d:%d], v[%d:%d], v[%d:%d], %s" % (oacc + 4 * col, oacc + 4 * col + 3, 8 + 4 * ks, 11 + 4 * ks, r, r + 3, srcc))
        if ks == 1:
            a("ds_read_b128 v[8:11], v2")
            a("ds_read_b128 v[12:15], v2 offset:16")
            if pregather:
                c("the last-arriving workgroup starts fetching the other heads' rows")
                a("s_cmp_lg_u32 s%d, %d" % (sTk, last))
                a("s_cbranch_scc1 L_h_nogather")
                gather()
                lab("L_h_nogather")
        if ks == 4:
            a("s_waitcnt lgkmcnt(0)")
            a("v_add_f32 v8, v8, v9")
            a("v_add_f32 v10, v10, v11")
            a("v_add_f32 v12, v12, v13")
            a("v_add_f32 v14, v14, v15")
            a("v_add_f32 v8, v8, v10")
            a("v_add_f32 v12, v12, v14")
            a("v_add_f32 v8, v8, v12")
            a("v_rcp_f32 v9, v8")
            a("s_nop 0")
            a("v_fma_f32 v10, -v8, v9, 1.0")
            a("v_fma_f32 v9, v10, v9, v9")
    for col in range(8):
        r = oacc + 4 * col
        if col == 0:
            a("s_cmp_eq_u32 s%d, %d" % (sTk, last))
        a("v_add_f32 v%d, v%d, v%d" % (r, r, r + 1))
        a("v_add_f32 v%d, v%d, v%d" % (r + 2, r + 2, r + 3))
        a("v_add_f32 v%d, v%d, v%d" % (r, r, r + 2))
        a("v_mul_f32 v%d, v9, v%d" % (16 + col, r))
        a("v_min_u32 v%d, -2, v%d" % (16 + col, 16 + col))
    if pregather:
        a("s_cbranch_scc1 L_r_own")
    a("s_mov_b64 exec, 0xffff")
    if dbg & 16 == 0:
        a("buffer_store_dwordx4 v[16:19], v%d, s[%d:%d], 0 offen sc1" % (vY, YS, YS + 3))
        a("buffer_store_dwordx4 v[20:23], v%d, s[%d:%d], 0 offen offset:256 sc1" % (vY, YS, YS + 3))
    a("s_mov_b64 exec, -1")
    stamp(6)
    c("in the last-arriving workgroup each wave sums its 128 columns over the 32 heads, in head order")
    if pregather:
        a("s_branch L_h_done")
        lab("L_r_own")
        stamp(6)
        a("s_mov_b32 vcc_lo, 0xffff0000")
        a("s_mov_b32 vcc_hi, 0xffff0000")
        for i in range(4):
            a("v_cndmask_b32 v%d, v%d, v%d, vcc" % (16 + i, 16 + i, 20 + i))
        a("s_branch L_r_wait")
        lab("L_r_poll")
        gather()
        lab("L_r_wait")
        a("s_waitcnt vmcnt(0)")
        a("s_mov_b64 exec, s[%d:%d]" % (sPlo, sPhi))
        a("s_set_gpr_idx_on s%d, gpr_idx(DST)" % sTag)
        for i in range(4):
            a("v_mov_b32 v%d, v%d" % (G + i, 16 + i))
        a("s_set_gpr_idx_off")
        a("s_mov_b64 exec, -1")
        for k in range(1, 16):
            for i in range(4):
                a("v_add_f32 v%d, v%d, v%d" % (8 + i, G + i if k == 1 else 8 + i, G + 4 * k + i))
    else:
        a("s_cbranch_scc0 L_h_done")
        lab("L_r_poll")
        gather()
        for k in range(1, 16):
            a("s_waitcnt vmcnt(%d)" % (15 - k))
            for i in range(4):
                a("v_add_f32 v%d, v%d, v%d" % (8 + i, G + i if k == 1 else 8 + i, G + 4 * k + i))
    a("v_cmp_u_f32 vcc, v8, v9")
    a("v_cmp_u_f32 s[62:63], v10, v11")
    a("s_nop 1")
    a("s_or_b64 vcc, vcc, s[62:63]")
    a("s_cbranch_vccz L_r_sum")
    c("a NaN sum: either an empty slot (poll again) or a NaN in the data")
    a("v_max3_u32 v12, v%d, v%d, v%d" % (G, G + 1, G + 2))
    for k in range(3, 63, 2):
        a("v_max3_u32 v12, v12, v%d, v%d" % (G + k, G + k + 1))
    a("v_max_u32 v12, v12, v%d" % (G + 63))
    a("v_cmp_eq_u32 vcc, -1, v12")
    a("s_add_u32 s%d, s%d, 1" % (sTry, sTry))
    a("s_cbranch_vccz L_r_sum")
    a("s_cmp_lt_u32 s%d, 0x100000" % sTry)
    a("s_cbranch_scc1 L_r_poll")
    lab("L_r_sum")
    for i in range(4):
        a("v_mov_b32 v%d, v%d" % (12 + i, 8 + i))
    a("v_and_b32 v2, 15, v0")
    a("v_bfe_u32 v3, v0, 4, 1")
    for i in range(4):
        a("v_permlane32_swap_b32 v%d, v%d" % (8 + i, 12 + i))
    a("v_lshlrev_b32 v2, 4, v2")
    a("v_lshl_add_u32 v2, v3, 3, v2")
    for i in range(4):
        a("v_add_f32 v%d, v%d, v%d" % (8 + i, 8 + i, 12 + i))
    a("s_lshl_b32 s%d, s%d, 8" % (t0, sHj))
    a("v_cvt_pk_bf16_f32 v8, v8, v9")
    a("v_cvt_pk_bf16_f32 v9, v10, v11")
    a("s_mov_b32 exec_hi, 0")
    a("buffer_store_dwordx2 v[8:9], v2, s[%d:%d], s%d offen" % (OS, OS + 3, t0))
    a("s_mov_b64 exec, -1")
    lab("L_h_done")
    if stamps:
        a("s_waitcnt vmcnt(0)")
        stamp(7)
        a("s_cmp_lg_u32 s%d, %d" % (sHj, qw))
        a("s_cbranch_scc1 L_end")
        flush_stamps([4, 5, 6, 7, 14])
    lab("L_end")
    a("s_endpgm")
    return HEADER.format(lds=LDS, name=NAME) + "\n".join(L) + FOOTER.format(name=NAME)


if __name__ == "__main__":
    spec = json.loads(sys.argv[1])
    names = []
    for cfg in spec:
        cfg = dict(cfg)
        out = cfg.pop("out", None)
        name = out or ("work/k_" + "_".join("%s%s" % (k, str(v).replace(" ", "")) for k, v in cfg.items()) + ".s")
        open("code/" + name, "w").write(gen(**cfg))
        names.append(name)
    print(" ".join(names))
```

```python
import json
import math
import struct
import sys

NAME = "standalone__mha_block_cached__sampling_kernel"

HEADER = """; Kernarg layout for this problem (64 bytes, ptrs only, base s[0:1]):
; @launch grid=(256,1,1) block=(512,1,1) lds={lds}
.amdgcn_target "amdgcn-amd-amdhsa--gfx950"
.text
.globl {name}
.p2align 8
.type {name},@function
{name}:
"""
FOOTER = """
.section .rodata,"a"
.p2align 6
.amdhsa_kernel {name}
  .amdhsa_next_free_vgpr 256
  .amdhsa_next_free_sgpr 96
  .amdhsa_accum_offset 256
  .amdhsa_group_segment_fixed_size 0
  .amdhsa_kernarg_size 64
  .amdhsa_user_sgpr_count 2
  .amdhsa_user_sgpr_kernarg_segment_ptr 1
  .amdhsa_system_sgpr_workgroup_id_x 1
  .amdhsa_float_denorm_mode_32 3
.end_amdhsa_kernel
"""

BH = 1572864
UNIT = 3072
RS = 4
TU = 8
NM = 1024 - TU
MFMA = "v_mfma_f32_16x16x32_bf16"


def f32bits(x):
    return struct.unpack("<I", struct.pack("<f", x))[0]


def gen(w1=18, NSLOT=44, wo_r0=14, wo_k=1, stamps=0, wqpol="nt", wopol="", prio=3, sleep=16, rsleep=8,
        ctl=1, pp=3, gain=112, bias=24, wlim=2, c0=12, skA=172, skB=168, wt=19, dbg=0, rpol="sc1", ypol="sc1", qpol="sc1", r0sleep=0, depth=2, thr=24, ybar=1, w0=0, n0=2, opol="", g2=12, mp=3, mpub=3, mend=12, sglc="glc", b2=-64, mmin=0, mhi=256, pb=4):
    L = []

    def a(s):
        L.append("    " + s)

    def lab(s):
        L.append(s + ":")

    def c(s):
        L.append("    ; " + s)

    def q4(r):
        return "v[%d:%d]" % (r, r + 3)

    def s4(r):
        return "s[%d:%d]" % (r, r + 3)

    RING = NSLOT * UNIT
    SC = RING
    MISC = SC + 16384
    Q = MISC
    MX = MISC + 384
    LS = MISC + 416
    WIN = MISC + 448
    MTOT = MISC + 452
    LDS = MISC + 512
    OP = SC
    OPS = 400
    assert LDS <= 163840 and NSLOT % RS == 0 and NM % NSLOT + TU <= NSLOT
    EB = 0xC0000
    QB = 0x100000
    PB = 0x200000

    wmax = w1 + (wlim if ctl else 0)
    wt = w1 if wt is None else wt
    R = -(-wmax // 3) + 1
    N0 = NSLOT - RS
    L0 = (N0 - R) // RS * RS
    NB = (NM - L0) // RS + 1
    ndouble = L0 // RS - 1
    steps = [1] + [2] * ndouble + [1] * (NB - 1 - ndouble)
    assert sum(steps) == NM // RS and len(steps) == NB
    cons = 0
    for j, st in enumerate(steps):
        assert min(1024, N0 + (j + 1) * RS + (TU if N0 + (j + 1) * RS > NM else 0)) - NSLOT <= cons
        cons += RS * st
        assert cons <= L0 + RS * j

    sW, sH, sB, sJ = 20, 21, 22, 23
    KV, WQ, WO, XS, YS, OS = 24, 28, 32, 36, 40, 44
    sVlo, sVhi = 48, 49
    t0, t1, t2, t3 = 50, 51, 52, 53
    stamp_reg = {k: 66 + 2 * k for k in range(15)}

    def stamp(k):
        if stamps:
            a("s_memrealtime s[%d:%d]" % (stamp_reg[k], stamp_reg[k] + 1))

    def flush_stamps(ks):
        if not stamps:
            return
        a("s_waitcnt lgkmcnt(0)")
        a("s_mov_b64 exec, 1")
        a("s_lshl_b32 s%d, s2, 7" % t0)
        a("s_add_u32 s%d, s%d, 0x4000000" % (t0, t0))
        a("v_mov_b32 v1, s%d" % t0)
        for k in ks:
            a("v_mov_b32 v2, s%d" % stamp_reg[k])
            a("v_mov_b32 v3, s%d" % (stamp_reg[k] + 1))
            a("global_store_dwordx2 v1, v[2:3], s[18:19] offset:%d" % (8 * k))
            a("s_nop 1")

    def srd(d, lo, hi, off_sreg, nbytes):
        a("s_add_u32 s%d, s%d, s%d" % (d, lo, off_sreg))
        a("s_addc_u32 s%d, s%d, 0" % (d + 1, hi))
        if isinstance(nbytes, int):
            a("s_mov_b32 s%d, %d" % (d + 2, nbytes))
        else:
            a(nbytes % (d + 2))
        a("s_mov_b32 s%d, 0x20000" % (d + 3))

    def load_row_tag(dst):
        c("tag word of this batch row's hand-off (advanced by 0x01010101 once it has arrived)")
        a("s_lshl_b32 s%d, s%d, 8" % (dst, sB))
        a("s_add_u32 s%d, s%d, 0x%x" % (dst, dst, EB))
        a("s_load_dword s%d, s[18:19], s%d" % (dst, dst))

    stamp(0)
    a("s_cmp_ge_u32 s2, 256")
    a("s_cbranch_scc1 L_end")
    a("s_load_dwordx16 s[4:19], s[0:1], 0")
    a("v_lshrrev_b32 v1, 6, v0")
    a("v_and_b32 v0, 63, v0")
    a("s_and_b32 s%d, s2, 7" % t0)
    a("v_readfirstlane_b32 s%d, v1" % sW)
    c("head = 4 * (id & 7) + ((id >> 3) & 3), batch = id >> 5")
    a("s_lshr_b32 s%d, s2, 3" % sJ)
    a("s_lshl_b32 s%d, s%d, 2" % (t0, t0))
    a("s_and_b32 s%d, s%d, 3" % (t1, sJ))
    a("s_add_u32 s%d, s%d, s%d" % (sH, t0, t1))
    a("s_lshr_b32 s%d, s%d, 2" % (sB, sJ))
    a("s_cmp_ge_u32 s%d, 3" % sW)
    a("s_cbranch_scc1 L_holder")
    a("s_cmp_ge_u32 s%d, 1" % sW)
    a("s_cbranch_scc1 L_consumer")

    c("======== loader ========")
    sM, sOff, sN, sCnt, sSkip, sBlk, sMod, sWin, sRot = 54, 55, 56, 57, 58, 59, 60, 61, 62
    vOff, vA, vB, vWa, vWv = 4, 8, 12, 16, 17
    BIAS = 1792
    STEP = 4 * 384
    uA, uB = skA // 4, skB // 4
    assert 4096 % (2 * (2 * skA + skB)) == 0
    NBLK = 3 * 4096 // (2 * (2 * skA + skB))
    if prio:
        a("s_setprio %d" % prio)
    a("s_lshl_b32 s%d, s%d, 5" % (t0, sB))
    a("s_add_u32 s%d, s%d, s%d" % (t0, t0, sH))
    a("s_mul_i32 s%d, s%d, %d" % (t0, t0, BH))
    c("a unit is 4 keys (lanes 0-31) plus the 4 keys about 64 KiB further on (lanes 32-63), 8 lanes per key;")
    c("load i uses offset:1024*i, which is added to both addresses, so its lane offset carries 896*(2-i)")
    a("v_bfe_u32 v1, v0, 3, 2")
    a("v_lshrrev_b32 v3, 5, v0")
    a("v_mul_u32_u24 v1, 384, v1")
    a("v_and_b32 v2, 7, v0")
    a("v_lshl_add_u32 v1, v2, 4, v1")
    a("v_mul_u32_u24 v2, %d, v3" % (skA * 384))
    a("v_add_u32 v%d, v1, v2" % (vA + 2))
    a("v_mul_u32_u24 v2, %d, v3" % (skB * 384))
    a("v_add_u32 v%d, v1, v2" % (vB + 2))
    for base in (vA, vB):
        a("v_add_u32 v%d, 896, v%d" % (base + 1, base + 2))
        a("v_add_u32 v%d, 1792, v%d" % (base, base + 2))
    for i in range(3):
        a("v_mov_b32 v%d, v%d" % (vOff + i, vA + i))
    c("the unit sequence starts sRot units into the first block and ends with the units skipped")
    assert TU + 1 + 7 * pb < uA
    a("s_mul_i32 s%d, s%d, %d" % (sRot, sB, pb))
    a("s_add_u32 s%d, s%d, %d" % (sRot, sRot, TU + 1))

    def start_off():
        a("s_mul_i32 s%d, s%d, %d" % (sOff, sRot, STEP))
        a("s_mov_b32 s%d, 0" % sMod)
        a("s_sub_u32 s%d, %d, s%d" % (sCnt, uA - 1, sRot))

    a("s_mov_b32 s%d, %d" % (sM, RING - RS * UNIT))
    a("s_mov_b32 s%d, 0" % sBlk)
    start_off()
    a("s_mov_b32 s%d, %d" % (sSkip, N0 // RS))
    if ctl:
        a("v_mov_b32 v%d, %d" % (vWa, WIN))
        a("v_mov_b32 v%d, %d" % (vWv, w1))
    a("s_waitcnt lgkmcnt(0)")
    a("s_sub_u32 s6, s6, %d" % BIAS)
    a("s_subb_u32 s7, s7, 0")
    a("s_sub_u32 s8, s8, %d" % BIAS)
    a("s_subb_u32 s9, s9, 0")
    a("s_add_u32 s%d, s8, s%d" % (sVlo, t0))
    a("s_addc_u32 s%d, s9, 0" % sVhi)
    srd(KV, 6, 7, t0, BH + BIAS)
    if stamps:
        a("s_mov_b32 s46, 0")
        a("s_memtime s[64:65]")

    def ld(i, so):
        a("buffer_load_dwordx4 v%d, %s, s%d offen offset:%d nt lds" % (vOff + i, s4(KV), so, 1024 * i))

    wins = list(range(w1 - wlim, w1 + wlim + 1)) if ctl else [w1]
    order = sorted(wins, key=lambda w: abs(w - w1))
    if stamps and dbg & 1:
        stamp(8)
    lab("L_ld")
    if stamps and dbg & 1:
        for k, n in ((9, 2), (10, 4), (12, 6)):
            a("s_cmp_lg_u32 s%d, %d" % (sSkip, N0 // RS - n))
            a("s_cbranch_scc1 L_sx%d" % k)
            stamp(k)
            lab("L_sx%d" % k)
    c("no barriers until the ring is full")
    a("s_sub_u32 s%d, s%d, 1" % (sSkip, sSkip))
    a("s_cbranch_scc0 L_ld_%s" % ("fill" if w0 else "w%d" % order[0]))
    if stamps:
        a("s_cmp_lg_u32 s46, 0")
        a("s_cbranch_scc1 L_st1")
        a("s_mov_b32 s46, 1")
        stamp(1)
        lab("L_st1")
    a("s_mov_b32 s%d, 0" % sSkip)
    if ctl:
        a("s_waitcnt lgkmcnt(0)")
        a("v_readfirstlane_b32 s%d, v%d" % (sWin, vWv))
        a("s_barrier")
        a("ds_read_b32 v%d, v%d" % (vWv, vWa))
        for w in order[1:]:
            a("s_cmp_eq_u32 s%d, %d" % (sWin, w))
            a("s_cbranch_scc1 L_ld_w%d" % w)
    else:
        a("s_barrier")
    if w0:
        order = order + [w0]
    for w in order:
        if w0 and w == w0:
            lab("L_ld_fill")
            a("s_cmp_lt_u32 s%d, %d" % (sSkip, N0 // RS - n0))
            a("s_cbranch_scc1 L_ld_w%d" % order[0])
        lab("L_ld_w%d" % w)
        for u in range(RS):
            if u == 0:
                a("s_add_u32 s%d, s%d, %d" % (sM, sM, RS * UNIT))
                a("s_cmp_eq_u32 s%d, %d" % (sM, RING))
                a("s_cselect_b32 s%d, 0, s%d" % (sM, sM))
                a("s_mov_b32 m0, s%d" % sM)
            else:
                a("s_add_u32 m0, s%d, %d" % (sM, u * UNIT))
            a("s_waitcnt vmcnt(%d)" % w)
            for i in range(3):
                ld(i, sOff)
            a("s_add_u32 s%d, s%d, %d" % (sOff, sOff, STEP))
            a("s_sub_u32 s%d, s%d, 1" % (sCnt, sCnt))
            a("s_cbranch_scc1 L_ld_block_%d_%d" % (w, u))
            lab("L_ld_cont_%d_%d" % (w, u))
        a("s_branch L_ld")
    for w in order:
        for u in range(RS):
            lab("L_ld_block_%d_%d" % (w, u))
            a("s_mov_b32 s%d, %d" % (sN, order.index(w) * RS + u))
            if (w, u) != (order[-1], RS - 1):
                a("s_branch L_ld_block")
    lab("L_ld_block")
    c("end of a block of two sub-streams: skip the high one, pick the next block's shape")
    a("s_cmp_eq_u32 s%d, 2" % sMod)
    a("s_cselect_b32 s%d, 0, %d" % (t0, (skA - skB) * 384))
    a("s_add_u32 s%d, s%d, %d" % (t0, t0, skB * 384))
    a("s_add_u32 s%d, s%d, s%d" % (sOff, sOff, t0))
    a("s_add_u32 s%d, s%d, 1" % (sMod, sMod))
    a("s_cmp_eq_u32 s%d, 3" % sMod)
    a("s_cselect_b32 s%d, 0, s%d" % (sMod, sMod))
    a("s_cmp_eq_u32 s%d, 2" % sMod)
    a("s_cselect_b32 s%d, 0, %d" % (sCnt, uA - uB))
    a("s_cselect_b64 vcc, -1, 0")
    a("s_add_u32 s%d, s%d, %d" % (sCnt, sCnt, uB - 1))
    for i in range(3):
        a("v_cndmask_b32 v%d, v%d, v%d, vcc" % (vOff + i, vA + i, vB + i))
    a("s_add_u32 s%d, s%d, 1" % (sBlk, sBlk))
    a("s_cmp_eq_u32 s%d, %d" % (sBlk, NBLK))
    a("s_cbranch_scc1 L_ld_wrapk")
    a("s_cmp_eq_u32 s%d, %d" % (sBlk, 2 * NBLK + 1))
    a("s_cbranch_scc1 L_ld_wrapv")
    a("s_cmp_eq_u32 s%d, %d" % (sBlk, 2 * NBLK + 2))
    a("s_cbranch_scc1 L_ld_done")
    a("s_cmp_lg_u32 s%d, %d" % (sBlk, NBLK + 1))
    a("s_cbranch_scc1 L_ld_next")
    c("K done: same sequence over V")
    a("s_mov_b32 s%d, s%d" % (KV, sVlo))
    a("s_mov_b32 s%d, s%d" % (KV + 1, sVhi))
    start_off()
    a("s_branch L_ld_next")
    lab("L_ld_wrapv")
    a("s_sub_u32 s%d, s%d, %d" % (sRot, sRot, TU))
    lab("L_ld_wrapk")
    a("s_mov_b32 s%d, 0" % sOff)
    a("s_sub_u32 s%d, s%d, 1" % (sCnt, sRot))
    lab("L_ld_next")
    if stamps:
        for k, bn in ((8, 1), (9, NBLK // 4), (10, NBLK // 2), (11, NBLK + 1), (12, NBLK * 3 // 2 + 1)):
            if dbg & 1 and k != 11:
                continue
            a("s_cmp_lg_u32 s%d, %d" % (sBlk, bn))
            a("s_cbranch_scc1 L_st%d" % k)
            stamp(k)
            lab("L_st%d" % k)
    targets = [(w, u) for w in order for u in range(RS)]
    for k, (w, u) in enumerate(targets[:-1]):
        a("s_cmp_eq_u32 s%d, %d" % (sN, k))
        a("s_cbranch_scc1 L_ld_cont_%d_%d" % (w, u))
    a("s_branch L_ld_cont_%d_%d" % targets[-1])
    lab("L_ld_done")
    c("last %d units: all first thirds, then all second thirds, then all last thirds of the rows" % TU)
    a("s_mul_i32 s%d, s%d, %d" % (sOff, sRot, STEP))
    pend = {}
    for j in range((NM - 1 - N0) // RS + 1, NB):
        younger = 3 * (NM - (L0 + RS * j))
        k = max(0, wt - younger)
        pend.setdefault(k, []).append(younger + k)
    for k in range(3 * TU + 1):
        for n in pend.get(k, []):
            a("s_waitcnt vmcnt(%d)" % n)
            a("s_barrier")
        if k == 3 * TU:
            break
        i, u = divmod(k, TU)
        a("s_add_u32 s%d, s%d, %d" % (t0, sOff, u * STEP))
        a("s_mov_b32 m0, %d" % ((NM + u) % NSLOT * UNIT))
        a("s_waitcnt vmcnt(%d)" % (wt + 2))
        ld(i, t0)
    assert max(pend) <= 3 * TU
    stamp(2)
    for i in range(3):
        a("s_waitcnt vmcnt(%d)" % (TU * (2 - i)))
        a("s_barrier")
    stamp(3)
    if stamps:
        r13 = stamp_reg[13]
        a("s_memtime s[%d:%d]" % (r13, r13 + 1))
        a("s_waitcnt lgkmcnt(0)")
        a("s_sub_u32 s%d, s%d, s64" % (r13, r13))
        a("s_lshr_b32 s%d, s%d, 4" % (r13, r13))
        a("s_add_u32 s%d, s%d, s%d" % (r13, r13, stamp_reg[0]))
        a("s_addc_u32 s%d, s%d, 0" % (r13 + 1, stamp_reg[0] + 1))
    flush_stamps([0, 1, 2, 3, 8, 9, 10, 11, 12, 13])
    a("s_endpgm")

    c("======== consumers ========")
    lab("L_consumer")
    sC, sA0, sA1, sSc, sRound, sIn, sScale, sTagY = 54, 55, 56, 57, 58, 59, 60, 61
    sOne, sNext, sPub = 62, 64, 65
    vL16, vAd0, vAd1, vSA, vM, vLsum, vMc = 4, 5, 6, 7, 8, 9, 10
    vS, vT, vMask, vQ, vAcc, vAop, vD = 12, 16, 20, 24, 36, 48, 64
    vLad, vOad, vTad = 88, 89, 90
    vPa, vPo, vPv, vPw, vWin = 92, 93, 94, 95, 96
    a("s_sub_u32 s%d, s%d, 1" % (sC, sW))
    a("v_lshlrev_b32 v%d, 4, v0" % vL16)
    c("lane-constant masks: element (lane & 7) of an 8 x bf16 operand")
    a("v_and_b32 v%d, 1, v0" % vT)
    a("v_lshlrev_b32 v%d, 4, v%d" % (vT, vT))
    a("v_mov_b32 v%d, 0xffff" % (vT + 1))
    a("v_lshlrev_b32 v%d, v%d, v%d" % (vT, vT, vT + 1))
    a("v_bfe_u32 v%d, v0, 1, 2" % (vT + 1))
    for j in range(4):
        a("v_cmp_eq_u32 vcc, %d, v%d" % (j, vT + 1))
        a("s_nop 1")
        a("v_cndmask_b32 v%d, 0, v%d, vcc" % (vMask + j, vT))
    a("s_mul_i32 s%d, s%d, %d" % (sA0, sC, 2 * UNIT))
    a("s_add_u32 s%d, s%d, %d" % (sA1, sA0, UNIT))
    a("s_add_u32 s%d, s%d, %d" % (t0, sA0, NM % NSLOT * UNIT))
    a("v_add_u32 v%d, s%d, v%d" % (vTad, t0, vL16))
    a("v_lshrrev_b32 v%d, 3, v0" % vSA)
    a("v_lshlrev_b32 v%d, 3, v%d" % (vSA, vSA))
    a("s_lshl_b32 s%d, s%d, 6" % (t0, sC))
    a("s_add_u32 s%d, s%d, %d" % (t0, t0, SC))
    a("v_add_u32 v%d, s%d, v%d" % (vSA, t0, vSA))
    a("v_mov_b32 v%d, 0xff800000" % vM)
    a("v_mov_b32 v%d, 0" % vLsum)
    for i in range(12):
        a("v_mov_b32 v%d, 0" % (vAcc + i))
    a("v_lshrrev_b32 v%d, 4, v0" % vLad)
    a("v_lshlrev_b32 v%d, 2, v%d" % (vLad, vLad))
    a("s_lshl_b32 s%d, s%d, 4" % (t0, sC))
    a("s_add_u32 s%d, s%d, %d" % (t0, t0, MX))
    a("v_add_u32 v%d, s%d, v%d" % (vLad, t0, vLad))
    c("o partial row 2c + (lane >> 5), columns 8*(lane & 7) + 4*((lane >> 4) & 1) + 0..3 of each third")
    a("v_and_b32 v%d, 7, v0" % vOad)
    a("v_bfe_u32 v%d, v0, 4, 1" % vT)
    a("v_lshl_add_u32 v%d, v%d, 1, v%d" % (vOad, vOad, vT))
    a("v_lshlrev_b32 v%d, 3, v%d" % (vOad, vOad))
    a("v_lshrrev_b32 v%d, 5, v0" % vT)
    a("v_mul_u32_u24 v%d, %d, v%d" % (vT, OPS, vT))
    a("s_mul_i32 s%d, s%d, %d" % (t0, sC, 2 * OPS))
    a("s_add_u32 s%d, s%d, %d" % (t0, t0, OP))
    a("v_add3_u32 v%d, v%d, v%d, s%d" % (vOad, vOad, vT, t0))
    a("s_mov_b32 s%d, 0x01010101" % sOne)
    a("s_mov_b32 s%d, 0x01010101" % (sOne + 1))
    a("s_mov_b32 s%d, 0x%08x" % (sScale, f32bits(192 ** -0.5 * math.log2(math.e))))
    a("s_waitcnt lgkmcnt(0)")
    load_row_tag(sTagY)
    a("s_mul_i32 s%d, s%d, 81920" % (t0, sB))
    srd(YS, 18, 19, t0, 81920)
    a("s_mul_i32 s%d, s%d, 1280" % (t0, sB))
    srd(OS, 14, 15, t0, 1280)
    if ctl:
        c("progress words of the 32 workgroups whose id is equal mod 8, one cache line")
        a("s_and_b32 s%d, s2, 7" % t0)
        a("s_lshl_b32 s%d, s%d, 12" % (t0, t0))
        a("s_add_u32 s%d, s%d, 0x%x" % (t0, t0, PB))
        a("v_and_b32 v%d, 31, v0" % vPa)
        a("v_lshl_add_u32 v%d, v%d, 2, s%d" % (vPa, vPa, t0))
        a("s_lshl_b32 s%d, s%d, 2" % (t1, sJ))
        a("s_add_u32 s%d, s%d, s%d" % (t0, t0, t1))
        a("v_mov_b32 v%d, s%d" % (vPo, t0))
        if g2:
            c("lane 32 reads the group's offset word")
            a("s_sub_u32 s%d, s%d, s%d" % (t0, t0, t1))
            a("s_add_u32 s%d, s%d, 128" % (t0, t0))
            a("v_writelane_b32 v%d, s%d, 32" % (vPa, t0))
        a("v_mov_b32 v%d, %d" % (vWin, WIN))
        a("v_mov_b32 v%d, %d" % (vPw, w1))
        a("v_mov_b32 v%d, 0" % vPv)
        a("s_mov_b32 s%d, 0" % sPub)
        a("s_cmp_eq_u32 s%d, 1" % sC)
        a("s_cselect_b32 s%d, %d, 0x7fffffff" % (sNext, c0))
        a("s_cbranch_scc0 L_c_noinit")
        a("s_mov_b64 exec, 1")
        a("global_store_dword v%d, v%d, s[18:19]" % (vPo, vPv))
        a("s_mov_b64 exec, -1")
        lab("L_c_noinit")
        a("ds_write_b32 v%d, v%d" % (vWin, vPw))
    a("s_waitcnt lgkmcnt(0)")
    a("s_add_u32 s%d, s%d, 0x01010101" % (sTagY, sTagY))

    def control(tag):
        if not ctl:
            return
        a("s_cmp_lt_u32 s%d, s%d" % (sRound, sNext))
        a("s_cbranch_scc1 L_c_noctl%s" % tag)
        a("s_waitcnt vmcnt(0)")
        if g2:
            a("v_readlane_b32 s%d, v%d, 32" % (t2, vPv))
            a("s_lshl_b32 s%d, s%d, 5" % (t3, sPub))
        a("v_subrev_u32 v%d, s%d, v%d" % (vPv, sPub, vPv))
        a("v_add_u32 v%d, 24, v%d" % (vPw, vPv))
        a("v_cmp_gt_u32 vcc, 48, v%d" % vPw)
        a("s_mov_b32 s%d, s%d" % (sPub, sRound))
        a("s_add_u32 s%d, s%d, %d" % (sNext, sRound, pp))
        a("v_cndmask_b32 v%d, 0, v%d, vcc" % (vPw, vPv))
        a("v_mov_b32 v%d, s%d" % (vPv, sPub))
        a("s_mov_b64 exec, 1")
        a("global_store_dword v%d, v%d, s[18:19]" % (vPo, vPv))
        a("s_mov_b64 exec, -1")
        for dpp in ("quad_perm:[1,0,3,2]", "quad_perm:[2,3,0,1]", "row_half_mirror", "row_mirror"):
            a("v_add_u32_dpp v%d, v%d, v%d %s row_mask:0xf bank_mask:0xf" % (vPw, vPw, vPw, dpp))
            a("s_nop 1")
        a("global_load_dword v%d, v%d, s[18:19] sc1" % (vPv, vPa))
        a("v_readlane_b32 s%d, v%d, 0" % (t0, vPw))
        a("v_readlane_b32 s%d, v%d, 16" % (t1, vPw))
        a("s_nop 1")
        a("s_add_i32 s%d, s%d, s%d" % (t0, t0, t1))
        if g2:
            a("s_add_i32 s%d, s%d, s%d" % (t3, t3, t0))
            a("s_lshl_b32 s%d, s%d, 5" % (t1, sRound))
            a("s_sub_i32 s%d, s%d, s%d" % (t3, t3, t1))
            a("v_mov_b32 v%d, s%d" % (vPw, t3))
            a("ds_write_b32 v%d, v%d offset:4" % (vWin, vPw))
            a("s_add_u32 s%d, s%d, 0x200" % (t1, t2))
            a("s_cmp_lt_u32 s%d, 0x400" % t1)
            a("s_cselect_b32 s%d, s%d, 0" % (t2, t2))
            a("s_mul_i32 s%d, s%d, %d" % (t2, t2, g2))
            a("s_ashr_i32 s%d, s%d, 4" % (t2, t2))
            a("s_add_i32 s%d, s%d, s%d" % (t0, t0, t2))
        a("s_add_i32 s%d, s%d, %d" % (t0, t0, bias))
        a("s_mul_i32 s%d, s%d, %d" % (t0, t0, gain))
        a("s_add_i32 s%d, s%d, 2048" % (t0, t0))
        a("s_ashr_i32 s%d, s%d, 12" % (t0, t0))
        a("s_max_i32 s%d, s%d, %d" % (t0, t0, -wlim))
        a("s_min_i32 s%d, s%d, %d" % (t0, t0, wlim))
        a("s_add_i32 s%d, s%d, %d" % (t0, t0, w1))
        a("v_mov_b32 v%d, s%d" % (vPw, t0))
        a("ds_write_b32 v%d, v%d" % (vWin, vPw))
        lab("L_c_noctl%s" % tag)

    a("s_barrier")
    a("v_and_b32 v%d, 7, v0" % vT)
    a("v_lshlrev_b32 v%d, 4, v%d" % (vT, vT))
    a("v_add_u32 v%d, %d, v%d" % (vT, Q, vT))
    for i in range(3):
        a("ds_read_b128 %s, v%d offset:%d" % (q4(vQ + 4 * i), vT, 128 * i))
    a("s_mov_b32 s%d, 0" % sRound)
    a("s_mov_b32 s%d, 1" % sIn)
    a("s_mov_b32 s%d, 0" % sSc)

    def data_reads():
        a("v_add_u32 v%d, s%d, v%d" % (vAd0, sA0, vL16))
        a("v_add_u32 v%d, s%d, v%d" % (vAd1, sA1, vL16))
        for u, ad in ((0, vAd0), (1, vAd1)):
            for i in range(3):
                a("ds_read_b128 %s, v%d offset:%d" % (q4(vD + 12 * u + 4 * i), ad, 1024 * i))
        for s in (sA0, sA1):
            a("s_add_u32 s%d, s%d, %d" % (s, s, RS * UNIT))
            a("s_cmp_ge_u32 s%d, %d" % (s, RING))
            a("s_cselect_b32 s%d, %d, 0" % (t0, RING))
            a("s_sub_u32 s%d, s%d, s%d" % (s, s, t0))

    def weights(n):
        for u in range(n):
            a("v_fma_f32 v%d, v%d, s%d, -v%d" % (vS + u, vS + u, sScale, vMc))
        for u in range(n):
            a("v_exp_f32 v%d, v%d" % (vS + u, vS + u))
        a("s_add_u32 s%d, s%d, 1" % (sSc, sSc))
        for u in range(n):
            a("v_cvt_pk_bf16_f32 v%d, v%d, v%d" % (vT + u, vS + u, vS + u))
        for u in range(n):
            for j in range(4):
                a("v_and_b32 v%d, v%d, v%d" % (vAop + 4 * u + j, vMask + j, vT + u))
        for u in range(n):
            a("v_add_f32 v%d, v%d, v%d" % (vLsum, vLsum, vS + u))

    c("---- K steps: scores of 2 units")
    lab("L_c_k")
    data_reads()
    for u in range(2):
        for i in range(3):
            a("s_waitcnt lgkmcnt(%d)" % (5 - 3 * u - i))
            for k in range(4):
                src = "0" if (i == 0 and k == 0) else "v%d" % (vS + u)
                a("v_dot2_f32_bf16 v%d, v%d, v%d, %s" % (vS + u, vD + 12 * u + 4 * i + k, vQ + 4 * i + k, src))
    for step, dpp in enumerate(("quad_perm:[1,0,3,2]", "quad_perm:[2,3,0,1]", "row_half_mirror")):
        a("v_add_f32_dpp v%d, v%d, v%d %s row_mask:0xf bank_mask:0xf" % (vS, vS, vS, dpp))
        a("s_nop %d" % (1 if step == 0 else 0))
        a("v_add_f32_dpp v%d, v%d, v%d %s row_mask:0xf bank_mask:0xf" % (vS + 1, vS + 1, vS + 1, dpp))
    a("s_add_u32 s%d, s%d, 1" % (sSc, sSc))
    a("v_max3_f32 v%d, v%d, v%d, v%d" % (vM, vM, vS, vS + 1))
    a("s_mov_b64 exec, s[%d:%d]" % (sOne, sOne + 1))
    a("ds_write_b64 v%d, v[%d:%d]" % (vSA, vS, vS + 1))
    a("s_mov_b64 exec, -1")
    a("v_add_u32 v%d, 128, v%d" % (vSA, vSA))
    a("s_cmp_eq_u32 s%d, 128" % sSc)
    a("s_cbranch_scc1 L_c_kdone")
    a("s_sub_u32 s%d, s%d, 1" % (sIn, sIn))
    a("s_cmp_lg_u32 s%d, 0" % sIn)
    a("s_cbranch_scc1 L_c_k")
    a("s_add_u32 s%d, s%d, 1" % (sRound, sRound))
    control("k")
    a("s_cmp_lt_u32 s%d, %d" % (sRound, 1 + ndouble))
    a("s_cselect_b32 s%d, 2, 1" % sIn)
    a("s_barrier")
    a("s_branch L_c_k")
    lab("L_c_kdone")
    assert 1 + 2 * ndouble < 128
    c("exact row max over all 4096 scores, shared through LDS")
    a("s_nop 1")
    a("v_max_f32_dpp v%d, v%d, v%d row_ror:8 row_mask:0xf bank_mask:0xf" % (vM, vM, vM))
    a("ds_write_b32 v%d, v%d" % (vLad, vM))
    a("s_add_u32 s%d, s%d, 1" % (sRound, sRound))
    a("v_subrev_u32 v%d, %d, v%d" % (vSA, 16384, vSA))
    a("s_waitcnt lgkmcnt(0)")
    a("s_barrier")
    a("v_mov_b32 v%d, %d" % (vT, MX))
    a("ds_read_b128 %s, v%d" % (q4(vAop), vT))
    a("ds_read_b128 %s, v%d offset:16" % (q4(vAop + 4), vT))
    a("s_waitcnt lgkmcnt(0)")
    a("v_max3_f32 v%d, v%d, v%d, v%d" % (vM, vAop, vAop + 1, vAop + 2))
    a("v_max3_f32 v%d, v%d, v%d, v%d" % (vM, vM, vAop + 3, vAop + 4))
    a("v_max3_f32 v%d, v%d, v%d, v%d" % (vM, vM, vAop + 5, vAop + 6))
    a("v_max_f32 v%d, v%d, v%d" % (vM, vM, vAop + 7))
    a("v_mul_f32 v%d, s%d, v%d" % (vMc, sScale, vM))
    a("s_mov_b32 s%d, 0" % sSc)
    c("---- V steps: acc += diag(p) x V for 2 units")
    lab("L_c_v")
    a("ds_read_b64 v[%d:%d], v%d" % (vS, vS + 1, vSA))
    data_reads()
    a("v_add_u32 v%d, 128, v%d" % (vSA, vSA))
    a("s_waitcnt lgkmcnt(6)")
    weights(2)
    for u in range(2):
        for i in range(3):
            a("s_waitcnt lgkmcnt(%d)" % (5 - 3 * u - i))
            a("%s %s, %s, %s, %s" % (MFMA, q4(vAcc + 4 * i), q4(vAop + 4 * u), q4(vD + 12 * u + 4 * i), q4(vAcc + 4 * i)))
    a("s_cmp_eq_u32 s%d, %d" % (sSc, 128 - TU // RS))
    a("s_cbranch_scc1 L_c_vdone")
    if ctl:
        a("s_add_u32 s%d, s%d, 1" % (sRound, sRound))
        control("v")
    a("s_barrier")
    a("s_branch L_c_v")
    lab("L_c_vdone")
    c("last units: weights first, then one third of the columns per barrier, each published as bf16")
    a("ds_read_b64 v[%d:%d], v%d" % (vS, vS + 1, vSA))
    a("ds_read_b64 v[%d:%d], v%d offset:128" % (vS + 2, vS + 3, vSA))
    a("s_waitcnt lgkmcnt(0)")
    weights(4)
    a("s_nop 1")
    a("v_add_f32_dpp v%d, v%d, v%d row_ror:8 row_mask:0xf bank_mask:0xf" % (vLsum, vLsum, vLsum))
    a("ds_write_b32 v%d, v%d offset:%d" % (vLad, vLsum, LS - MX))
    a("s_waitcnt lgkmcnt(0)")
    for i in range(3):
        a("s_barrier")
        for u in range(4):
            a("ds_read_b128 %s, v%d offset:%d" % (q4(vD + 4 * u), vTad, (u // 2) * RS * UNIT + (u % 2) * UNIT + 1024 * i))
        for u in range(4):
            a("s_waitcnt lgkmcnt(%d)" % (3 - u))
            a("%s %s, %s, %s, %s" % (MFMA, q4(vAcc + 4 * i), q4(vAop + 4 * u), q4(vD + 4 * u), q4(vAcc + 4 * i)))
        a("s_nop 5")
        a("s_mov_b32 exec_lo, 0x00ff00ff")
        a("s_mov_b32 exec_hi, 0xff00ff00")
        a("v_cvt_pk_bf16_f32 v%d, v%d, v%d" % (vT, vAcc + 4 * i, vAcc + 4 * i + 1))
        a("v_cvt_pk_bf16_f32 v%d, v%d, v%d" % (vT + 1, vAcc + 4 * i + 2, vAcc + 4 * i + 3))
        a("ds_write_b64 v%d, v[%d:%d] offset:%d" % (vOad, vT, vT + 1, 128 * i))
        a("s_mov_b64 exec, -1")
        a("s_waitcnt lgkmcnt(0)")
    a("s_barrier")
    c("wave 1 of the workgroups with head < 20 sums 32 output columns over the 32 heads")
    a("s_cmp_lg_u32 s%d, 0" % sC)
    a("s_cbranch_scc1 L_end")
    a("s_cmp_ge_u32 s%d, 20" % sH)
    a("s_cbranch_scc1 L_r_done")
    sTry, sGo = sA0, sA1
    G = vD
    a("s_lshl_b32 s%d, s%d, 12" % (sGo, sH))
    a("s_mov_b32 s%d, 0" % sTry)
    for r in range(4):
        a("s_bfe_u32 s%d, s%d, 0x%x" % (t0 + r, sTagY, (8 << 16) | (8 * r)))
    a("v_and_b32 v1, 7, v0")
    a("v_bfe_u32 v2, v0, 4, 1")
    a("v_lshrrev_b32 v3, 5, v0")
    a("v_lshl_add_u32 v2, v2, 1, v3")
    a("v_lshl_add_u32 v1, v1, 2, v2")
    a("v_lshlrev_b32 v1, 1, v1")
    if r0sleep:
        a("s_sleep %d" % r0sleep)
    if ybar:
        c("wait until this workgroup's own records are written")
        a("s_barrier")
    sets = [100 + 16 * d for d in range(depth)]

    def poll(P):
        for k in range(4):
            a("buffer_load_dwordx4 %s, v%d, %s, s%d offen offset:%d %s" % (q4(P + 4 * k), vL16, s4(YS), sGo, 1024 * k, rpol))

    for P in sets[:-1]:
        poll(P)
    lab("L_r_poll")
    for d, P in enumerate(sets):
        poll(sets[d - 1])
        for k in range(4):
            a("s_waitcnt vmcnt(%d)" % (4 * (depth - 1) + 3 - k))
            for r in range(4):
                a("v_xor_b32 v%d, s%d, v%d" % (G + 4 * k + r, t0 + r, P + 4 * k + r))
            if k == 0:
                a("v_or3_b32 v2, v%d, v%d, v%d" % (G, G + 1, G + 2))
                a("v_or_b32 v2, v2, v%d" % (G + 3))
            else:
                a("v_or3_b32 v2, v2, v%d, v%d" % (G + 4 * k, G + 4 * k + 1))
                a("v_or3_b32 v2, v2, v%d, v%d" % (G + 4 * k + 2, G + 4 * k + 3))
        a("v_and_b32 v2, 0xff, v2")
        a("v_cmp_ne_u32 vcc, 0, v2")
        a("s_cbranch_vccz L_r_sum")
        if rsleep:
            a("s_bcnt1_i32_b64 s%d, vcc" % sSc)
            a("s_cmp_le_u32 s%d, %d" % (sSc, thr))
            a("s_cbranch_scc1 L_r_near%d" % d)
            a("s_sleep %d" % rsleep)
            lab("L_r_near%d" % d)
    a("s_add_u32 s%d, s%d, 1" % (sTry, sTry))
    a("s_cmp_lt_u32 s%d, 0x100000" % sTry)
    a("s_cbranch_scc1 L_r_poll")
    lab("L_r_sum")
    for r in range(4):
        a("v_add_f32 v%d, v%d, v%d" % (G + r, G + r, G + 4 + r))
        a("v_add_f32 v%d, v%d, v%d" % (G + 8 + r, G + 8 + r, G + 12 + r))
    for r in range(4):
        a("v_add_f32 v%d, v%d, v%d" % (G + r, G + r, G + 8 + r))
    a("s_lshl_b32 s%d, s%d, 6" % (sGo, sH))
    a("s_nop 0")
    a("v_permlane32_swap_b32 v%d, v%d" % (G, G + 1))
    a("v_permlane32_swap_b32 v%d, v%d" % (G + 2, G + 3))
    a("s_nop 0")
    a("v_add_f32 v%d, v%d, v%d" % (G, G, G + 1))
    a("v_add_f32 v%d, v%d, v%d" % (G + 2, G + 2, G + 3))
    a("s_nop 1")
    a("v_permlane16_swap_b32 v%d, v%d" % (G, G + 2))
    a("s_nop 0")
    a("v_add_f32 v%d, v%d, v%d" % (G, G, G + 2))
    a("s_nop 1")
    a("v_add_f32_dpp v%d, v%d, v%d row_ror:8 row_mask:0xf bank_mask:0xf" % (G, G, G))
    a("s_mov_b32 exec_lo, 0x00ff00ff")
    a("s_mov_b32 exec_hi, 0x00ff00ff")
    a("v_cvt_pk_bf16_f32 v%d, v%d, v%d" % (G, G, G))
    a("buffer_store_short v%d, v1, %s, s%d offen %s" % (G, s4(OS), sGo, opol))
    c("every workgroup of this row has read the tag word: advance it for the next launch")
    a("s_cmp_lg_u32 s%d, 0" % sH)
    a("s_cbranch_scc1 L_r_done")
    a("s_lshl_b32 s%d, s%d, 8" % (t0, sB))
    a("s_add_u32 s%d, s%d, 0x%x" % (t0, t0, EB))
    a("s_mov_b64 exec, 1")
    a("v_mov_b32 v1, s%d" % t0)
    a("v_mov_b32 v2, s%d" % sTagY)
    a("global_store_dword v1, v2, s[18:19] sc1")
    lab("L_r_done")
    if stamps:
        a("s_waitcnt vmcnt(0)")
        stamp(7)
        flush_stamps([7])
    a("s_endpgm")

    c("======== holders ========")
    lab("L_holder")
    sHj, sO, sTag, sTagR, sLoop, sTry = 54, 55, 56, 57, 58, 59
    sPlo, sPhi = 60, 61
    vWq, vWo, vY, vTag = 4, 5, 6, 7
    vX = 8
    blk = lambda k: 32 + 32 * k
    a("s_sub_u32 s%d, s%d, 3" % (sHj, sW))
    a("s_mov_b32 s%d, 0x05040100" % sPlo)
    a("s_mov_b32 s%d, 0x07060302" % sPhi)
    a("s_cmp_lg_u32 s%d, 0" % sHj)
    a("s_cbranch_scc1 L_h_setup")
    c("q projection, shared by the 8 workgroups of the head: workgroup b < 6 multiplies x (all 8 rows) by")
    c("rows [320*(b/3), +320) x columns [64*(b%3), +64) of the head's wq slice and sends each row to its owner")
    a("v_and_b32 v1, 7, v0")
    a("v_bfe_u32 v2, v0, 3, 1")
    a("v_lshrrev_b32 v3, 4, v0")
    a("v_lshl_add_u32 v29, v2, 2, v3")
    a("v_mul_u32_u24 v%d, %d, v29" % (vWq, 8 * 12288))
    a("v_lshl_add_u32 v%d, v1, 4, v%d" % (vWq, vWq))
    a("v_mul_u32_u24 v30, 1280, v1")
    a("v_lshl_add_u32 v30, v29, 4, v30")
    a("v_lshlrev_b32 v31, 11, v1")
    a("s_cmp_ge_u32 s%d, 3" % sB)
    a("s_cselect_b32 s%d, 320, 0" % t2)
    a("s_cselect_b32 s%d, 3, 0" % t3)
    a("s_sub_u32 s%d, s%d, s%d" % (t3, sB, t3))
    a("s_mul_i32 s%d, s%d, 12288" % (sO, t2))
    a("s_lshl_b32 s%d, s%d, 7" % (t3, t3))
    a("s_add_u32 s%d, s%d, s%d" % (sO, sO, t3))
    a("s_lshl_b32 s%d, s%d, 1" % (t2, t2))
    a("s_mul_i32 s%d, s%d, 384" % (t0, sH))
    a("s_lshl_b32 s%d, s%d, 14" % (t1, sH))
    a("s_add_u32 s%d, s%d, 0x%x" % (t1, t1, QB))
    a("s_waitcnt lgkmcnt(0)")
    srd(YS, 18, 19, t1, 16384)
    load_row_tag(sTagR)
    c("tags of the 8 receivers: the words found in d_ws, advanced")
    a("buffer_load_dword v%d, v31, %s, 0 offen offset:1536 sc1" % (vTag, s4(YS)))
    a("s_cmp_ge_u32 s%d, 6" % sB)
    a("s_cbranch_scc1 L_q_tag")
    srd(WQ, 10, 11, t0, "s_sub_u32 s%%d, 7864320, s%d" % t0)
    a("s_mov_b32 s%d, s4" % XS)
    a("s_mov_b32 s%d, s5" % (XS + 1))
    a("s_mov_b32 s%d, 10240" % (XS + 2))
    a("s_mov_b32 s%d, 0x20000" % (XS + 3))
    for rb in range(5):
        for i in range(8):
            a("buffer_load_dwordx4 %s, v%d, %s, s%d offen %s" % (q4(blk(rb + 1) + 4 * i), vWq, s4(WQ), sO, wqpol))
            a("s_add_u32 s%d, s%d, %d" % (sO, sO, 12288 if i < 7 else 57 * 12288))
        a("buffer_load_dwordx4 %s, v30, %s, s%d offen offset:%d" % (q4(vX + 4 * rb), s4(XS), t2, 128 * rb))
    a("v_lshl_add_u32 v31, v29, 4, v31")
    a("s_lshl_b32 s%d, s%d, 8" % (sO, sB))
    qacc = blk(6)

    def transpose(dst, src, col):
        for p in range(4):
            a("v_perm_b32 v%d, v%d, v%d, s%d" % (dst + 4 * col + p, src + 4 * (2 * p + 1) + col // 2,
                                                src + 4 * (2 * p) + col // 2, sPhi if col % 2 else sPlo))

    for rb in range(5):
        a("s_waitcnt vmcnt(%d)" % (9 * (4 - rb)))
        transpose(blk(0), blk(rb + 1), 0)
        for col in range(8):
            if col < 7:
                transpose(blk(0), blk(rb + 1), col + 1)
            else:
                a("s_nop 0")
            d = qacc + 4 * col
            a("%s %s, %s, %s, %s" % (MFMA, q4(d), q4(blk(0) + 4 * col), q4(vX + 4 * rb), "0" if rb == 0 else q4(d)))
    a("v_add_u32 v%d, 0x01010101, v%d" % (vTag, vTag))
    for r in range(4):
        a("s_mov_b32 s%d, 0x%08x" % (t0 + r, 0x07060500 + r))
    a("s_nop 3")
    c("add the two 32-row halves; lanes 0-7 / 8-15 of each row end up with even / odd columns")
    for col in range(4):
        for r in range(4):
            a("v_permlane32_swap_b32 v%d, v%d" % (qacc + 4 * col + r, qacc + 4 * (col + 4) + r))
    for st in range(2):
        for r in range(4):
            t = vX + 4 * st + r
            a("v_add_f32_dpp v%d, v%d, v%d row_ror:8 row_mask:0xf bank_mask:0x3" % (t, qacc + 4 * (2 * st + 4) + r, qacc + 4 * (2 * st) + r))
            a("v_add_f32_dpp v%d, v%d, v%d row_ror:8 row_mask:0xf bank_mask:0xc" % (t, qacc + 4 * (2 * st + 1) + r, qacc + 4 * (2 * st + 5) + r))
    c("the low byte of each word carries one byte of the receiver's tag")
    for st in range(2):
        for r in range(4):
            t = vX + 4 * st + r
            a("v_perm_b32 v%d, v%d, v%d, s%d" % (t, t, vTag, t0 + r))
        a("buffer_store_dwordx4 %s, v31, %s, s%d offen offset:%d sc1" % (q4(vX + 4 * st), s4(YS), sO, 128 * st))
    a("s_branch L_q_gather")
    lab("L_q_tag")
    a("s_waitcnt vmcnt(0)")
    a("v_add_u32 v%d, 0x01010101, v%d" % (vTag, vTag))
    lab("L_q_gather")
    stamp(4)
    a("v_lshlrev_b32 v1, 4, v0")
    a("v_readlane_b32 s%d, v%d, s%d" % (sTag, vTag, sB))
    a("s_lshl_b32 s%d, s%d, 11" % (sO, sB))
    a("s_mov_b32 s%d, 0" % sTry)
    a("s_mov_b32 s%d, 0x0c0c0400" % t0)
    a("s_mov_b32 s%d, 0x04000c0c" % t1)
    a("s_mov_b32 s%d, 0x07060500" % t2)
    a("s_mov_b32 exec_hi, 0xffff")
    GA, GB = 16, 20
    lab("L_q_poll")
    a("buffer_load_dwordx4 %s, v1, %s, s%d offen %s" % (q4(GA), s4(YS), sO, qpol))
    a("buffer_load_dwordx4 %s, v1, %s, s%d offen offset:768 %s" % (q4(GB), s4(YS), sO, qpol))
    a("s_add_u32 s%d, s%d, 1" % (sTry, sTry))
    a("s_waitcnt vmcnt(0)")
    for g, t in ((GA, 24), (GB, 26)):
        a("v_perm_b32 v%d, v%d, v%d, s%d" % (t, g + 1, g, t0))
        a("v_perm_b32 v%d, v%d, v%d, s%d" % (t + 1, g + 3, g + 2, t1))
        a("v_or_b32 v%d, v%d, v%d" % (t, t, t + 1))
    a("v_xor_b32 v24, s%d, v24" % sTag)
    a("v_xor_b32 v26, s%d, v26" % sTag)
    a("v_or_b32 v24, v24, v26")
    a("v_cmp_ne_u32 vcc, 0, v24")
    a("s_cbranch_vccz L_q_got")
    if sleep:
        a("s_sleep %d" % sleep)
    a("s_cmp_lt_u32 s%d, 0x100000" % sTry)
    a("s_cbranch_scc1 L_q_poll")
    lab("L_q_got")
    a("v_mov_b32 v24, 0x80")
    a("v_lshrrev_b32 v2, 4, v0")
    a("v_lshlrev_b32 v2, 6, v2")
    a("v_and_b32 v3, 1, v0")
    a("v_lshl_add_u32 v2, v3, 5, v2")
    a("v_bfe_u32 v3, v0, 2, 2")
    a("v_add_u32 v2, v2, v3")
    a("v_bfe_u32 v3, v0, 1, 1")
    a("v_lshl_add_u32 v2, v3, 2, v2")
    a("v_lshlrev_b32 v2, 1, v2")
    a("v_add_u32 v2, %d, v2" % Q)
    for r in range(8):
        a("v_perm_b32 v%d, v%d, v24, s%d" % (GA + r, GA + r, t2))
    for r in range(4):
        a("v_add_f32 v%d, v%d, v%d" % (GA + r, GA + r, GB + r))
    a("v_cvt_pk_bf16_f32 v%d, v%d, v%d" % (GA, GA, GA + 1))
    a("v_cvt_pk_bf16_f32 v%d, v%d, v%d" % (GA + 2, GA + 2, GA + 3))
    a("ds_write_b16 v2, v%d" % GA)
    a("ds_write_b16_d16_hi v2, v%d offset:16" % GA)
    a("ds_write_b16 v2, v%d offset:32" % (GA + 2))
    a("ds_write_b16_d16_hi v2, v%d offset:48" % (GA + 2))
    c("all six senders have read this workgroup's tag word: advance it for the next launch")
    a("v_mov_b32 v3, s%d" % sTag)
    a("s_mov_b64 exec, 1")
    a("buffer_store_dword v3, v1, %s, s%d offen offset:1536 sc1" % (s4(YS), sO))
    a("s_mov_b64 exec, -1")
    stamp(14)
    a("s_branch L_h_go")
    lab("L_h_setup")
    a("s_waitcnt lgkmcnt(0)")
    load_row_tag(sTagR)
    lab("L_h_go")
    a("s_waitcnt lgkmcnt(0)")
    a("s_barrier")
    nb = 1
    a("s_add_u32 s%d, s%d, 0x01010101" % (sTagR, sTagR))
    a("s_mul_i32 s%d, s%d, 245760" % (t0, sH))
    srd(WO, 12, 13, t0, 245760)
    a("s_mul_i32 s%d, s%d, 81920" % (t0, sB))
    srd(YS, 18, 19, t0, 81920)
    c("this wave holds columns [128*j, +128) of all 192 rows: lane = (8-row group, 8-column chunk)")
    a("v_lshrrev_b32 v1, 4, v0")
    a("v_and_b32 v2, 15, v0")
    a("v_mul_u32_u24 v%d, 10240, v1" % vWo)
    a("v_lshl_add_u32 v%d, v2, 4, v%d" % (vWo, vWo))
    a("s_lshl_b32 s%d, s%d, 8" % (t0, sHj))
    a("v_add_u32 v%d, s%d, v%d" % (vWo, t0, vWo))
    c("hand-off record [32-column group][head][128 bytes]")
    a("v_bfe_u32 v3, v0, 2, 2")
    a("v_lshlrev_b32 v%d, 12, v3" % vY)
    a("v_and_b32 v3, 3, v0")
    a("v_lshl_add_u32 v%d, v3, 5, v%d" % (vY, vY))
    a("v_lshl_add_u32 v%d, v1, 4, v%d" % (vY, vY))
    a("s_lshl_b32 s%d, s%d, 14" % (t0, sHj))
    a("s_lshl_b32 s%d, s%d, 7" % (t1, sH))
    a("s_add_u32 s%d, s%d, s%d" % (t0, t0, t1))
    a("v_add_u32 v%d, s%d, v%d" % (vY, t0, vY))
    a("v_mov_b32 v%d, s%d" % (vTag, sTagR))

    def idle(n):
        if n <= 2:
            for _ in range(n):
                a("s_barrier")
            return
        name = "L_h_idle%d" % len(L)
        a("s_mov_b32 s%d, %d" % (sLoop, n))
        lab(name)
        a("s_barrier")
        a("s_sub_u32 s%d, s%d, 1" % (sLoop, sLoop))
        a("s_cmp_lg_u32 s%d, 0" % sLoop)
        a("s_cbranch_scc1 %s" % name)

    if g2:
        a("s_and_b32 s%d, s2, 7" % t0)
        a("s_lshl_b32 s%d, s%d, 12" % (t0, t0))
        a("s_add_u32 s%d, s%d, 0x%x" % (t0, t0, PB + 128))
        a("v_mov_b32 v24, s%d" % t0)
        a("v_add_u32 v25, 1920, v24")
        a("v_mov_b32 v26, 0")
        a("s_lshl_b32 s%d, s%d, 3" % (t1, sJ))
        a("s_add_u32 s%d, s%d, s%d" % (t1, t1, sHj))
        a("s_cmp_lg_u32 s%d, 1" % t1)
        a("s_cbranch_scc1 L_m_noinit")
        a("s_mov_b64 exec, 1")
        a("global_store_dword v24, v26, s[18:19]")
        a("s_mov_b64 exec, -1")
        lab("L_m_noinit")
    idle(wo_r0)
    nb += wo_r0
    n = 0
    while n < 48:
        for _ in range(wo_k):
            ks, i = divmod(n, 8)
            if i % 4 == 0:
                a("s_mov_b32 s%d, %d" % (sO, ks * 40960 + (i // 4) * 5120))
            a("buffer_load_dwordx4 %s, v%d, %s, s%d offen offset:%d %s" % (q4(blk(ks + 1) + 4 * i), vWo, s4(WO), sO, (i % 4) * 1280, wopol))
            n += 1
        a("s_barrier")
        nb += 1
    idle(8)
    nb += 8
    a("s_waitcnt vmcnt(0)")
    c("transpose each 8x8 block into the previous block's registers: MFMA operands with k along rows")
    for ks in range(6):
        for col in range(8):
            transpose(blk(ks), blk(ks + 1), col)
        a("s_barrier")
        nb += 1
    a("v_and_b32 v1, 3, v0")
    a("v_mul_u32_u24 v1, %d, v1" % OPS)
    a("v_lshrrev_b32 v2, 4, v0")
    a("v_lshl_add_u32 v1, v2, 4, v1")
    a("v_add_u32 v1, %d, v1" % OP)
    a("v_mov_b32 v2, %d" % LS)
    if g2:
        c("one wave per group compares the group's progress with the other seven groups'")
        nit = (NB - mend - nb) // mp
        sAd, sNew, sPrev, sD, sR, sPc, sMo = 4, 24, 32, 44, 62, 63, 12
        a("s_lshl_b32 s%d, s%d, 3" % (t1, sJ))
        a("s_add_u32 s%d, s%d, s%d" % (t1, t1, sHj))
        a("s_cmp_lg_u32 s%d, 1" % t1)
        a("s_cbranch_scc1 L_m_idle")
        for i in range(8):
            a("s_add_u32 s%d, s2, %d" % (t0, i))
            a("s_and_b32 s%d, s%d, 7" % (t0, t0))
            a("s_lshl_b32 s%d, s%d, 12" % (t0, t0))
            a("s_add_u32 s%d, s%d, 0x%x" % (sAd + i, t0, PB + 2048))
            a("s_load_dword s%d, s[18:19], s%d %s" % (sNew + i, sAd + i, sglc))
        a("v_mov_b32 v27, %d" % MTOT)
        a("s_mov_b32 s%d, %d" % (sR, nb))
        a("s_mov_b32 s%d, %d" % (sPc, 1))
        a("s_mov_b32 s%d, %d" % (sTry, nit - 1))
        a("s_mov_b64 exec, 1")
        idle(mp)
        a("s_waitcnt lgkmcnt(0)")
        for i in range(8):
            a("s_mov_b32 s%d, s%d" % (sPrev + i, sNew + i))
            a("s_mov_b32 s%d, 0" % (sD + i if i < 4 else 13 + i - 4))
        dreg = lambda i: sD + i if i < 4 else 13 + i - 4
        lab("L_m_loop")
        a("s_add_u32 s%d, s%d, %d" % (sR, sR, mp))
        a("ds_read_b32 v26, v27")
        a("s_waitcnt lgkmcnt(0)")
        a("v_readfirstlane_b32 s%d, v26" % sMo)
        a("s_lshl_b32 s%d, s%d, 5" % (t0, sR))
        a("s_add_i32 s%d, s%d, s%d" % (sMo, sMo, t0))
        for i in range(8):
            a("s_load_dword s%d, s[18:19], s%d %s" % (sNew + i, sAd + i, sglc))
        a("s_sub_u32 s%d, s%d, 1" % (sPc, sPc))
        a("s_cbranch_scc0 L_m_nopub")
        a("s_mov_b32 s%d, %d" % (sPc, mpub - 1))
        a("v_mov_b32 v26, s%d" % sMo)
        a("global_store_dword v25, v26, s[18:19] sc1")
        lab("L_m_nopub")
        idle(mp)
        a("s_waitcnt lgkmcnt(0)")
        a("s_mov_b32 s%d, 0" % t1)
        for i in range(8):
            a("s_sub_i32 s%d, s%d, s%d" % (t0, sNew + i, sMo))
            a("s_cmp_lg_u32 s%d, s%d" % (sNew + i, sPrev + i))
            a("s_cselect_b32 s%d, s%d, s%d" % (dreg(i), t0, dreg(i)))
            a("s_mov_b32 s%d, s%d" % (sPrev + i, sNew + i))
            if mmin:
                a(("s_min_i32 s%d, s%d, s%d" % (t1, t1, dreg(i))) if i else ("s_mov_b32 s%d, s%d" % (t1, dreg(i))))
            else:
                a("s_add_i32 s%d, s%d, s%d" % (t1, t1, dreg(i)))
        if not mmin:
            a("s_ashr_i32 s%d, s%d, 3" % (t1, t1))
        a("s_add_i32 s%d, s%d, %d" % (t1, t1, b2))
        a("s_sub_i32 s%d, s%d, s%d" % (t1, t1, dreg(0)))
        a("s_max_i32 s%d, s%d, -256" % (t1, t1))
        a("s_min_i32 s%d, s%d, %d" % (t1, t1, mhi))
        a("s_cmp_gt_u32 s%d, %d" % (sTry, nit - 2 - 2 * mpub))
        a("s_cselect_b32 s%d, 0, s%d" % (t1, t1))
        a("v_mov_b32 v28, s%d" % t1)
        a("global_store_dword v24, v28, s[18:19]")
        a("s_sub_u32 s%d, s%d, 1" % (sTry, sTry))
        a("s_cmp_lg_u32 s%d, 0" % sTry)
        a("s_cbranch_scc1 L_m_loop")
        a("s_mov_b64 exec, -1")
        a("s_branch L_m_done")
        lab("L_m_idle")
        idle(nit * mp)
        lab("L_m_done")
        nb += nit * mp
    for r in range(4):
        a("s_mov_b32 s%d, 0x%08x" % (t0 + r, 0x07060500 + r))
    a("s_mov_b32 vcc_lo, 0xffff0000")
    a("s_mov_b32 vcc_hi, 0xffff0000")
    idle(NB + 1 - nb)
    c("1 / (sum of the softmax weights)")
    a("ds_read_b128 v[16:19], v2")
    a("ds_read_b128 v[20:23], v2 offset:16")
    a("s_waitcnt lgkmcnt(0)")
    a("v_add_f32 v16, v16, v17")
    a("v_add_f32 v18, v18, v19")
    a("v_add_f32 v20, v20, v21")
    a("v_add_f32 v22, v22, v23")
    a("v_add_f32 v16, v16, v18")
    a("v_add_f32 v20, v20, v22")
    a("v_add_f32 v16, v16, v20")
    a("v_rcp_f32 v17, v16")
    a("s_nop 0")
    a("v_fma_f32 v18, -v16, v17, 1.0")
    a("v_fma_f32 v17, v18, v17, v17")
    c("y = o x wo, 64 rows per barrier; rows 0-3 of the A operand are the four o partials")
    oacc = blk(6)
    for i in range(3):
        a("s_barrier")
        if i == 2:
            stamp(5)
        a("ds_read_b128 v[8:11], v1 offset:%d" % (128 * i))
        a("ds_read_b128 v[12:15], v1 offset:%d" % (128 * i + 64))
        for kk in range(2):
            ks = 2 * i + kk
            a("s_waitcnt lgkmcnt(%d)" % (1 - kk))
            for col in range(8):
                d = oacc + 4 * col
                a("%s %s, %s, %s, %s" % (MFMA, q4(d), q4(8 + 4 * kk), q4(blk(ks) + 4 * col), "0" if ks == 0 else q4(d)))
    a("s_nop 0")
    for col in range(8):
        d = oacc + 4 * col
        a("v_add_f32 v%d, v%d, v%d" % (d, d, d + 1))
        a("v_add_f32 v%d, v%d, v%d" % (d + 2, d + 2, d + 3))
        a("v_add_f32 v%d, v%d, v%d" % (d, d, d + 2))
    for r in range(4):
        a("v_cndmask_b32 v%d, v%d, v%d, vcc" % (20 + r, oacc + 4 * r, oacc + 16 + 4 * r))
    for r in range(4):
        a("v_mul_f32 v%d, v17, v%d" % (20 + r, 20 + r))
    for r in range(4):
        a("v_perm_b32 v%d, v%d, v%d, s%d" % (20 + r, 20 + r, vTag, t0 + r))
    a("s_mov_b32 exec_hi, 0")
    a("buffer_store_dwordx4 v[20:23], v%d, %s, 0 offen %s" % (vY, s4(YS), ypol))
    stamp(6)
    if ybar:
        if ybar == 1:
            a("s_waitcnt vmcnt(0)")
        a("s_barrier")
    if stamps:
        a("s_cmp_lg_u32 s%d, 0" % sHj)
        a("s_cbranch_scc1 L_h_st")
        flush_stamps([4, 5, 14])
        lab("L_h_st")
        a("s_cmp_lg_u32 s%d, 4" % sHj)
        a("s_cbranch_scc1 L_end")
        flush_stamps([6])
    lab("L_end")
    a("s_endpgm")
    return HEADER.format(lds=LDS, name=NAME) + "\n".join(L) + FOOTER.format(name=NAME)


if __name__ == "__main__":
    spec = json.loads(sys.argv[1])
    names = []
    for cfg in spec:
        cfg = dict(cfg)
        out = cfg.pop("out", None)
        name = out or ("work/k_" + "_".join("%s%s" % (k, str(v).replace(" ", "")) for k, v in cfg.items()) + ".s")
        open("code/" + name, "w").write(gen(**cfg))
        names.append(name)
    print(" ".join(names))
```

```python
import re, sys
sys.path.insert(0, "work")
import gen_kernel as g

def make(out, kend, k, base_ticks, **kw):
    s = g.gen(stamps=1, **kw)
    m = re.search(r'; @launch grid=(.*)\n', s)
    line = '; @launch kernel=%s grid=%s\n; @launch kernel=probe_kernel grid=(1,1,1) block=(64,1,1) lds=0\n' % (g.NAME, m.group(1))
    s = s.replace(m.group(0), line)
    L = []
    a = L.append
    a(".text\n.globl probe_kernel\n.p2align 8\n.type probe_kernel,@function\nprobe_kernel:")
    a("s_cmp_lg_u32 s2, 0")
    a("s_cbranch_scc1 P_end")
    a("s_load_dwordx2 s[4:5], s[0:1], 56")
    a("s_memrealtime s[10:11]")
    a("v_lshlrev_b32 v1, 7, v0")
    a("v_add_u32 v1, 0x4000000, v1")
    a("s_waitcnt lgkmcnt(0)")
    for i in range(4):
        a("global_load_dword v%d, v1, s[4:5]" % (2 + i))
        a("global_load_dword v%d, v1, s[4:5] offset:%d" % (6 + i, 8 * kend))
        a("v_add_u32 v1, 8192, v1")
    a("s_waitcnt vmcnt(0)")
    a("v_readfirstlane_b32 s12, v2")
    a("s_nop 1")
    a("s_sub_u32 s12, s12, 1000")
    for i in range(8):
        a("v_subrev_u32 v%d, s12, v%d" % (2 + i, 2 + i))
    a("v_min_u32 v2, v2, v3\nv_min_u32 v4, v4, v5\nv_min_u32 v2, v2, v4")
    a("v_max_u32 v6, v6, v7\nv_max_u32 v8, v8, v9\nv_max_u32 v6, v6, v8")
    a("s_mov_b32 s13, -1\ns_mov_b32 s14, 0\ns_mov_b32 s15, 0")
    a("P_red:")
    a("s_nop 4")
    a("v_readlane_b32 s16, v2, s15\nv_readlane_b32 s17, v6, s15")
    a("s_nop 1")
    a("s_min_u32 s13, s13, s16\ns_max_u32 s14, s14, s17")
    a("s_add_u32 s15, s15, 1\ns_cmp_lt_u32 s15, 64\ns_cbranch_scc1 P_red")
    a("s_sub_u32 s14, s14, s13")
    a("s_sub_i32 s14, s14, %d" % base_ticks)
    a("s_max_i32 s14, s14, 0")
    a("s_min_i32 s14, s14, 5000")
    a("s_mul_i32 s14, s14, %d" % k)
    a("s_add_u32 s14, s14, 1000")
    a("P_wait:")
    a("s_memrealtime s[18:19]")
    a("s_waitcnt lgkmcnt(0)")
    a("s_sub_u32 s18, s18, s10")
    a("s_cmp_lt_u32 s18, s14")
    a("s_cbranch_scc1 P_wait")
    a("P_end:")
    a("s_endpgm")
    a("""
.section .rodata,"a"
.p2align 6
.amdhsa_kernel probe_kernel
  .amdhsa_next_free_vgpr 16
  .amdhsa_next_free_sgpr 32
  .amdhsa_accum_offset 16
  .amdhsa_group_segment_fixed_size 0
  .amdhsa_kernarg_size 64
  .amdhsa_user_sgpr_count 2
  .amdhsa_user_sgpr_kernarg_segment_ptr 1
  .amdhsa_system_sgpr_workgroup_id_x 1
.end_amdhsa_kernel
""")
    open("code/" + out, "w").write(s + "\n".join(L))

make("work/pr_a.s", 7, 0, 10000)
make("work/pr_b.s", 7, 10, 10000)
make("work/pr_c.s", 3, 10, 10000)
make("work/pr_d.s", 1, 10, 0)
make("work/pr_e.s", 11, 10, 5000)
make("work/pr_f.s", 0, 50, 0)
```

```python
import json
import math
import struct
import sys

NAME = "standalone__mha_block_cached__sampling_kernel"

HEADER = """; Kernarg layout for this problem (64 bytes, ptrs only, base s[0:1]):
; @launch grid=(256,1,1) block=(512,1,1) lds={lds}
.amdgcn_target "amdgcn-amd-amdhsa--gfx950"
.text
.globl {name}
.p2align 8
.type {name},@function
{name}:
"""
FOOTER = """
.section .rodata,"a"
.p2align 6
.amdhsa_kernel {name}
  .amdhsa_next_free_vgpr 256
  .amdhsa_next_free_sgpr 96
  .amdhsa_accum_offset 256
  .amdhsa_group_segment_fixed_size 0
  .amdhsa_kernarg_size 64
  .amdhsa_user_sgpr_count 2
  .amdhsa_user_sgpr_kernarg_segment_ptr 1
  .amdhsa_system_sgpr_workgroup_id_x 1
  .amdhsa_float_denorm_mode_32 3
.end_amdhsa_kernel
"""

BH = 1572864
UNIT = 3072
RS = 4
TU = 8
NM = 1024 - TU
MFMA = "v_mfma_f32_16x16x32_bf16"


def f32bits(x):
    return struct.unpack("<I", struct.pack("<f", x))[0]


def gen(w1=18, NSLOT=44, wo_r0=14, wo_k=1, stamps=0, wqpol="nt", wopol="", prio=3, sleep=16, rsleep=8,
        ctl=1, pp=3, gain=112, bias=24, wlim=2, c0=12, pair=(172, 172, 168), wt=19, dbg=0, rpol="sc1", ypol="sc1", qpol="sc1", r0sleep=0, depth=2, thr=24, ybar=1, opol="", g2=12, mp=3, mpub=3, mend=12, sglc="glc", b2=-56, mmin=0, mhi=256, pb=4):
    L = []

    def a(s):
        L.append("    " + s)

    def lab(s):
        L.append(s + ":")

    def c(s):
        L.append("    ; " + s)

    def q4(r):
        return "v[%d:%d]" % (r, r + 3)

    def s4(r):
        return "s[%d:%d]" % (r, r + 3)

    RING = NSLOT * UNIT
    SC = RING
    MISC = SC + 16384
    Q = MISC
    MX = MISC + 384
    LS = MISC + 416
    WIN = MISC + 448
    MTOT = MISC + 452
    LDS = MISC + 512
    OP = SC
    OPS = 400
    assert LDS <= 163840 and NSLOT % RS == 0 and NM % NSLOT + TU <= NSLOT
    EB = 0xC0000
    QB = 0x100000
    PB = 0x200000

    wmax = w1 + (wlim if ctl else 0)
    wt = w1 if wt is None else wt
    R = -(-wmax // 3) + 1
    N0 = NSLOT - RS
    L0 = (N0 - R) // RS * RS
    NB = (NM - L0) // RS + 1
    ndouble = L0 // RS - 1
    steps = [1] + [2] * ndouble + [1] * (NB - 1 - ndouble)
    assert sum(steps) == NM // RS and len(steps) == NB
    cons = 0
    for j, st in enumerate(steps):
        assert min(1024, N0 + (j + 1) * RS + (TU if N0 + (j + 1) * RS > NM else 0)) - NSLOT <= cons
        cons += RS * st
        assert cons <= L0 + RS * j

    sW, sH, sB, sJ = 20, 21, 22, 23
    KV, WQ, WO, XS, YS, OS = 24, 28, 32, 36, 40, 44
    sVlo, sVhi = 48, 49
    t0, t1, t2, t3 = 50, 51, 52, 53
    stamp_reg = {k: 66 + 2 * k for k in range(15)}

    def stamp(k):
        if stamps:
            a("s_memrealtime s[%d:%d]" % (stamp_reg[k], stamp_reg[k] + 1))

    def flush_stamps(ks):
        if not stamps:
            return
        a("s_waitcnt lgkmcnt(0)")
        a("s_mov_b64 exec, 1")
        a("s_lshl_b32 s%d, s2, 7" % t0)
        a("s_add_u32 s%d, s%d, 0x4000000" % (t0, t0))
        a("v_mov_b32 v1, s%d" % t0)
        for k in ks:
            a("v_mov_b32 v2, s%d" % stamp_reg[k])
            a("v_mov_b32 v3, s%d" % (stamp_reg[k] + 1))
            a("global_store_dwordx2 v1, v[2:3], s[18:19] offset:%d" % (8 * k))
            a("s_nop 1")

    def srd(d, lo, hi, off_sreg, nbytes):
        a("s_add_u32 s%d, s%d, s%d" % (d, lo, off_sreg))
        a("s_addc_u32 s%d, s%d, 0" % (d + 1, hi))
        if isinstance(nbytes, int):
            a("s_mov_b32 s%d, %d" % (d + 2, nbytes))
        else:
            a(nbytes % (d + 2))
        a("s_mov_b32 s%d, 0x20000" % (d + 3))

    def load_row_tag(dst):
        c("tag word of this batch row's hand-off (advanced by 0x01010101 once it has arrived)")
        a("s_lshl_b32 s%d, s%d, 8" % (dst, sB))
        a("s_add_u32 s%d, s%d, 0x%x" % (dst, dst, EB))
        a("s_load_dword s%d, s[18:19], s%d" % (dst, dst))

    stamp(0)
    a("s_cmp_ge_u32 s2, 256")
    a("s_cbranch_scc1 L_end")
    a("s_load_dwordx16 s[4:19], s[0:1], 0")
    a("v_lshrrev_b32 v1, 6, v0")
    a("v_and_b32 v0, 63, v0")
    a("s_and_b32 s%d, s2, 7" % t0)
    a("v_readfirstlane_b32 s%d, v1" % sW)
    c("head = 4 * (id & 7) + ((id >> 3) & 3), batch = id >> 5")
    a("s_lshr_b32 s%d, s2, 3" % sJ)
    a("s_lshl_b32 s%d, s%d, 2" % (t0, t0))
    a("s_and_b32 s%d, s%d, 3" % (t1, sJ))
    a("s_add_u32 s%d, s%d, s%d" % (sH, t0, t1))
    a("s_lshr_b32 s%d, s%d, 2" % (sB, sJ))
    a("s_cmp_ge_u32 s%d, 3" % sW)
    a("s_cbranch_scc1 L_holder")
    a("s_cmp_ge_u32 s%d, 1" % sW)
    a("s_cbranch_scc1 L_consumer")

    c("======== loader ========")
    sM, sOff, sCnt, sSkip, sSeg, sMod, sWin, sRot = 54, 55, 57, 58, 59, 60, 61, 62
    sRet = 44
    vOff, vSh, vWa, vWv = 4, 8, 16, 17
    BIAS = 1792
    STEP = 4 * 384
    D0, D1, D2 = pair
    assert D0 + D1 + D2 == 512
    if prio:
        a("s_setprio %d" % prio)
    a("s_lshl_b32 s%d, s%d, 5" % (t0, sB))
    a("s_add_u32 s%d, s%d, s%d" % (t0, t0, sH))
    a("s_mul_i32 s%d, s%d, %d" % (t0, t0, BH))
    c("a unit is 4 keys (lanes 0-31) and the 4 keys about 64 KiB further on (lanes 32-63), 8 lanes per key.")
    c("1024 keys form three blocks of 2*%d, 2*%d and 2*%d keys; a unit may straddle two blocks." % pair)
    c("load i uses offset:1024*i, which is added to both addresses, so its lane offset carries 896*(2-i)")
    a("v_bfe_u32 v1, v0, 3, 2")
    a("v_lshrrev_b32 v3, 5, v0")
    a("v_mul_u32_u24 v2, 384, v1")
    a("v_and_b32 v%d, 7, v0" % vSh)
    a("v_lshl_add_u32 v2, v%d, 4, v2" % vSh)
    a("v_mul_u32_u24 v%d, %d, v3" % (vSh, D0 * 384))
    a("v_add_u32 v%d, v2, v%d" % (vSh, vSh))

    def shape(k):
        a("v_mov_b32 v%d, v%d" % (vOff + 2, vSh + k))
        a("v_add_u32 v%d, 896, v%d" % (vOff + 1, vSh + k))
        a("v_add_u32 v%d, 1792, v%d" % (vOff, vSh + k))

    shape(0)
    bounds = [D0, D0 + D1]
    segs = []
    pos = 0
    for bi, bd in enumerate(bounds + [512]):
        segs.append((2 * bi, bd // 4 - pos))
        pos = bd // 4
        if bd % 4:
            segs.append((2 * bi + 1, 1))
            pos += 1
    assert sum(n for _, n in segs) == 128
    NSEG = len(segs)
    c("the unit sequence starts sRot units into the first block and ends with the units skipped")
    assert TU + 1 + 7 * pb < segs[0][1]
    a("s_mul_i32 s%d, s%d, %d" % (sRot, sB, pb))
    a("s_add_u32 s%d, s%d, %d" % (sRot, sRot, TU + 1))

    def start_off():
        a("s_mul_i32 s%d, s%d, %d" % (sOff, sRot, STEP))
        a("s_mov_b32 s%d, 0" % sMod)
        a("s_sub_u32 s%d, %d, s%d" % (sCnt, segs[0][1] - 1, sRot))

    a("s_mov_b32 s%d, %d" % (sM, RING - RS * UNIT))
    a("s_mov_b32 s%d, 0" % sSeg)
    start_off()
    a("s_mov_b32 s%d, %d" % (sSkip, N0 // RS))
    a("s_waitcnt lgkmcnt(0)")
    a("s_sub_u32 s6, s6, %d" % BIAS)
    a("s_subb_u32 s7, s7, 0")
    srd(KV, 6, 7, t0, BH + BIAS)
    if stamps:
        a("s_mov_b32 s46, 0")
        a("s_memtime s[64:65]")

    def ld(i, so):
        a("buffer_load_dwordx4 v%d, %s, s%d offen offset:%d nt lds" % (vOff + i, s4(KV), so, 1024 * i))

    def round_body(w, tag, first=False):
        for u in range(RS):
            if u == 0:
                a("s_add_u32 s%d, s%d, %d" % (sM, sM, RS * UNIT))
                a("s_cmp_eq_u32 s%d, %d" % (sM, RING))
                a("s_cselect_b32 s%d, 0, s%d" % (sM, sM))
                a("s_mov_b32 m0, s%d" % sM)
            else:
                a("s_add_u32 m0, s%d, %d" % (sM, u * UNIT))
            a("s_nop 0" if first else "s_waitcnt vmcnt(%d)" % w)
            for i in range(3):
                ld(i, sOff)
            a("s_add_u32 s%d, s%d, %d" % (sOff, sOff, STEP))
            a("s_sub_u32 s%d, s%d, 1" % (sCnt, sCnt))
            if not first:
                a("s_cbranch_scc1 L_ld_seg_%s_%d" % (tag, u))
                lab("L_ld_cont_%s_%d" % (tag, u))

    c("first round, then the rest of the setup")
    assert TU + 1 + 7 * pb + RS < segs[0][1]
    round_body(0, "", first=True)
    a("s_sub_u32 s%d, s%d, 1" % (sSkip, sSkip))
    a("s_sub_u32 s8, s8, %d" % BIAS)
    a("s_subb_u32 s9, s9, 0")
    a("s_add_u32 s%d, s8, s%d" % (sVlo, t0))
    a("s_addc_u32 s%d, s9, 0" % sVhi)
    a("v_mul_u32_u24 v%d, %d, v3" % (vSh + 2, D1 * 384))
    a("v_add_u32 v%d, %d, v%d" % (vSh + 2, D0 * 384, vSh + 2))
    a("v_add_u32 v%d, v2, v%d" % (vSh + 2, vSh + 2))
    a("v_mul_u32_u24 v%d, %d, v3" % (vSh + 4, D2 * 384))
    a("v_add_u32 v%d, %d, v%d" % (vSh + 4, (D0 + D1) * 384, vSh + 4))
    a("v_add_u32 v%d, v2, v%d" % (vSh + 4, vSh + 4))
    for bi, bd in enumerate(bounds):
        if bd % 4:
            a("v_cmp_gt_u32 vcc, %d, v1" % (bd % 4))
            a("s_nop 1")
            a("v_cndmask_b32 v%d, v%d, v%d, vcc" % (vSh + 2 * bi + 1, vSh + 2 * bi + 2, vSh + 2 * bi))
    if ctl:
        a("v_mov_b32 v%d, %d" % (vWa, WIN))
        a("v_mov_b32 v%d, %d" % (vWv, w1))
    wins = list(range(w1 - wlim, w1 + wlim + 1)) if ctl else [w1]
    order = sorted(wins, key=lambda w: abs(w - w1))
    lab("L_ld")
    c("no barriers until the ring is full")
    a("s_sub_u32 s%d, s%d, 1" % (sSkip, sSkip))
    a("s_cbranch_scc0 L_ld_w%d" % order[0])
    if stamps:
        a("s_cmp_lg_u32 s46, 0")
        a("s_cbranch_scc1 L_st1")
        a("s_mov_b32 s46, 1")
        stamp(1)
        lab("L_st1")
    a("s_mov_b32 s%d, 0" % sSkip)
    if ctl:
        a("s_waitcnt lgkmcnt(0)")
        a("v_readfirstlane_b32 s%d, v%d" % (sWin, vWv))
        a("s_barrier")
        a("ds_read_b32 v%d, v%d" % (vWv, vWa))
        for w in order[1:]:
            a("s_cmp_eq_u32 s%d, %d" % (sWin, w))
            a("s_cbranch_scc1 L_ld_w%d" % w)
    else:
        a("s_barrier")
    for w in order:
        lab("L_ld_w%d" % w)
        round_body(w, str(w))
        a("s_branch L_ld")
    for w in order:
        for u in range(RS):
            lab("L_ld_seg_%d_%d" % (w, u))
            a("s_call_b64 s[%d:%d], L_ld_seg" % (sRet, sRet + 1))
            a("s_branch L_ld_cont_%d_%d" % (w, u))
    lab("L_ld_seg")
    c("end of a run of units with one lane-offset pattern: pick the next one")
    a("s_add_u32 s%d, s%d, 1" % (sSeg, sSeg))
    a("s_add_u32 s%d, s%d, 1" % (sMod, sMod))
    if stamps:
        for k, bn in ((8, 1), (9, NSEG), (10, 2 * NSEG), (11, 4 * NSEG + 1), (12, 6 * NSEG + 1)):
            a("s_cmp_lg_u32 s%d, %d" % (sSeg, bn))
            a("s_cbranch_scc1 L_st%d" % k)
            stamp(k)
            lab("L_st%d" % k)
    a("s_cmp_eq_u32 s%d, %d" % (sSeg, 4 * NSEG + 1))
    a("s_cbranch_scc1 L_ld_tov")
    a("s_cmp_eq_u32 s%d, %d" % (sSeg, 8 * NSEG + 2))
    a("s_cbranch_scc1 L_ld_done")
    for k in range(1, NSEG):
        a("s_cmp_lg_u32 s%d, %d" % (sMod, k))
        a("s_cbranch_scc1 L_ld_not%d" % k)
        shape(segs[k][0])
        a("s_mov_b32 s%d, %d" % (sCnt, segs[k][1] - 1))
        a("s_setpc_b64 s[%d:%d]" % (sRet, sRet + 1))
        lab("L_ld_not%d" % k)
    shape(0)
    a("s_mov_b32 s%d, 0" % sMod)
    a("s_add_u32 s%d, s%d, %d" % (sOff, sOff, 512 * 384))
    a("s_mov_b32 s%d, %d" % (sCnt, segs[0][1] - 1))
    a("s_cmp_lt_u32 s%d, %d" % (sOff, BH))
    a("s_cbranch_scc1 L_ld_ret")
    c("wrap to the units skipped at the start (over V, all but the last %d of them)" % TU)
    a("s_cmp_eq_u32 s%d, %d" % (sSeg, 4 * NSEG))
    a("s_cselect_b32 s%d, 0, %d" % (t0, TU))
    a("s_sub_u32 s%d, s%d, s%d" % (sRot, sRot, t0))
    a("s_mov_b32 s%d, 0" % sOff)
    a("s_sub_u32 s%d, s%d, 1" % (sCnt, sRot))
    lab("L_ld_ret")
    a("s_setpc_b64 s[%d:%d]" % (sRet, sRet + 1))
    lab("L_ld_tov")
    c("K done: same sequence over V")
    a("s_mov_b32 s%d, s%d" % (KV, sVlo))
    a("s_mov_b32 s%d, s%d" % (KV + 1, sVhi))
    start_off()
    a("s_setpc_b64 s[%d:%d]" % (sRet, sRet + 1))
    lab("L_ld_done")
    c("last %d units: all first thirds, then all second thirds, then all last thirds of the rows" % TU)
    a("s_mul_i32 s%d, s%d, %d" % (sOff, sRot, STEP))
    pend = {}
    for j in range((NM - 1 - N0) // RS + 1, NB):
        younger = 3 * (NM - (L0 + RS * j))
        k = max(0, wt - younger)
        pend.setdefault(k, []).append(younger + k)
    for k in range(3 * TU + 1):
        for n in pend.get(k, []):
            a("s_waitcnt vmcnt(%d)" % n)
            a("s_barrier")
        if k == 3 * TU:
            break
        i, u = divmod(k, TU)
        a("s_add_u32 s%d, s%d, %d" % (t0, sOff, u * STEP))
        a("s_mov_b32 m0, %d" % ((NM + u) % NSLOT * UNIT))
        a("s_waitcnt vmcnt(%d)" % (wt + 2))
        ld(i, t0)
    assert max(pend) <= 3 * TU
    stamp(2)
    for i in range(3):
        a("s_waitcnt vmcnt(%d)" % (TU * (2 - i)))
        a("s_barrier")
    stamp(3)
    if stamps:
        r13 = stamp_reg[13]
        a("s_memtime s[%d:%d]" % (r13, r13 + 1))
        a("s_waitcnt lgkmcnt(0)")
        a("s_sub_u32 s%d, s%d, s64" % (r13, r13))
        a("s_lshr_b32 s%d, s%d, 4" % (r13, r13))
        a("s_add_u32 s%d, s%d, s%d" % (r13, r13, stamp_reg[0]))
        a("s_addc_u32 s%d, s%d, 0" % (r13 + 1, stamp_reg[0] + 1))
    flush_stamps([0, 1, 2, 3, 8, 9, 10, 11, 12, 13])
    a("s_endpgm")

    c("======== consumers ========")
    lab("L_consumer")
    sC, sA0, sA1, sSc, sRound, sIn, sScale, sTagY = 54, 55, 56, 57, 58, 59, 60, 61
    sOne, sNext, sPub = 62, 64, 65
    vL16, vAd0, vAd1, vSA, vM, vLsum, vMc = 4, 5, 6, 7, 8, 9, 10
    vS, vT, vMask, vQ, vAcc, vAop, vD = 12, 16, 20, 24, 36, 48, 64
    vLad, vOad, vTad = 88, 89, 90
    vPa, vPo, vPv, vPw, vWin = 92, 93, 94, 95, 96
    a("s_sub_u32 s%d, s%d, 1" % (sC, sW))
    a("v_lshlrev_b32 v%d, 4, v0" % vL16)
    c("lane-constant masks: element (lane & 7) of an 8 x bf16 operand")
    a("v_and_b32 v%d, 1, v0" % vT)
    a("v_lshlrev_b32 v%d, 4, v%d" % (vT, vT))
    a("v_mov_b32 v%d, 0xffff" % (vT + 1))
    a("v_lshlrev_b32 v%d, v%d, v%d" % (vT, vT, vT + 1))
    a("v_bfe_u32 v%d, v0, 1, 2" % (vT + 1))
    for j in range(4):
        a("v_cmp_eq_u32 vcc, %d, v%d" % (j, vT + 1))
        a("s_nop 1")
        a("v_cndmask_b32 v%d, 0, v%d, vcc" % (vMask + j, vT))
    a("s_mul_i32 s%d, s%d, %d" % (sA0, sC, 2 * UNIT))
    a("s_add_u32 s%d, s%d, %d" % (sA1, sA0, UNIT))
    a("s_add_u32 s%d, s%d, %d" % (t0, sA0, NM % NSLOT * UNIT))
    a("v_add_u32 v%d, s%d, v%d" % (vTad, t0, vL16))
    a("v_lshrrev_b32 v%d, 3, v0" % vSA)
    a("v_lshlrev_b32 v%d, 3, v%d" % (vSA, vSA))
    a("s_lshl_b32 s%d, s%d, 6" % (t0, sC))
    a("s_add_u32 s%d, s%d, %d" % (t0, t0, SC))
    a("v_add_u32 v%d, s%d, v%d" % (vSA, t0, vSA))
    a("v_mov_b32 v%d, 0xff800000" % vM)
    a("v_mov_b32 v%d, 0" % vLsum)
    for i in range(12):
        a("v_mov_b32 v%d, 0" % (vAcc + i))
    a("v_lshrrev_b32 v%d, 4, v0" % vLad)
    a("v_lshlrev_b32 v%d, 2, v%d" % (vLad, vLad))
    a("s_lshl_b32 s%d, s%d, 4" % (t0, sC))
    a("s_add_u32 s%d, s%d, %d" % (t0, t0, MX))
    a("v_add_u32 v%d, s%d, v%d" % (vLad, t0, vLad))
    c("o partial row 2c + (lane >> 5), columns 8*(lane & 7) + 4*((lane >> 4) & 1) + 0..3 of each third")
    a("v_and_b32 v%d, 7, v0" % vOad)
    a("v_bfe_u32 v%d, v0, 4, 1" % vT)
    a("v_lshl_add_u32 v%d, v%d, 1, v%d" % (vOad, vOad, vT))
    a("v_lshlrev_b32 v%d, 3, v%d" % (vOad, vOad))
    a("v_lshrrev_b32 v%d, 5, v0" % vT)
    a("v_mul_u32_u24 v%d, %d, v%d" % (vT, OPS, vT))
    a("s_mul_i32 s%d, s%d, %d" % (t0, sC, 2 * OPS))
    a("s_add_u32 s%d, s%d, %d" % (t0, t0, OP))
    a("v_add3_u32 v%d, v%d, v%d, s%d" % (vOad, vOad, vT, t0))
    a("s_mov_b32 s%d, 0x01010101" % sOne)
    a("s_mov_b32 s%d, 0x01010101" % (sOne + 1))
    a("s_mov_b32 s%d, 0x%08x" % (sScale, f32bits(192 ** -0.5 * math.log2(math.e))))
    a("s_waitcnt lgkmcnt(0)")
    load_row_tag(sTagY)
    a("s_mul_i32 s%d, s%d, 81920" % (t0, sB))
    srd(YS, 18, 19, t0, 81920)
    a("s_mul_i32 s%d, s%d, 1280" % (t0, sB))
    srd(OS, 14, 15, t0, 1280)
    if ctl:
        c("progress words of the 32 workgroups whose id is equal mod 8, one cache line")
        a("s_and_b32 s%d, s2, 7" % t0)
        a("s_lshl_b32 s%d, s%d, 12" % (t0, t0))
        a("s_add_u32 s%d, s%d, 0x%x" % (t0, t0, PB))
        a("v_and_b32 v%d, 31, v0" % vPa)
        a("v_lshl_add_u32 v%d, v%d, 2, s%d" % (vPa, vPa, t0))
        a("s_lshl_b32 s%d, s%d, 2" % (t1, sJ))
        a("s_add_u32 s%d, s%d, s%d" % (t0, t0, t1))
        a("v_mov_b32 v%d, s%d" % (vPo, t0))
        if g2:
            c("lane 32 reads the group's offset word")
            a("s_sub_u32 s%d, s%d, s%d" % (t0, t0, t1))
            a("s_add_u32 s%d, s%d, 128" % (t0, t0))
            a("v_writelane_b32 v%d, s%d, 32" % (vPa, t0))
        a("v_mov_b32 v%d, %d" % (vWin, WIN))
        a("v_mov_b32 v%d, %d" % (vPw, w1))
        a("v_mov_b32 v%d, 0" % vPv)
        a("s_mov_b32 s%d, 0" % sPub)
        a("s_cmp_eq_u32 s%d, 1" % sC)
        a("s_cselect_b32 s%d, %d, 0x7fffffff" % (sNext, c0))
        a("s_cbranch_scc0 L_c_noinit")
        a("s_mov_b64 exec, 1")
        a("global_store_dword v%d, v%d, s[18:19]" % (vPo, vPv))
        a("s_mov_b64 exec, -1")
        lab("L_c_noinit")
        a("ds_write_b32 v%d, v%d" % (vWin, vPw))
    a("s_waitcnt lgkmcnt(0)")
    a("s_add_u32 s%d, s%d, 0x01010101" % (sTagY, sTagY))

    def control(tag):
        if not ctl:
            return
        a("s_cmp_lt_u32 s%d, s%d" % (sRound, sNext))
        a("s_cbranch_scc1 L_c_noctl%s" % tag)
        a("s_waitcnt vmcnt(0)")
        if g2:
            a("v_readlane_b32 s%d, v%d, 32" % (t2, vPv))
            a("s_lshl_b32 s%d, s%d, 5" % (t3, sPub))
        a("v_subrev_u32 v%d, s%d, v%d" % (vPv, sPub, vPv))
        a("v_add_u32 v%d, 24, v%d" % (vPw, vPv))
        a("v_cmp_gt_u32 vcc, 48, v%d" % vPw)
        a("s_mov_b32 s%d, s%d" % (sPub, sRound))
        a("s_add_u32 s%d, s%d, %d" % (sNext, sRound, pp))
        a("v_cndmask_b32 v%d, 0, v%d, vcc" % (vPw, vPv))
        a("v_mov_b32 v%d, s%d" % (vPv, sPub))
        a("s_mov_b64 exec, 1")
        a("global_store_dword v%d, v%d, s[18:19]" % (vPo, vPv))
        a("s_mov_b64 exec, -1")
        for dpp in ("quad_perm:[1,0,3,2]", "quad_perm:[2,3,0,1]", "row_half_mirror", "row_mirror"):
            a("v_add_u32_dpp v%d, v%d, v%d %s row_mask:0xf bank_mask:0xf" % (vPw, vPw, vPw, dpp))
            a("s_nop 1")
        a("global_load_dword v%d, v%d, s[18:19] sc1" % (vPv, vPa))
        a("v_readlane_b32 s%d, v%d, 0" % (t0, vPw))
        a("v_readlane_b32 s%d, v%d, 16" % (t1, vPw))
        a("s_nop 1")
        a("s_add_i32 s%d, s%d, s%d" % (t0, t0, t1))
        if g2:
            a("s_add_i32 s%d, s%d, s%d" % (t3, t3, t0))
            a("s_lshl_b32 s%d, s%d, 5" % (t1, sRound))
            a("s_sub_i32 s%d, s%d, s%d" % (t3, t3, t1))
            a("v_mov_b32 v%d, s%d" % (vPw, t3))
            a("ds_write_b32 v%d, v%d offset:4" % (vWin, vPw))
            a("s_add_u32 s%d, s%d, 0x200" % (t1, t2))
            a("s_cmp_lt_u32 s%d, 0x400" % t1)
            a("s_cselect_b32 s%d, s%d, 0" % (t2, t2))
            a("s_mul_i32 s%d, s%d, %d" % (t2, t2, g2))
            a("s_ashr_i32 s%d, s%d, 4" % (t2, t2))
            a("s_add_i32 s%d, s%d, s%d" % (t0, t0, t2))
        a("s_add_i32 s%d, s%d, %d" % (t0, t0, bias))
        a("s_mul_i32 s%d, s%d, %d" % (t0, t0, gain))
        a("s_add_i32 s%d, s%d, 2048" % (t0, t0))
        a("s_ashr_i32 s%d, s%d, 12" % (t0, t0))
        a("s_max_i32 s%d, s%d, %d" % (t0, t0, -wlim))
        a("s_min_i32 s%d, s%d, %d" % (t0, t0, wlim))
        a("s_add_i32 s%d, s%d, %d" % (t0, t0, w1))
        a("v_mov_b32 v%d, s%d" % (vPw, t0))
        a("ds_write_b32 v%d, v%d" % (vWin, vPw))
        lab("L_c_noctl%s" % tag)

    a("s_barrier")
    a("v_and_b32 v%d, 7, v0" % vT)
    a("v_lshlrev_b32 v%d, 4, v%d" % (vT, vT))
    a("v_add_u32 v%d, %d, v%d" % (vT, Q, vT))
    for i in range(3):
        a("ds_read_b128 %s, v%d offset:%d" % (q4(vQ + 4 * i), vT, 128 * i))
    a("s_mov_b32 s%d, 0" % sRound)
    a("s_mov_b32 s%d, 1" % sIn)
    a("s_mov_b32 s%d, 0" % sSc)

    def data_reads():
        a("v_add_u32 v%d, s%d, v%d" % (vAd0, sA0, vL16))
        for u in range(2):
            for i in range(3):
                a("ds_read_b128 %s, v%d offset:%d" % (q4(vD + 12 * u + 4 * i), vAd0, UNIT * u + 1024 * i))
        for s in (sA0,):
            a("s_add_u32 s%d, s%d, %d" % (s, s, RS * UNIT))
            a("s_cmp_ge_u32 s%d, %d" % (s, RING))
            a("s_cselect_b32 s%d, %d, 0" % (t0, RING))
            a("s_sub_u32 s%d, s%d, s%d" % (s, s, t0))

    def weights(n):
        for u in range(n):
            a("v_fma_f32 v%d, v%d, s%d, -v%d" % (vS + u, vS + u, sScale, vMc))
        for u in range(n):
            a("v_exp_f32 v%d, v%d" % (vS + u, vS + u))
        a("s_add_u32 s%d, s%d, 1" % (sSc, sSc))
        for u in range(n):
            a("v_cvt_pk_bf16_f32 v%d, v%d, v%d" % (vT + u, vS + u, vS + u))
        for u in range(n):
            for j in range(4):
                a("v_and_b32 v%d, v%d, v%d" % (vAop + 4 * u + j, vMask + j, vT + u))
        for u in range(n):
            a("v_add_f32 v%d, v%d, v%d" % (vLsum, vLsum, vS + u))

    c("---- K steps: scores of 2 units")
    lab("L_c_k")
    data_reads()
    for u in range(2):
        for i in range(3):
            a("s_waitcnt lgkmcnt(%d)" % (5 - 3 * u - i))
            for k in range(4):
                src = "0" if (i == 0 and k == 0) else "v%d" % (vS + u)
                a("v_dot2_f32_bf16 v%d, v%d, v%d, %s" % (vS + u, vD + 12 * u + 4 * i + k, vQ + 4 * i + k, src))
    for step, dpp in enumerate(("quad_perm:[1,0,3,2]", "quad_perm:[2,3,0,1]", "row_half_mirror")):
        a("v_add_f32_dpp v%d, v%d, v%d %s row_mask:0xf bank_mask:0xf" % (vS, vS, vS, dpp))
        a("s_nop %d" % (1 if step == 0 else 0))
        a("v_add_f32_dpp v%d, v%d, v%d %s row_mask:0xf bank_mask:0xf" % (vS + 1, vS + 1, vS + 1, dpp))
    a("s_add_u32 s%d, s%d, 1" % (sSc, sSc))
    a("v_max3_f32 v%d, v%d, v%d, v%d" % (vM, vM, vS, vS + 1))
    a("s_mov_b64 exec, s[%d:%d]" % (sOne, sOne + 1))
    a("ds_write_b64 v%d, v[%d:%d]" % (vSA, vS, vS + 1))
    a("s_mov_b64 exec, -1")
    a("v_add_u32 v%d, 128, v%d" % (vSA, vSA))
    a("s_cmp_eq_u32 s%d, 128" % sSc)
    a("s_cbranch_scc1 L_c_kdone")
    a("s_sub_u32 s%d, s%d, 1" % (sIn, sIn))
    a("s_cmp_lg_u32 s%d, 0" % sIn)
    a("s_cbranch_scc1 L_c_k")
    a("s_add_u32 s%d, s%d, 1" % (sRound, sRound))
    control("k")
    a("s_cmp_lt_u32 s%d, %d" % (sRound, 1 + ndouble))
    a("s_cselect_b32 s%d, 2, 1" % sIn)
    a("s_barrier")
    a("s_branch L_c_k")
    lab("L_c_kdone")
    assert 1 + 2 * ndouble < 128
    c("exact row max over all 4096 scores, shared through LDS")
    a("s_nop 1")
    a("v_max_f32_dpp v%d, v%d, v%d row_ror:8 row_mask:0xf bank_mask:0xf" % (vM, vM, vM))
    a("ds_write_b32 v%d, v%d" % (vLad, vM))
    a("s_add_u32 s%d, s%d, 1" % (sRound, sRound))
    a("v_subrev_u32 v%d, %d, v%d" % (vSA, 16384, vSA))
    a("s_waitcnt lgkmcnt(0)")
    a("s_barrier")
    a("v_mov_b32 v%d, %d" % (vT, MX))
    a("ds_read_b128 %s, v%d" % (q4(vAop), vT))
    a("ds_read_b128 %s, v%d offset:16" % (q4(vAop + 4), vT))
    a("s_waitcnt lgkmcnt(0)")
    a("v_max3_f32 v%d, v%d, v%d, v%d" % (vM, vAop, vAop + 1, vAop + 2))
    a("v_max3_f32 v%d, v%d, v%d, v%d" % (vM, vM, vAop + 3, vAop + 4))
    a("v_max3_f32 v%d, v%d, v%d, v%d" % (vM, vM, vAop + 5, vAop + 6))
    a("v_max_f32 v%d, v%d, v%d" % (vM, vM, vAop + 7))
    a("v_mul_f32 v%d, s%d, v%d" % (vMc, sScale, vM))
    a("s_mov_b32 s%d, 0" % sSc)
    c("---- V steps: acc += diag(p) x V for 2 units")
    lab("L_c_v")
    a("ds_read_b64 v[%d:%d], v%d" % (vS, vS + 1, vSA))
    data_reads()
    a("v_add_u32 v%d, 128, v%d" % (vSA, vSA))
    a("s_waitcnt lgkmcnt(6)")
    weights(2)
    for u in range(2):
        for i in range(3):
            a("s_waitcnt lgkmcnt(%d)" % (5 - 3 * u - i))
            a("%s %s, %s, %s, %s" % (MFMA, q4(vAcc + 4 * i), q4(vAop + 4 * u), q4(vD + 12 * u + 4 * i), q4(vAcc + 4 * i)))
    a("s_cmp_eq_u32 s%d, %d" % (sSc, 128 - TU // RS))
    a("s_cbranch_scc1 L_c_vdone")
    if ctl:
        a("s_add_u32 s%d, s%d, 1" % (sRound, sRound))
        control("v")
    a("s_barrier")
    a("s_branch L_c_v")
    lab("L_c_vdone")
    c("last units: weights first, then one third of the columns per barrier, each published as bf16")
    a("ds_read_b64 v[%d:%d], v%d" % (vS, vS + 1, vSA))
    a("ds_read_b64 v[%d:%d], v%d offset:128" % (vS + 2, vS + 3, vSA))
    a("s_waitcnt lgkmcnt(0)")
    weights(4)
    a("s_nop 1")
    a("v_add_f32_dpp v%d, v%d, v%d row_ror:8 row_mask:0xf bank_mask:0xf" % (vLsum, vLsum, vLsum))
    a("ds_write_b32 v%d, v%d offset:%d" % (vLad, vLsum, LS - MX))
    a("s_waitcnt lgkmcnt(0)")
    for i in range(3):
        a("s_barrier")
        for u in range(4):
            a("ds_read_b128 %s, v%d offset:%d" % (q4(vD + 4 * u), vTad, (u // 2) * RS * UNIT + (u % 2) * UNIT + 1024 * i))
        for u in range(4):
            a("s_waitcnt lgkmcnt(%d)" % (3 - u))
            a("%s %s, %s, %s, %s" % (MFMA, q4(vAcc + 4 * i), q4(vAop + 4 * u), q4(vD + 4 * u), q4(vAcc + 4 * i)))
        a("s_nop 5")
        a("s_mov_b32 exec_lo, 0x00ff00ff")
        a("s_mov_b32 exec_hi, 0xff00ff00")
        a("v_cvt_pk_bf16_f32 v%d, v%d, v%d" % (vT, vAcc + 4 * i, vAcc + 4 * i + 1))
        a("v_cvt_pk_bf16_f32 v%d, v%d, v%d" % (vT + 1, vAcc + 4 * i + 2, vAcc + 4 * i + 3))
        a("ds_write_b64 v%d, v[%d:%d] offset:%d" % (vOad, vT, vT + 1, 128 * i))
        a("s_mov_b64 exec, -1")
        a("s_waitcnt lgkmcnt(0)")
    a("s_barrier")
    c("wave 1 of the workgroups with head < 20 sums 32 output columns over the 32 heads")
    a("s_cmp_lg_u32 s%d, 0" % sC)
    a("s_cbranch_scc1 L_end")
    a("s_cmp_ge_u32 s%d, 20" % sH)
    a("s_cbranch_scc1 L_r_done")
    sTry, sGo = sA0, sA1
    G = vD
    a("s_lshl_b32 s%d, s%d, 12" % (sGo, sH))
    a("s_mov_b32 s%d, 0" % sTry)
    for r in range(4):
        a("s_bfe_u32 s%d, s%d, 0x%x" % (t0 + r, sTagY, (8 << 16) | (8 * r)))
    a("v_and_b32 v1, 7, v0")
    a("v_bfe_u32 v2, v0, 4, 1")
    a("v_lshrrev_b32 v3, 5, v0")
    a("v_lshl_add_u32 v2, v2, 1, v3")
    a("v_lshl_add_u32 v1, v1, 2, v2")
    a("v_lshlrev_b32 v1, 1, v1")
    if r0sleep:
        a("s_sleep %d" % r0sleep)
    if ybar:
        c("wait until this workgroup's own records are written")
        a("s_barrier")
    sets = [100 + 16 * d for d in range(depth)]

    def poll(P):
        for k in range(4):
            a("buffer_load_dwordx4 %s, v%d, %s, s%d offen offset:%d %s" % (q4(P + 4 * k), vL16, s4(YS), sGo, 1024 * k, rpol))

    for P in sets[:-1]:
        poll(P)
    lab("L_r_poll")
    for d, P in enumerate(sets):
        poll(sets[d - 1])
        for k in range(4):
            a("s_waitcnt vmcnt(%d)" % (4 * (depth - 1) + 3 - k))
            for r in range(4):
                a("v_xor_b32 v%d, s%d, v%d" % (G + 4 * k + r, t0 + r, P + 4 * k + r))
            if k == 0:
                a("v_or3_b32 v2, v%d, v%d, v%d" % (G, G + 1, G + 2))
                a("v_or_b32 v2, v2, v%d" % (G + 3))
            else:
                a("v_or3_b32 v2, v2, v%d, v%d" % (G + 4 * k, G + 4 * k + 1))
                a("v_or3_b32 v2, v2, v%d, v%d" % (G + 4 * k + 2, G + 4 * k + 3))
        a("v_and_b32 v2, 0xff, v2")
        a("v_cmp_ne_u32 vcc, 0, v2")
        a("s_cbranch_vccz L_r_sum")
        if rsleep:
            a("s_bcnt1_i32_b64 s%d, vcc" % sSc)
            a("s_cmp_le_u32 s%d, %d" % (sSc, thr))
            a("s_cbranch_scc1 L_r_near%d" % d)
            a("s_sleep %d" % rsleep)
            lab("L_r_near%d" % d)
    a("s_add_u32 s%d, s%d, 1" % (sTry, sTry))
    a("s_cmp_lt_u32 s%d, 0x100000" % sTry)
    a("s_cbranch_scc1 L_r_poll")
    lab("L_r_sum")
    for r in range(4):
        a("v_add_f32 v%d, v%d, v%d" % (G + r, G + r, G + 4 + r))
        a("v_add_f32 v%d, v%d, v%d" % (G + 8 + r, G + 8 + r, G + 12 + r))
    for r in range(4):
        a("v_add_f32 v%d, v%d, v%d" % (G + r, G + r, G + 8 + r))
    a("s_lshl_b32 s%d, s%d, 6" % (sGo, sH))
    a("s_nop 0")
    a("v_permlane32_swap_b32 v%d, v%d" % (G, G + 1))
    a("v_permlane32_swap_b32 v%d, v%d" % (G + 2, G + 3))
    a("s_nop 0")
    a("v_add_f32 v%d, v%d, v%d" % (G, G, G + 1))
    a("v_add_f32 v%d, v%d, v%d" % (G + 2, G + 2, G + 3))
    a("s_nop 1")
    a("v_permlane16_swap_b32 v%d, v%d" % (G, G + 2))
    a("s_nop 0")
    a("v_add_f32 v%d, v%d, v%d" % (G, G, G + 2))
    a("s_nop 1")
    a("v_add_f32_dpp v%d, v%d, v%d row_ror:8 row_mask:0xf bank_mask:0xf" % (G, G, G))
    a("s_mov_b32 exec_lo, 0x00ff00ff")
    a("s_mov_b32 exec_hi, 0x00ff00ff")
    a("v_cvt_pk_bf16_f32 v%d, v%d, v%d" % (G, G, G))
    a("buffer_store_short v%d, v1, %s, s%d offen %s" % (G, s4(OS), sGo, opol))
    c("every workgroup of this row has read the tag word: advance it for the next launch")
    a("s_cmp_lg_u32 s%d, 0" % sH)
    a("s_cbranch_scc1 L_r_done")
    a("s_lshl_b32 s%d, s%d, 8" % (t0, sB))
    a("s_add_u32 s%d, s%d, 0x%x" % (t0, t0, EB))
    a("s_mov_b64 exec, 1")
    a("v_mov_b32 v1, s%d" % t0)
    a("v_mov_b32 v2, s%d" % sTagY)
    a("global_store_dword v1, v2, s[18:19] sc1")
    lab("L_r_done")
    if stamps:
        a("s_waitcnt vmcnt(0)")
        stamp(7)
        flush_stamps([7])
    a("s_endpgm")

    c("======== holders ========")
    lab("L_holder")
    sHj, sO, sTag, sTagR, sLoop, sTry = 54, 55, 56, 57, 58, 59
    sPlo, sPhi = 60, 61
    vWq, vWo, vY, vTag = 4, 5, 6, 7
    vX = 8
    blk = lambda k: 32 + 32 * k
    a("s_sub_u32 s%d, s%d, 3" % (sHj, sW))
    a("s_mov_b32 s%d, 0x05040100" % sPlo)
    a("s_mov_b32 s%d, 0x07060302" % sPhi)
    a("s_cmp_lg_u32 s%d, 0" % sHj)
    a("s_cbranch_scc1 L_h_setup")
    c("q projection, shared by the 8 workgroups of the head: workgroup b < 6 multiplies x (all 8 rows) by")
    c("rows [320*(b/3), +320) x columns [64*(b%3), +64) of the head's wq slice and sends each row to its owner")
    a("v_and_b32 v1, 7, v0")
    a("v_bfe_u32 v2, v0, 3, 1")
    a("v_lshrrev_b32 v3, 4, v0")
    a("v_lshl_add_u32 v29, v2, 2, v3")
    a("v_mul_u32_u24 v%d, %d, v29" % (vWq, 8 * 12288))
    a("v_lshl_add_u32 v%d, v1, 4, v%d" % (vWq, vWq))
    a("v_mul_u32_u24 v30, 1280, v1")
    a("v_lshl_add_u32 v30, v29, 4, v30")
    a("v_lshlrev_b32 v31, 11, v1")
    a("s_cmp_ge_u32 s%d, 3" % sB)
    a("s_cselect_b32 s%d, 320, 0" % t2)
    a("s_cselect_b32 s%d, 3, 0" % t3)
    a("s_sub_u32 s%d, s%d, s%d" % (t3, sB, t3))
    a("s_mul_i32 s%d, s%d, 12288" % (sO, t2))
    a("s_lshl_b32 s%d, s%d, 7" % (t3, t3))
    a("s_add_u32 s%d, s%d, s%d" % (sO, sO, t3))
    a("s_lshl_b32 s%d, s%d, 1" % (t2, t2))
    a("s_mul_i32 s%d, s%d, 384" % (t0, sH))
    a("s_lshl_b32 s%d, s%d, 14" % (t1, sH))
    a("s_add_u32 s%d, s%d, 0x%x" % (t1, t1, QB))
    a("s_waitcnt lgkmcnt(0)")
    srd(YS, 18, 19, t1, 16384)
    load_row_tag(sTagR)
    c("tags of the 8 receivers: the words found in d_ws, advanced")
    a("buffer_load_dword v%d, v31, %s, 0 offen offset:1536 sc1" % (vTag, s4(YS)))
    a("s_cmp_ge_u32 s%d, 6" % sB)
    a("s_cbranch_scc1 L_q_tag")
    srd(WQ, 10, 11, t0, "s_sub_u32 s%%d, 7864320, s%d" % t0)
    a("s_mov_b32 s%d, s4" % XS)
    a("s_mov_b32 s%d, s5" % (XS + 1))
    a("s_mov_b32 s%d, 10240" % (XS + 2))
    a("s_mov_b32 s%d, 0x20000" % (XS + 3))
    for rb in range(5):
        for i in range(8):
            a("buffer_load_dwordx4 %s, v%d, %s, s%d offen %s" % (q4(blk(rb + 1) + 4 * i), vWq, s4(WQ), sO, wqpol))
            a("s_add_u32 s%d, s%d, %d" % (sO, sO, 12288 if i < 7 else 57 * 12288))
        a("buffer_load_dwordx4 %s, v30, %s, s%d offen offset:%d" % (q4(vX + 4 * rb), s4(XS), t2, 128 * rb))
    a("v_lshl_add_u32 v31, v29, 4, v31")
    a("s_lshl_b32 s%d, s%d, 8" % (sO, sB))
    qacc = blk(6)

    def transpose(dst, src, col):
        for p in range(4):
            a("v_perm_b32 v%d, v%d, v%d, s%d" % (dst + 4 * col + p, src + 4 * (2 * p + 1) + col // 2,
                                                src + 4 * (2 * p) + col // 2, sPhi if col % 2 else sPlo))

    for rb in range(5):
        a("s_waitcnt vmcnt(%d)" % (9 * (4 - rb)))
        transpose(blk(0), blk(rb + 1), 0)
        for col in range(8):
            if col < 7:
                transpose(blk(0), blk(rb + 1), col + 1)
            else:
                a("s_nop 0")
            d = qacc + 4 * col
            a("%s %s, %s, %s, %s" % (MFMA, q4(d), q4(blk(0) + 4 * col), q4(vX + 4 * rb), "0" if rb == 0 else q4(d)))
    a("v_add_u32 v%d, 0x01010101, v%d" % (vTag, vTag))
    for r in range(4):
        a("s_mov_b32 s%d, 0x%08x" % (t0 + r, 0x07060500 + r))
    a("s_nop 3")
    c("add the two 32-row halves; lanes 0-7 / 8-15 of each row end up with even / odd columns")
    for col in range(4):
        for r in range(4):
            a("v_permlane32_swap_b32 v%d, v%d" % (qacc + 4 * col + r, qacc + 4 * (col + 4) + r))
    for st in range(2):
        for r in range(4):
            a("v_add_f32_dpp v%d, v%d, v%d row_ror:8 row_mask:0xf bank_mask:0x3" % (vX + 4 * st + r, qacc + 4 * (2 * st + 4) + r, qacc + 4 * (2 * st) + r))
    for st in range(2):
        for r in range(4):
            a("v_add_f32_dpp v%d, v%d, v%d row_ror:8 row_mask:0xf bank_mask:0xc" % (vX + 4 * st + r, qacc + 4 * (2 * st + 1) + r, qacc + 4 * (2 * st + 5) + r))
    c("the low byte of each word carries one byte of the receiver's tag")
    for st in range(2):
        for r in range(4):
            t = vX + 4 * st + r
            a("v_perm_b32 v%d, v%d, v%d, s%d" % (t, t, vTag, t0 + r))
        a("buffer_store_dwordx4 %s, v31, %s, s%d offen offset:%d sc1" % (q4(vX + 4 * st), s4(YS), sO, 128 * st))
    a("s_branch L_q_gather")
    lab("L_q_tag")
    a("s_waitcnt vmcnt(0)")
    a("v_add_u32 v%d, 0x01010101, v%d" % (vTag, vTag))
    lab("L_q_gather")
    stamp(4)
    a("v_lshlrev_b32 v1, 4, v0")
    a("v_readlane_b32 s%d, v%d, s%d" % (sTag, vTag, sB))
    a("s_lshl_b32 s%d, s%d, 11" % (sO, sB))
    a("s_mov_b32 s%d, 0" % sTry)
    a("s_mov_b32 s%d, 0x0c0c0400" % t0)
    a("s_mov_b32 s%d, 0x04000c0c" % t1)
    a("s_mov_b32 s%d, 0x07060500" % t2)
    a("s_mov_b32 exec_hi, 0xffff")
    GA, GB = 16, 20
    lab("L_q_poll")
    a("buffer_load_dwordx4 %s, v1, %s, s%d offen %s" % (q4(GA), s4(YS), sO, qpol))
    a("buffer_load_dwordx4 %s, v1, %s, s%d offen offset:768 %s" % (q4(GB), s4(YS), sO, qpol))
    a("s_add_u32 s%d, s%d, 1" % (sTry, sTry))
    a("s_waitcnt vmcnt(0)")
    for g, t in ((GA, 24), (GB, 26)):
        a("v_perm_b32 v%d, v%d, v%d, s%d" % (t, g + 1, g, t0))
        a("v_perm_b32 v%d, v%d, v%d, s%d" % (t + 1, g + 3, g + 2, t1))
        a("v_or_b32 v%d, v%d, v%d" % (t, t, t + 1))
    a("v_xor_b32 v24, s%d, v24" % sTag)
    a("v_xor_b32 v26, s%d, v26" % sTag)
    a("v_or_b32 v24, v24, v26")
    a("v_cmp_ne_u32 vcc, 0, v24")
    a("s_cbranch_vccz L_q_got")
    if sleep:
        a("s_sleep %d" % sleep)
    a("s_cmp_lt_u32 s%d, 0x100000" % sTry)
    a("s_cbranch_scc1 L_q_poll")
    lab("L_q_got")
    a("v_mov_b32 v24, 0x80")
    a("v_lshrrev_b32 v2, 4, v0")
    a("v_lshlrev_b32 v2, 6, v2")
    a("v_and_b32 v3, 1, v0")
    a("v_lshl_add_u32 v2, v3, 5, v2")
    a("v_bfe_u32 v3, v0, 2, 2")
    a("v_add_u32 v2, v2, v3")
    a("v_bfe_u32 v3, v0, 1, 1")
    a("v_lshl_add_u32 v2, v3, 2, v2")
    a("v_lshlrev_b32 v2, 1, v2")
    a("v_add_u32 v2, %d, v2" % Q)
    for r in range(8):
        a("v_perm_b32 v%d, v%d, v24, s%d" % (GA + r, GA + r, t2))
    for r in range(4):
        a("v_add_f32 v%d, v%d, v%d" % (GA + r, GA + r, GB + r))
    a("v_cvt_pk_bf16_f32 v%d, v%d, v%d" % (GA, GA, GA + 1))
    a("v_cvt_pk_bf16_f32 v%d, v%d, v%d" % (GA + 2, GA + 2, GA + 3))
    a("ds_write_b16 v2, v%d" % GA)
    a("ds_write_b16_d16_hi v2, v%d offset:16" % GA)
    a("ds_write_b16 v2, v%d offset:32" % (GA + 2))
    a("ds_write_b16_d16_hi v2, v%d offset:48" % (GA + 2))
    c("all six senders have read this workgroup's tag word: advance it for the next launch")
    a("v_mov_b32 v3, s%d" % sTag)
    a("s_mov_b64 exec, 1")
    a("buffer_store_dword v3, v1, %s, s%d offen offset:1536 sc1" % (s4(YS), sO))
    a("s_mov_b64 exec, -1")
    stamp(14)
    a("s_branch L_h_go")
    lab("L_h_setup")
    a("s_waitcnt lgkmcnt(0)")
    load_row_tag(sTagR)
    if g2:
        c("the group's offset word starts at zero")
        a("s_and_b32 s%d, s2, 7" % t0)
        a("s_lshl_b32 s%d, s%d, 12" % (t0, t0))
        a("s_add_u32 s%d, s%d, 0x%x" % (t0, t0, PB + 128))
        a("v_mov_b32 v24, s%d" % t0)
        a("v_add_u32 v25, 1920, v24")
        a("v_mov_b32 v26, 0")
        a("s_lshl_b32 s%d, s%d, 3" % (t1, sJ))
        a("s_add_u32 s%d, s%d, s%d" % (t1, t1, sHj))
        a("s_cmp_lg_u32 s%d, 1" % t1)
        a("s_cbranch_scc1 L_m_noinit")
        a("s_mov_b64 exec, 1")
        a("global_store_dword v24, v26, s[18:19]")
        a("s_mov_b64 exec, -1")
        lab("L_m_noinit")
    lab("L_h_go")
    a("s_waitcnt lgkmcnt(0)")
    a("s_barrier")
    nb = 1
    a("s_add_u32 s%d, s%d, 0x01010101" % (sTagR, sTagR))
    a("s_mul_i32 s%d, s%d, 245760" % (t0, sH))
    srd(WO, 12, 13, t0, 245760)
    a("s_mul_i32 s%d, s%d, 81920" % (t0, sB))
    srd(YS, 18, 19, t0, 81920)
    c("this wave holds columns [128*j, +128) of all 192 rows: lane = (8-row group, 8-column chunk)")
    a("v_lshrrev_b32 v1, 4, v0")
    a("v_and_b32 v2, 15, v0")
    a("v_mul_u32_u24 v%d, 10240, v1" % vWo)
    a("v_lshl_add_u32 v%d, v2, 4, v%d" % (vWo, vWo))
    a("s_lshl_b32 s%d, s%d, 8" % (t0, sHj))
    a("v_add_u32 v%d, s%d, v%d" % (vWo, t0, vWo))
    c("hand-off record [32-column group][head][128 bytes]")
    a("v_bfe_u32 v3, v0, 2, 2")
    a("v_lshlrev_b32 v%d, 12, v3" % vY)
    a("v_and_b32 v3, 3, v0")
    a("v_lshl_add_u32 v%d, v3, 5, v%d" % (vY, vY))
    a("v_lshl_add_u32 v%d, v1, 4, v%d" % (vY, vY))
    a("s_lshl_b32 s%d, s%d, 14" % (t0, sHj))
    a("s_lshl_b32 s%d, s%d, 7" % (t1, sH))
    a("s_add_u32 s%d, s%d, s%d" % (t0, t0, t1))
    a("v_add_u32 v%d, s%d, v%d" % (vY, t0, vY))
    a("v_mov_b32 v%d, s%d" % (vTag, sTagR))

    def idle(n):
        if n <= 2:
            for _ in range(n):
                a("s_barrier")
            return
        name = "L_h_idle%d" % len(L)
        a("s_mov_b32 s%d, %d" % (sLoop, n))
        lab(name)
        a("s_barrier")
        a("s_sub_u32 s%d, s%d, 1" % (sLoop, sLoop))
        a("s_cmp_lg_u32 s%d, 0" % sLoop)
        a("s_cbranch_scc1 %s" % name)

    idle(wo_r0)
    nb += wo_r0
    n = 0
    while n < 48:
        for _ in range(wo_k):
            ks, i = divmod(n, 8)
            if i % 4 == 0:
                a("s_mov_b32 s%d, %d" % (sO, ks * 40960 + (i // 4) * 5120))
            a("buffer_load_dwordx4 %s, v%d, %s, s%d offen offset:%d %s" % (q4(blk(ks + 1) + 4 * i), vWo, s4(WO), sO, (i % 4) * 1280, wopol))
            n += 1
        a("s_barrier")
        nb += 1
    idle(8)
    nb += 8
    a("s_waitcnt vmcnt(0)")
    c("transpose each 8x8 block into the previous block's registers: MFMA operands with k along rows")
    for ks in range(6):
        for col in range(8):
            transpose(blk(ks), blk(ks + 1), col)
        a("s_barrier")
        nb += 1
    a("v_and_b32 v1, 3, v0")
    a("v_mul_u32_u24 v1, %d, v1" % OPS)
    a("v_lshrrev_b32 v2, 4, v0")
    a("v_lshl_add_u32 v1, v2, 4, v1")
    a("v_add_u32 v1, %d, v1" % OP)
    a("v_mov_b32 v2, %d" % LS)
    if g2:
        c("one wave per group compares the group's progress with the other seven groups'")
        nit = (NB - mend - nb) // mp
        sAd, sNew, sPrev, sD, sR, sPc, sMo = 4, 24, 32, 44, 62, 63, 12
        a("s_lshl_b32 s%d, s%d, 3" % (t1, sJ))
        a("s_add_u32 s%d, s%d, s%d" % (t1, t1, sHj))
        a("s_cmp_lg_u32 s%d, 1" % t1)
        a("s_cbranch_scc1 L_m_idle")
        for i in range(8):
            a("s_add_u32 s%d, s2, %d" % (t0, i))
            a("s_and_b32 s%d, s%d, 7" % (t0, t0))
            a("s_lshl_b32 s%d, s%d, 12" % (t0, t0))
            a("s_add_u32 s%d, s%d, 0x%x" % (sAd + i, t0, PB + 2048))
            a("s_load_dword s%d, s[18:19], s%d %s" % (sNew + i, sAd + i, sglc))
        a("v_mov_b32 v27, %d" % MTOT)
        a("s_mov_b32 s%d, %d" % (sR, nb))
        a("s_mov_b32 s%d, %d" % (sPc, 1))
        a("s_mov_b32 s%d, %d" % (sTry, nit - 1))
        a("s_mov_b64 exec, 1")
        idle(mp)
        a("s_waitcnt lgkmcnt(0)")
        for i in range(8):
            a("s_mov_b32 s%d, s%d" % (sPrev + i, sNew + i))
            a("s_mov_b32 s%d, 0" % (sD + i if i < 4 else 13 + i - 4))
        dreg = lambda i: sD + i if i < 4 else 13 + i - 4
        lab("L_m_loop")
        a("s_add_u32 s%d, s%d, %d" % (sR, sR, mp))
        a("ds_read_b32 v26, v27")
        a("s_waitcnt lgkmcnt(0)")
        a("v_readfirstlane_b32 s%d, v26" % sMo)
        a("s_lshl_b32 s%d, s%d, 5" % (t0, sR))
        a("s_add_i32 s%d, s%d, s%d" % (sMo, sMo, t0))
        for i in range(8):
            a("s_load_dword s%d, s[18:19], s%d %s" % (sNew + i, sAd + i, sglc))
        a("s_sub_u32 s%d, s%d, 1" % (sPc, sPc))
        a("s_cbranch_scc0 L_m_nopub")
        a("s_mov_b32 s%d, %d" % (sPc, mpub - 1))
        a("v_mov_b32 v26, s%d" % sMo)
        a("global_store_dword v25, v26, s[18:19] sc1")
        lab("L_m_nopub")
        idle(mp)
        a("s_waitcnt lgkmcnt(0)")
        a("s_mov_b32 s%d, 0" % t1)
        for i in range(8):
            a("s_sub_i32 s%d, s%d, s%d" % (t0, sNew + i, sMo))
            a("s_cmp_lg_u32 s%d, s%d" % (sNew + i, sPrev + i))
            a("s_cselect_b32 s%d, s%d, s%d" % (dreg(i), t0, dreg(i)))
            a("s_mov_b32 s%d, s%d" % (sPrev + i, sNew + i))
            if mmin:
                a(("s_min_i32 s%d, s%d, s%d" % (t1, t1, dreg(i))) if i else ("s_mov_b32 s%d, s%d" % (t1, dreg(i))))
            else:
                a("s_add_i32 s%d, s%d, s%d" % (t1, t1, dreg(i)))
        if not mmin:
            a("s_ashr_i32 s%d, s%d, 3" % (t1, t1))
        a("s_add_i32 s%d, s%d, %d" % (t1, t1, b2))
        a("s_sub_i32 s%d, s%d, s%d" % (t1, t1, dreg(0)))
        a("s_max_i32 s%d, s%d, -256" % (t1, t1))
        a("s_min_i32 s%d, s%d, %d" % (t1, t1, mhi))
        a("s_cmp_gt_u32 s%d, %d" % (sTry, nit - 2 - 2 * mpub))
        a("s_cselect_b32 s%d, 0, s%d" % (t1, t1))
        a("v_mov_b32 v28, s%d" % t1)
        a("global_store_dword v24, v28, s[18:19]")
        a("s_sub_u32 s%d, s%d, 1" % (sTry, sTry))
        a("s_cmp_lg_u32 s%d, 0" % sTry)
        a("s_cbranch_scc1 L_m_loop")
        a("s_mov_b64 exec, -1")
        a("s_branch L_m_done")
        lab("L_m_idle")
        idle(nit * mp)
        lab("L_m_done")
        nb += nit * mp
    for r in range(4):
        a("s_mov_b32 s%d, 0x%08x" % (t0 + r, 0x07060500 + r))
    a("s_mov_b32 vcc_lo, 0xffff0000")
    a("s_mov_b32 vcc_hi, 0xffff0000")
    idle(NB + 1 - nb)
    c("1 / (sum of the softmax weights)")
    a("ds_read_b128 v[16:19], v2")
    a("ds_read_b128 v[20:23], v2 offset:16")
    a("s_waitcnt lgkmcnt(0)")
    a("v_add_f32 v16, v16, v17")
    a("v_add_f32 v18, v18, v19")
    a("v_add_f32 v20, v20, v21")
    a("v_add_f32 v22, v22, v23")
    a("v_add_f32 v16, v16, v18")
    a("v_add_f32 v20, v20, v22")
    a("v_add_f32 v16, v16, v20")
    a("v_rcp_f32 v17, v16")
    a("s_nop 0")
    a("v_fma_f32 v18, -v16, v17, 1.0")
    a("v_fma_f32 v17, v18, v17, v17")
    c("y = o x wo, 64 rows per barrier; rows 0-3 of the A operand are the four o partials")
    oacc = blk(6)
    for i in range(3):
        a("s_barrier")
        if i == 2:
            stamp(5)
        a("ds_read_b128 v[8:11], v1 offset:%d" % (128 * i))
        a("ds_read_b128 v[12:15], v1 offset:%d" % (128 * i + 64))
        for kk in range(2):
            ks = 2 * i + kk
            a("s_waitcnt lgkmcnt(%d)" % (1 - kk))
            for col in range(8):
                d = oacc + 4 * col
                a("%s %s, %s, %s, %s" % (MFMA, q4(d), q4(8 + 4 * kk), q4(blk(ks) + 4 * col), "0" if ks == 0 else q4(d)))
    a("s_nop 0")
    for col in range(8):
        d = oacc + 4 * col
        a("v_add_f32 v%d, v%d, v%d" % (d, d, d + 1))
        a("v_add_f32 v%d, v%d, v%d" % (d + 2, d + 2, d + 3))
        a("v_add_f32 v%d, v%d, v%d" % (d, d, d + 2))
    for r in range(4):
        a("v_cndmask_b32 v%d, v%d, v%d, vcc" % (20 + r, oacc + 4 * r, oacc + 16 + 4 * r))
    for r in range(4):
        a("v_mul_f32 v%d, v17, v%d" % (20 + r, 20 + r))
    for r in range(4):
        a("v_perm_b32 v%d, v%d, v%d, s%d" % (20 + r, 20 + r, vTag, t0 + r))
    a("s_mov_b32 exec_hi, 0")
    a("buffer_store_dwordx4 v[20:23], v%d, %s, 0 offen %s" % (vY, s4(YS), ypol))
    stamp(6)
    if ybar:
        if ybar == 1:
            a("s_waitcnt vmcnt(0)")
        a("s_barrier")
    if stamps:
        a("s_cmp_lg_u32 s%d, 0" % sHj)
        a("s_cbranch_scc1 L_h_st")
        flush_stamps([4, 5, 14])
        lab("L_h_st")
        a("s_cmp_lg_u32 s%d, 4" % sHj)
        a("s_cbranch_scc1 L_end")
        flush_stamps([6])
    lab("L_end")
    a("s_endpgm")
    return HEADER.format(lds=LDS, name=NAME) + "\n".join(L) + FOOTER.format(name=NAME)


if __name__ == "__main__":
    spec = json.loads(sys.argv[1])
    names = []
    for cfg in spec:
        cfg = dict(cfg)
        out = cfg.pop("out", None)
        name = out or ("work/k_" + "_".join("%s%s" % (k, str(v).replace(" ", "")) for k, v in cfg.items()) + ".s")
        open("code/" + name, "w").write(gen(**cfg))
        names.append(name)
    print(" ".join(names))
```

```python
import json
import math
import struct
import sys

NAME = "standalone__mha_block_cached__sampling_kernel"

HEADER = """; Kernarg layout for this problem (64 bytes, ptrs only, base s[0:1]):
; @launch grid=(256,1,1) block=(512,1,1) lds={lds}
.amdgcn_target "amdgcn-amd-amdhsa--gfx950"
.text
.globl {name}
.p2align 8
.type {name},@function
{name}:
"""
FOOTER = """
.section .rodata,"a"
.p2align 6
.amdhsa_kernel {name}
  .amdhsa_next_free_vgpr 256
  .amdhsa_next_free_sgpr 96
  .amdhsa_accum_offset 256
  .amdhsa_group_segment_fixed_size 0
  .amdhsa_kernarg_size 64
  .amdhsa_user_sgpr_count 2
  .amdhsa_user_sgpr_kernarg_segment_ptr 1
  .amdhsa_system_sgpr_workgroup_id_x 1
  .amdhsa_float_denorm_mode_32 3
.end_amdhsa_kernel
"""

BH = 1572864
UNIT = 3072
RS = 4
TU = 8
NM = 1024 - TU
MFMA = "v_mfma_f32_16x16x32_bf16"


def f32bits(x):
    return struct.unpack("<I", struct.pack("<f", x))[0]


def gen(w1=18, NSLOT=44, wo_r0=14, wo_k=1, stamps=0, wqpol="nt", wopol="nt", prio=3, sleep=16, rsleep=4,
        ctl=1, pp=3, gain=112, bias=24, wlim=2, c0=12, pair=(172, 172, 168), wt=19, dbg=0, rpol="sc1", ypol="sc1", qpol="sc1", r0sleep=0, depth=2, thr=24, ybar=1, opol="", g2=12, mp=3, mpub=3, mend=12, sglc="glc", b2=-56, mmin=0, mhi=256, pb=4, cu=2, own=0, spread=0, wadj=0, wo_p=1):
    L = []

    def a(s):
        L.append("    " + s)

    def lab(s):
        L.append(s + ":")

    def c(s):
        L.append("    ; " + s)

    def q4(r):
        return "v[%d:%d]" % (r, r + 3)

    def s4(r):
        return "s[%d:%d]" % (r, r + 3)

    RING = NSLOT * UNIT
    SC = RING
    MISC = SC + 8192
    Q = MISC
    MX = MISC + 384
    WIN = MISC + 512
    MTOT = MISC + 516
    LDS = MISC + 528
    OP = SC
    XA = SC + 512
    YO = SC + 384
    assert LDS <= 163840 and NSLOT % RS == 0 and NM % NSLOT + TU <= NSLOT
    EB = 0xC0000
    QB = 0x100000
    PB = 0x200000

    wmax = w1 + (wlim if ctl else 0)
    wt = w1 if wt is None else wt
    R = -(-wmax // 3) + 1
    N0 = NSLOT - RS
    L0 = (N0 - R) // RS * RS
    NB = (NM - L0) // RS + 1
    ndouble = L0 // RS - 1
    steps = [2 if (j % cu == 0 and 0 < j <= cu * ndouble) else 1 for j in range(NB)]
    assert sum(steps) == NM // RS and len(steps) == NB
    cons = 0
    for j, st in enumerate(steps):
        assert min(1024, N0 + (j + 1) * RS + (TU if N0 + (j + 1) * RS > NM else 0)) - NSLOT <= cons
        cons += RS * st
        assert cons <= L0 + RS * j

    sW, sH, sB, sJ = 20, 21, 22, 23
    KV, WQ, WO, XS, YS, OS = 24, 28, 32, 36, 40, 44
    sVlo, sVhi = 48, 49
    t0, t1, t2, t3 = 50, 51, 52, 53
    stamp_reg = {k: 66 + 2 * k for k in range(15)}

    def stamp(k):
        if stamps:
            a("s_memrealtime s[%d:%d]" % (stamp_reg[k], stamp_reg[k] + 1))

    def flush_stamps(ks):
        if not stamps:
            return
        a("s_waitcnt lgkmcnt(0)")
        a("s_mov_b64 exec, 1")
        a("s_lshl_b32 s%d, s2, 7" % t0)
        a("s_add_u32 s%d, s%d, 0x4000000" % (t0, t0))
        a("v_mov_b32 v1, s%d" % t0)
        for k in ks:
            a("v_mov_b32 v2, s%d" % stamp_reg[k])
            a("v_mov_b32 v3, s%d" % (stamp_reg[k] + 1))
            a("global_store_dwordx2 v1, v[2:3], s[18:19] offset:%d" % (8 * k))
            a("s_nop 1")

    def srd(d, lo, hi, off_sreg, nbytes):
        a("s_add_u32 s%d, s%d, s%d" % (d, lo, off_sreg))
        a("s_addc_u32 s%d, s%d, 0" % (d + 1, hi))
        if isinstance(nbytes, int):
            a("s_mov_b32 s%d, %d" % (d + 2, nbytes))
        else:
            a(nbytes % (d + 2))
        a("s_mov_b32 s%d, 0x20000" % (d + 3))

    def load_row_tag(dst):
        c("tag word of this batch row's hand-off (advanced by 0x01010101 once it has arrived)")
        a("s_lshl_b32 s%d, s%d, 8" % (dst, sB))
        a("s_add_u32 s%d, s%d, 0x%x" % (dst, dst, EB))
        a("s_load_dword s%d, s[18:19], s%d" % (dst, dst))

    stamp(0)
    a("s_cmp_ge_u32 s2, 256")
    a("s_cbranch_scc1 L_end")
    a("s_load_dwordx16 s[4:19], s[0:1], 0")
    a("v_lshrrev_b32 v1, 6, v0")
    a("v_and_b32 v0, 63, v0")
    a("s_and_b32 s%d, s2, 7" % t0)
    a("v_readfirstlane_b32 s%d, v1" % sW)
    c("head = 4 * (id & 7) + ((id >> 3) & 3), batch = id >> 5")
    a("s_lshr_b32 s%d, s2, 3" % sJ)
    a("s_lshl_b32 s%d, s%d, 2" % (t0, t0))
    a("s_and_b32 s%d, s%d, 3" % (t1, sJ))
    a("s_add_u32 s%d, s%d, s%d" % (sH, t0, t1))
    a("s_lshr_b32 s%d, s%d, 2" % (sB, sJ))
    a("s_cmp_ge_u32 s%d, 3" % sW)
    a("s_cbranch_scc1 L_holder")
    a("s_cmp_ge_u32 s%d, 1" % sW)
    a("s_cbranch_scc1 L_consumer")

    c("======== loader ========")
    sM, sOff, sCnt, sSkip, sSeg, sMod, sWin, sRot = 54, 55, 57, 58, 59, 60, 61, 62
    sRet = 44
    vOff, vSh, vWa, vWv = 4, 8, 16, 17
    BIAS = 1792
    STEP = 4 * 384
    D0, D1, D2 = pair
    assert D0 + D1 + D2 == 512
    if prio:
        a("s_setprio %d" % prio)
    a("s_lshl_b32 s%d, s%d, 5" % (t0, sB))
    a("s_add_u32 s%d, s%d, s%d" % (t0, t0, sH))
    a("s_mul_i32 s%d, s%d, %d" % (t0, t0, BH))
    c("a unit is 4 keys (lanes 0-31) and the 4 keys about 64 KiB further on (lanes 32-63), 8 lanes per key.")
    c("1024 keys form three blocks of 2*%d, 2*%d and 2*%d keys; a unit may straddle two blocks." % pair)
    c("load i uses offset:1024*i, which is added to both addresses, so its lane offset carries 896*(2-i)")
    a("v_bfe_u32 v1, v0, 3, 2")
    a("v_lshrrev_b32 v3, 5, v0")
    a("v_mul_u32_u24 v2, 384, v1")
    a("v_and_b32 v%d, 7, v0" % vSh)
    a("v_lshl_add_u32 v2, v%d, 4, v2" % vSh)
    a("v_mul_u32_u24 v%d, %d, v3" % (vSh, D0 * 384))
    a("v_add_u32 v%d, v2, v%d" % (vSh, vSh))

    def shape(k):
        a("v_mov_b32 v%d, v%d" % (vOff + 2, vSh + k))
        a("v_add_u32 v%d, 896, v%d" % (vOff + 1, vSh + k))
        a("v_add_u32 v%d, 1792, v%d" % (vOff, vSh + k))

    shape(0)
    bounds = [D0, D0 + D1]
    segs = []
    pos = 0
    for bi, bd in enumerate(bounds + [512]):
        segs.append((2 * bi, bd // 4 - pos))
        pos = bd // 4
        if bd % 4:
            segs.append((2 * bi + 1, 1))
            pos += 1
    assert sum(n for _, n in segs) == 128
    NSEG = len(segs)
    c("the unit sequence starts sRot units into the first block and ends with the units skipped")
    assert TU + 1 + 7 * pb < segs[0][1]
    a("s_mul_i32 s%d, s%d, %d" % (sRot, sB, pb))
    a("s_add_u32 s%d, s%d, %d" % (sRot, sRot, TU + 1))

    def start_off():
        a("s_mul_i32 s%d, s%d, %d" % (sOff, sRot, STEP))
        a("s_mov_b32 s%d, 0" % sMod)
        a("s_sub_u32 s%d, %d, s%d" % (sCnt, segs[0][1] - 1, sRot))

    a("s_mov_b32 s%d, %d" % (sM, RING - RS * UNIT))
    a("s_mov_b32 s%d, 0" % sSeg)
    start_off()
    a("s_mov_b32 s%d, %d" % (sSkip, N0 // RS))
    a("s_waitcnt lgkmcnt(0)")
    a("s_sub_u32 s6, s6, %d" % BIAS)
    a("s_subb_u32 s7, s7, 0")
    srd(KV, 6, 7, t0, BH + BIAS)
    if stamps:
        a("s_mov_b32 s46, 0")
        a("s_memtime s[64:65]")

    def ld(i, so):
        a("buffer_load_dwordx4 v%d, %s, s%d offen offset:%d nt lds" % (vOff + i, s4(KV), so, 1024 * i))

    def round_body(w, tag, first=False):
        for u in range(RS):
            if u == 0:
                a("s_add_u32 s%d, s%d, %d" % (sM, sM, RS * UNIT))
                a("s_cmp_eq_u32 s%d, %d" % (sM, RING))
                a("s_cselect_b32 s%d, 0, s%d" % (sM, sM))
                a("s_mov_b32 m0, s%d" % sM)
            else:
                a("s_add_u32 m0, s%d, %d" % (sM, u * UNIT))
            a("s_nop 0" if first else "s_waitcnt vmcnt(%d)" % w)
            for i in range(3):
                ld(i, sOff)
            a("s_add_u32 s%d, s%d, %d" % (sOff, sOff, STEP))
            a("s_sub_u32 s%d, s%d, 1" % (sCnt, sCnt))
            if not first:
                a("s_cbranch_scc1 L_ld_seg_%s_%d" % (tag, u))
                lab("L_ld_cont_%s_%d" % (tag, u))

    c("first round, then the rest of the setup")
    assert TU + 1 + 7 * pb + RS < segs[0][1]
    round_body(0, "", first=True)
    a("s_sub_u32 s%d, s%d, 1" % (sSkip, sSkip))
    a("s_sub_u32 s8, s8, %d" % BIAS)
    a("s_subb_u32 s9, s9, 0")
    a("s_add_u32 s%d, s8, s%d" % (sVlo, t0))
    a("s_addc_u32 s%d, s9, 0" % sVhi)
    a("v_mul_u32_u24 v%d, %d, v3" % (vSh + 2, D1 * 384))
    a("v_add_u32 v%d, %d, v%d" % (vSh + 2, D0 * 384, vSh + 2))
    a("v_add_u32 v%d, v2, v%d" % (vSh + 2, vSh + 2))
    a("v_mul_u32_u24 v%d, %d, v3" % (vSh + 4, D2 * 384))
    a("v_add_u32 v%d, %d, v%d" % (vSh + 4, (D0 + D1) * 384, vSh + 4))
    a("v_add_u32 v%d, v2, v%d" % (vSh + 4, vSh + 4))
    for bi, bd in enumerate(bounds):
        if bd % 4:
            a("v_cmp_gt_u32 vcc, %d, v1" % (bd % 4))
            a("s_nop 1")
            a("v_cndmask_b32 v%d, v%d, v%d, vcc" % (vSh + 2 * bi + 1, vSh + 2 * bi + 2, vSh + 2 * bi))
    if ctl:
        a("v_mov_b32 v%d, %d" % (vWa, WIN))
        a("v_mov_b32 v%d, %d" % (vWv, w1))
    wins = list(range(w1 - wlim, w1 + wlim + 1)) if ctl else [w1]
    order = sorted(wins, key=lambda w: abs(w - w1))
    lab("L_ld")
    c("no barriers until the ring is full")
    a("s_sub_u32 s%d, s%d, 1" % (sSkip, sSkip))
    a("s_cbranch_scc0 L_ld_w%d" % order[0])
    if stamps:
        a("s_cmp_lg_u32 s46, 0")
        a("s_cbranch_scc1 L_st1")
        a("s_mov_b32 s46, 1")
        stamp(1)
        lab("L_st1")
    a("s_mov_b32 s%d, 0" % sSkip)
    if ctl:
        a("s_waitcnt lgkmcnt(0)")
        a("v_readfirstlane_b32 s%d, v%d" % (sWin, vWv))
        a("s_barrier")
        a("ds_read_b32 v%d, v%d" % (vWv, vWa))
        for w in order[1:]:
            a("s_cmp_eq_u32 s%d, %d" % (sWin, w))
            a("s_cbranch_scc1 L_ld_w%d" % w)
    else:
        a("s_barrier")
    for w in order:
        lab("L_ld_w%d" % w)
        round_body(w, str(w))
        a("s_branch L_ld")
    for w in order:
        for u in range(RS):
            lab("L_ld_seg_%d_%d" % (w, u))
            a("s_call_b64 s[%d:%d], L_ld_seg" % (sRet, sRet + 1))
            a("s_branch L_ld_cont_%d_%d" % (w, u))
    lab("L_ld_seg")
    c("end of a run of units with one lane-offset pattern: pick the next one")
    a("s_add_u32 s%d, s%d, 1" % (sSeg, sSeg))
    a("s_add_u32 s%d, s%d, 1" % (sMod, sMod))
    if stamps:
        for k, bn in ((8, 1), (9, NSEG), (10, 2 * NSEG), (11, 4 * NSEG + 1), (12, 6 * NSEG + 1)):
            a("s_cmp_lg_u32 s%d, %d" % (sSeg, bn))
            a("s_cbranch_scc1 L_st%d" % k)
            stamp(k)
            lab("L_st%d" % k)
    a("s_cmp_eq_u32 s%d, %d" % (sSeg, 4 * NSEG + 1))
    a("s_cbranch_scc1 L_ld_tov")
    a("s_cmp_eq_u32 s%d, %d" % (sSeg, 8 * NSEG + 2))
    a("s_cbranch_scc1 L_ld_done")
    for k in range(1, NSEG):
        a("s_cmp_lg_u32 s%d, %d" % (sMod, k))
        a("s_cbranch_scc1 L_ld_not%d" % k)
        shape(segs[k][0])
        a("s_mov_b32 s%d, %d" % (sCnt, segs[k][1] - 1))
        a("s_setpc_b64 s[%d:%d]" % (sRet, sRet + 1))
        lab("L_ld_not%d" % k)
    shape(0)
    a("s_mov_b32 s%d, 0" % sMod)
    a("s_add_u32 s%d, s%d, %d" % (sOff, sOff, 512 * 384))
    a("s_mov_b32 s%d, %d" % (sCnt, segs[0][1] - 1))
    a("s_cmp_lt_u32 s%d, %d" % (sOff, BH))
    a("s_cbranch_scc1 L_ld_ret")
    c("wrap to the units skipped at the start (over V, all but the last %d of them)" % TU)
    a("s_cmp_eq_u32 s%d, %d" % (sSeg, 4 * NSEG))
    a("s_cselect_b32 s%d, 0, %d" % (t0, TU))
    a("s_sub_u32 s%d, s%d, s%d" % (sRot, sRot, t0))
    a("s_mov_b32 s%d, 0" % sOff)
    a("s_sub_u32 s%d, s%d, 1" % (sCnt, sRot))
    lab("L_ld_ret")
    a("s_setpc_b64 s[%d:%d]" % (sRet, sRet + 1))
    lab("L_ld_tov")
    c("K done: same sequence over V")
    a("s_mov_b32 s%d, s%d" % (KV, sVlo))
    a("s_mov_b32 s%d, s%d" % (KV + 1, sVhi))
    start_off()
    a("s_setpc_b64 s[%d:%d]" % (sRet, sRet + 1))
    lab("L_ld_done")
    c("last %d units: all first thirds, then all second thirds, then all last thirds of the rows" % TU)
    a("s_mul_i32 s%d, s%d, %d" % (sOff, sRot, STEP))
    pend = {}
    for j in range((NM - 1 - N0) // RS + 1, NB):
        younger = 3 * (NM - (L0 + RS * j))
        k = max(0, wt - younger)
        pend.setdefault(k, []).append(younger + k)
    for k in range(3 * TU + 1):
        for n in pend.get(k, []):
            a("s_waitcnt vmcnt(%d)" % n)
            a("s_barrier")
        if k == 3 * TU:
            break
        i, u = divmod(k, TU)
        a("s_add_u32 s%d, s%d, %d" % (t0, sOff, u * STEP))
        a("s_mov_b32 m0, %d" % ((NM + u) % NSLOT * UNIT))
        a("s_waitcnt vmcnt(%d)" % (wt + 2))
        ld(i, t0)
    assert max(pend) <= 3 * TU
    stamp(2)
    for i in range(3):
        a("s_waitcnt vmcnt(%d)" % (TU * (2 - i)))
        a("s_barrier")
    stamp(3)
    if stamps:
        r13 = stamp_reg[13]
        a("s_memtime s[%d:%d]" % (r13, r13 + 1))
        a("s_waitcnt lgkmcnt(0)")
        a("s_sub_u32 s%d, s%d, s64" % (r13, r13))
        a("s_lshr_b32 s%d, s%d, 4" % (r13, r13))
        a("s_add_u32 s%d, s%d, s%d" % (r13, r13, stamp_reg[0]))
        a("s_addc_u32 s%d, s%d, 0" % (r13 + 1, stamp_reg[0] + 1))
    flush_stamps([0, 1, 2, 3, 8, 11, 12, 13] if dbg & 2 else [0, 1, 2, 3, 8, 9, 10, 11, 12, 13])
    a("s_endpgm")

    c("======== consumers ========")
    lab("L_consumer")
    sC, sA0, sA1, sSc, sRound, sIn, sScale, sTagY = 54, 55, 56, 57, 58, 59, 60, 61
    sOne, sNext, sPub, sLog2e = 62, 64, 65, 3
    vL16, vAd0, vSA, vM, vLsum, vInv, vE = 4, 5, 7, 8, 9, 10, 11
    vS, vT, vMask, vQ, vAcc, vAop, vD = 12, 20, 28, 32, 44, 56, 88
    vLad, vOad, vTad = 120, 121, 122
    vPa, vPo, vPv, vPw, vWin = 124, 125, 126, 127, 128
    a("s_sub_u32 s%d, s%d, 1" % (sC, sW))
    a("v_lshlrev_b32 v%d, 4, v0" % vL16)
    c("lane-constant masks: element (lane & 7) of an 8 x bf16 operand")
    a("v_and_b32 v%d, 1, v0" % vT)
    a("v_lshlrev_b32 v%d, 4, v%d" % (vT, vT))
    a("v_mov_b32 v%d, 0xffff" % (vT + 1))
    a("v_lshlrev_b32 v%d, v%d, v%d" % (vT, vT, vT + 1))
    a("v_bfe_u32 v%d, v0, 1, 2" % (vT + 1))
    for j in range(4):
        a("v_cmp_eq_u32 vcc, %d, v%d" % (j, vT + 1))
        a("s_nop 1")
        a("v_cndmask_b32 v%d, 0, v%d, vcc" % (vMask + j, vT))
    a("s_mul_i32 s%d, s%d, %d" % (sA0, sC, 2 * UNIT))
    a("v_add_u32 v%d, %d, v%d" % (vTad, NM % NSLOT * UNIT, vL16))
    c("scores (two bf16 per word) at [step][consumer][key], (max, sum) pairs at [consumer][key]")
    a("v_lshrrev_b32 v%d, 3, v0" % vT)
    a("s_lshl_b32 s%d, s%d, 5" % (t0, sC))
    a("s_add_u32 s%d, s%d, %d" % (t0, t0, SC))
    a("v_lshl_add_u32 v%d, v%d, 2, s%d" % (vSA, vT, t0))
    a("s_lshl_b32 s%d, s%d, 6" % (t0, sC))
    a("s_add_u32 s%d, s%d, %d" % (t0, t0, MX))
    a("v_lshl_add_u32 v%d, v%d, 3, s%d" % (vLad, vT, t0))
    a("v_mov_b32 v%d, 0xff800000" % vM)
    a("v_mov_b32 v%d, 0" % vLsum)
    for i in range(12):
        a("v_mov_b32 v%d, 0" % (vAcc + i))
    c("o columns 8*(lane & 7) + 4*((lane >> 4) & 1) + 2*(lane >> 5) + 0..1 of each third")
    a("v_and_b32 v%d, 7, v0" % vOad)
    a("v_bfe_u32 v%d, v0, 4, 1" % vT)
    a("v_lshl_add_u32 v%d, v%d, 1, v%d" % (vOad, vOad, vT))
    a("v_lshrrev_b32 v%d, 5, v0" % vT)
    a("v_lshl_add_u32 v%d, v%d, 1, v%d" % (vOad, vOad, vT))
    a("v_lshlrev_b32 v%d, 2, v%d" % (vOad, vOad))
    a("v_add_u32 v%d, %d, v%d" % (vOad, OP, vOad))
    a("s_mov_b32 s%d, 0x01010101" % sOne)
    a("s_mov_b32 s%d, 0x01010101" % (sOne + 1))
    a("s_mov_b32 s%d, 0x%08x" % (sScale, f32bits(192 ** -0.5)))
    a("s_mov_b32 s%d, 0x%08x" % (sLog2e, f32bits(math.log2(math.e))))
    a("s_waitcnt lgkmcnt(0)")
    load_row_tag(sTagY)
    a("s_mul_i32 s%d, s%d, 81920" % (t0, sB))
    srd(YS, 18, 19, t0, 81920)
    a("s_mul_i32 s%d, s%d, 1280" % (t0, sB))
    srd(OS, 14, 15, t0, 1280)
    if ctl:
        c("progress words of the 32 workgroups whose id is equal mod 8, one cache line")
        a("s_and_b32 s%d, s2, 7" % t0)
        a("s_lshl_b32 s%d, s%d, 12" % (t0, t0))
        a("s_add_u32 s%d, s%d, 0x%x" % (t0, t0, PB))
        a("v_and_b32 v%d, 31, v0" % vPa)
        a("v_lshl_add_u32 v%d, v%d, 2, s%d" % (vPa, vPa, t0))
        a("s_lshl_b32 s%d, s%d, 2" % (t1, sJ))
        a("s_add_u32 s%d, s%d, s%d" % (t0, t0, t1))
        a("v_mov_b32 v%d, s%d" % (vPo, t0))
        if g2:
            c("lane 32 reads the group's offset word")
            a("s_sub_u32 s%d, s%d, s%d" % (t0, t0, t1))
            a("s_add_u32 s%d, s%d, 128" % (t0, t0))
            a("v_writelane_b32 v%d, s%d, 32" % (vPa, t0))
        a("v_mov_b32 v%d, %d" % (vWin, WIN))
        a("v_mov_b32 v%d, %d" % (vPw, w1))
        a("v_mov_b32 v%d, 0" % vPv)
        a("s_mov_b32 s%d, 0" % sPub)
        a("s_cmp_eq_u32 s%d, 1" % sC)
        a("s_cselect_b32 s%d, %d, 0x7fffffff" % (sNext, c0))
        a("s_cbranch_scc0 L_c_noinit")
        a("s_mov_b64 exec, 1")
        a("global_store_dword v%d, v%d, s[18:19]" % (vPo, vPv))
        a("s_mov_b64 exec, -1")
        lab("L_c_noinit")
        a("ds_write_b32 v%d, v%d" % (vWin, vPw))
    a("s_waitcnt lgkmcnt(0)")
    a("s_add_u32 s%d, s%d, 0x01010101" % (sTagY, sTagY))

    def control(tag):
        if not ctl:
            return
        a("s_cmp_lt_u32 s%d, s%d" % (sRound, sNext))
        a("s_cbranch_scc1 L_c_noctl%s" % tag)
        a("s_waitcnt vmcnt(0)")
        if g2:
            a("v_readlane_b32 s%d, v%d, 32" % (t2, vPv))
            a("s_lshl_b32 s%d, s%d, 5" % (t3, sPub))
        a("v_subrev_u32 v%d, s%d, v%d" % (vPv, sPub, vPv))
        a("v_add_u32 v%d, 24, v%d" % (vPw, vPv))
        a("v_cmp_gt_u32 vcc, 48, v%d" % vPw)
        a("s_mov_b32 s%d, s%d" % (sPub, sRound))
        a("s_add_u32 s%d, s%d, %d" % (sNext, sRound, pp))
        a("v_cndmask_b32 v%d, 0, v%d, vcc" % (vPw, vPv))
        a("v_mov_b32 v%d, s%d" % (vPv, sPub))
        a("s_mov_b64 exec, 1")
        a("global_store_dword v%d, v%d, s[18:19]" % (vPo, vPv))
        a("s_mov_b64 exec, -1")
        for dpp in ("quad_perm:[1,0,3,2]", "quad_perm:[2,3,0,1]", "row_half_mirror", "row_mirror"):
            a("v_add_u32_dpp v%d, v%d, v%d %s row_mask:0xf bank_mask:0xf" % (vPw, vPw, vPw, dpp))
            a("s_nop 1")
        a("global_load_dword v%d, v%d, s[18:19] sc1" % (vPv, vPa))
        a("v_readlane_b32 s%d, v%d, 0" % (t0, vPw))
        a("v_readlane_b32 s%d, v%d, 16" % (t1, vPw))
        a("s_nop 1")
        a("s_add_i32 s%d, s%d, s%d" % (t0, t0, t1))
        if g2:
            a("s_add_i32 s%d, s%d, s%d" % (t3, t3, t0))
            a("s_lshl_b32 s%d, s%d, 5" % (t1, sRound))
            a("s_sub_i32 s%d, s%d, s%d" % (t3, t3, t1))
            a("v_mov_b32 v%d, s%d" % (vPw, t3))
            a("ds_write_b32 v%d, v%d offset:4" % (vWin, vPw))
            a("s_add_u32 s%d, s%d, 0x200" % (t1, t2))
            a("s_cmp_lt_u32 s%d, 0x400" % t1)
            a("s_cselect_b32 s%d, s%d, 0" % (t2, t2))
            a("s_mul_i32 s%d, s%d, %d" % (t2, t2, g2))
            a("s_ashr_i32 s%d, s%d, 4" % (t2, t2))
            a("s_add_i32 s%d, s%d, s%d" % (t0, t0, t2))
        a("s_add_i32 s%d, s%d, %d" % (t0, t0, bias))
        a("s_mul_i32 s%d, s%d, %d" % (t0, t0, gain))
        if wadj and tag == "k":
            a("s_cmp_lt_u32 s%d, %d" % (sRound, wo_r0 + 48 // wo_k))
            a("s_cselect_b32 s%d, %d, 0" % (t1, wadj))
            a("s_add_i32 s%d, s%d, s%d" % (t0, t0, t1))
        a("s_add_i32 s%d, s%d, 2048" % (t0, t0))
        a("s_ashr_i32 s%d, s%d, 12" % (t0, t0))
        a("s_max_i32 s%d, s%d, %d" % (t0, t0, -wlim))
        a("s_min_i32 s%d, s%d, %d" % (t0, t0, wlim))
        a("s_add_i32 s%d, s%d, %d" % (t0, t0, w1))
        a("v_mov_b32 v%d, s%d" % (vPw, t0))
        a("ds_write_b32 v%d, v%d" % (vWin, vPw))
        lab("L_c_noctl%s" % tag)

    a("s_barrier")
    a("v_and_b32 v%d, 7, v0" % vT)
    a("v_lshlrev_b32 v%d, 4, v%d" % (vT, vT))
    a("v_add_u32 v%d, %d, v%d" % (vT, Q, vT))
    for i in range(3):
        a("ds_read_b128 %s, v%d offset:%d" % (q4(vQ + 4 * i), vT, 128 * i))
    a("s_mov_b32 s%d, 0" % sRound)
    a("s_mov_b32 s%d, 1" % sIn)
    a("s_mov_b32 s%d, 0" % sSc)

    def data_reads():
        a("v_add_u32 v%d, s%d, v%d" % (vAd0, sA0, vL16))
        for u in range(2):
            for i in range(3):
                a("ds_read_b128 %s, v%d offset:%d" % (q4(vD + 12 * u + 4 * i), vAd0, UNIT * u + 1024 * i))
        for s in (sA0,):
            a("s_add_u32 s%d, s%d, %d" % (s, s, RS * UNIT))
            a("s_cmp_ge_u32 s%d, %d" % (s, RING))
            a("s_cselect_b32 s%d, %d, 0" % (t0, RING))
            a("s_sub_u32 s%d, s%d, s%d" % (s, s, t0))

    def weights(n, vAop=vAop):
        for u in range(0, n, 2):
            a("v_lshlrev_b32 v%d, 16, v%d" % (vS + u, vT + u // 2))
            a("v_and_b32 v%d, 0xffff0000, v%d" % (vS + u + 1, vT + u // 2))
        for u in range(n):
            a("v_sub_f32 v%d, v%d, v%d" % (vS + u, vS + u, vM))
        for u in range(n):
            a("v_mul_f32 v%d, s%d, v%d" % (vS + u, sLog2e, vS + u))
        for u in range(n):
            a("v_exp_f32 v%d, v%d" % (vS + u, vS + u))
        a("s_add_u32 s%d, s%d, 1" % (sSc, sSc))
        for u in range(n):
            a("v_mul_f32 v%d, v%d, v%d" % (vS + u, vInv, vS + u))
        for u in range(n):
            a("v_cvt_pk_bf16_f32 v%d, v%d, v%d" % (vS + u, vS + u, vS + u))
        for u in range(n):
            for j in range(4):
                a("v_and_b32 v%d, v%d, v%d" % (vAop + 4 * u + j, vMask + j, vS + u))

    c("---- K steps: scores of 2 units")
    lab("L_c_k")
    data_reads()
    for u in range(2):
        for i in range(3):
            a("s_waitcnt lgkmcnt(%d)" % (5 - 3 * u - i))
            for k in range(4):
                src = "0" if (i == 0 and k == 0) else "v%d" % (vS + u)
                a("v_dot2_f32_bf16 v%d, v%d, v%d, %s" % (vS + u, vD + 12 * u + 4 * i + k, vQ + 4 * i + k, src))
    for step, dpp in enumerate(("quad_perm:[1,0,3,2]", "quad_perm:[2,3,0,1]", "row_half_mirror")):
        a("v_add_f32_dpp v%d, v%d, v%d %s row_mask:0xf bank_mask:0xf" % (vS, vS, vS, dpp))
        a("s_nop %d" % (1 if step == 0 else 0))
        a("v_add_f32_dpp v%d, v%d, v%d %s row_mask:0xf bank_mask:0xf" % (vS + 1, vS + 1, vS + 1, dpp))
    c("scores = bf16(bf16(q.k) * scale); running max and running sum of exp(score - max)")
    a("v_cvt_pk_bf16_f32 v%d, v%d, v%d" % (vT, vS, vS + 1))
    a("v_lshlrev_b32 v%d, 16, v%d" % (vS, vT))
    a("v_and_b32 v%d, 0xffff0000, v%d" % (vS + 1, vT))
    a("v_mul_f32 v%d, s%d, v%d" % (vS, sScale, vS))
    a("v_mul_f32 v%d, s%d, v%d" % (vS + 1, sScale, vS + 1))
    a("v_cvt_pk_bf16_f32 v%d, v%d, v%d" % (vT, vS, vS + 1))
    a("s_mov_b64 exec, s[%d:%d]" % (sOne, sOne + 1))
    a("ds_write_b32 v%d, v%d" % (vSA, vT))
    a("s_mov_b64 exec, -1")
    a("v_lshlrev_b32 v%d, 16, v%d" % (vS, vT))
    a("v_and_b32 v%d, 0xffff0000, v%d" % (vS + 1, vT))
    a("v_mov_b32 v%d, v%d" % (vS + 2, vM))
    a("v_max3_f32 v%d, v%d, v%d, v%d" % (vM, vM, vS, vS + 1))
    for u in range(3):
        a("v_sub_f32 v%d, v%d, v%d" % (vS + u, vS + u, vM))
    for u in range(3):
        a("v_mul_f32 v%d, s%d, v%d" % (vS + u, sLog2e, vS + u))
    for u in range(3):
        a("v_exp_f32 v%d, v%d" % (vS + u, vS + u))
    a("s_add_u32 s%d, s%d, 1" % (sSc, sSc))
    a("v_add_u32 v%d, 64, v%d" % (vSA, vSA))
    a("v_add_f32 v%d, v%d, v%d" % (vS, vS, vS + 1))
    a("v_fma_f32 v%d, v%d, v%d, v%d" % (vLsum, vLsum, vS + 2, vS))
    a("s_cmp_eq_u32 s%d, 128" % sSc)
    a("s_cbranch_scc1 L_c_kdone")
    a("s_sub_u32 s%d, s%d, 1" % (sIn, sIn))
    a("s_cmp_lg_u32 s%d, 0" % sIn)
    a("s_cbranch_scc1 L_c_k")
    a("s_add_u32 s%d, s%d, 1" % (sRound, sRound))
    control("k")
    a("s_cmp_lt_u32 s%d, %d" % (sRound, 1 + cu * ndouble))
    a("s_cselect_b32 s%d, 2, 1" % sIn)
    if cu > 1:
        a("s_and_b32 s%d, s%d, %d" % (t0, sRound, cu - 1))
        a("s_cselect_b32 s%d, 1, s%d" % (sIn, sIn))
    a("s_barrier")
    a("s_branch L_c_k")
    lab("L_c_kdone")
    assert 1 + (cu + 1) * ndouble < 128
    c("exact row max and sum over all 4096 scores, from the 16 (max, sum) pairs")
    a("s_mov_b64 exec, s[%d:%d]" % (sOne, sOne + 1))
    a("ds_write_b64 v%d, v[%d:%d]" % (vLad, vM, vLsum))
    a("s_mov_b64 exec, -1")
    a("s_add_u32 s%d, s%d, 1" % (sRound, sRound))
    a("v_subrev_u32 v%d, %d, v%d" % (vSA, 8192, vSA))
    a("v_and_b32 v%d, 15, v0" % vT)
    a("v_lshlrev_b32 v%d, 3, v%d" % (vT, vT))
    a("v_add_u32 v%d, %d, v%d" % (vT, MX, vT))
    a("s_waitcnt lgkmcnt(0)")
    a("s_barrier")
    a("ds_read_b64 v[%d:%d], v%d" % (vS, vS + 1, vT))
    a("s_waitcnt lgkmcnt(0)")
    rows = ("quad_perm:[1,0,3,2]", "quad_perm:[2,3,0,1]", "row_half_mirror", "row_mirror")
    for k, dpp in enumerate(rows):
        src = vS if k == 0 else vM
        a("v_max_f32_dpp v%d, v%d, v%d %s row_mask:0xf bank_mask:0xf" % (vM, src, src, dpp))
        a("s_nop 1")
    a("v_sub_f32 v%d, v%d, v%d" % (vS, vS, vM))
    a("v_mul_f32 v%d, s%d, v%d" % (vS, sLog2e, vS))
    a("v_exp_f32 v%d, v%d" % (vS, vS))
    a("s_nop 0")
    a("v_mul_f32 v%d, v%d, v%d" % (vLsum, vS, vS + 1))
    for dpp in rows:
        a("s_nop 1")
        a("v_add_f32_dpp v%d, v%d, v%d %s row_mask:0xf bank_mask:0xf" % (vLsum, vLsum, vLsum, dpp))
    a("v_rcp_f32 v%d, v%d" % (vInv, vLsum))
    a("s_mov_b32 s%d, 0" % sSc)
    a("v_fma_f32 v%d, -v%d, v%d, 1.0" % (vE, vLsum, vInv))
    a("v_fma_f32 v%d, v%d, v%d, v%d" % (vInv, vE, vInv, vInv))
    c("---- V steps: acc += diag(p) x V for 2 units")
    vAt = 164

    def v_step():
        a("ds_read_b32 v%d, v%d" % (vT, vSA))
        data_reads()
        a("v_add_u32 v%d, 64, v%d" % (vSA, vSA))
        a("s_waitcnt lgkmcnt(6)")
        weights(2)
        a("s_nop 0")
        for u in range(2):
            for i in range(3):
                a("s_waitcnt lgkmcnt(%d)" % (5 - 3 * u - i))
                a("%s %s, %s, %s, %s" % (MFMA, q4(vAcc + 4 * i), q4(vAop + 4 * u), q4(vD + 12 * u + 4 * i), q4(vAcc + 4 * i)))

    lab("L_c_v")
    v_step()
    a("s_cmp_eq_u32 s%d, %d" % (sSc, 127 - TU // RS))
    a("s_cbranch_scc1 L_c_vdone")
    if ctl:
        a("s_add_u32 s%d, s%d, 1" % (sRound, sRound))
        control("v")
    a("s_barrier")
    a("s_branch L_c_v")
    lab("L_c_vdone")
    c("weights of the last %d units, then one more regular step" % TU)
    a("s_lshl_b32 s%d, s%d, 5" % (t0, sC))
    a("v_subrev_u32 v%d, s%d, v%d" % (vAd0, t0, vSA))
    for k in range(4):
        a("ds_read_b32 v%d, v%d offset:%d" % (vT + k, vAd0, 64 + 32 * k))
    a("s_waitcnt lgkmcnt(0)")
    weights(8, vAt)
    a("s_barrier")
    v_step()
    c("last units: wave 1 finishes thirds 0 and 2 of the columns, wave 2 third 1; o is rounded to bf16 once")
    a("v_add_u32 v%d, %d, v%d" % (vAd0, XA, vL16))
    a("s_nop 3")
    a("s_cmp_lg_u32 s%d, 0" % sC)
    a("s_cbranch_scc1 L_c_give1")
    a("ds_write_b128 v%d, %s offset:1024" % (vAd0, q4(vAcc + 4)))
    a("s_branch L_c_given")
    lab("L_c_give1")
    a("ds_write_b128 v%d, %s" % (vAd0, q4(vAcc)))
    a("ds_write_b128 v%d, %s offset:2048" % (vAd0, q4(vAcc + 8)))
    lab("L_c_given")
    a("s_waitcnt lgkmcnt(0)")

    def take(i):
        a("ds_read_b128 %s, v%d offset:%d" % (q4(vQ), vAd0, 1024 * i))
        a("s_waitcnt lgkmcnt(0)")
        for r in range(4):
            a("v_add_f32 v%d, v%d, v%d" % (vAcc + 4 * i + r, vAcc + 4 * i + r, vQ + r))

    def finish(i):
        A = vAcc + 4 * i
        for u in range(TU):
            a("ds_read_b128 %s, v%d offset:%d" % (q4(vD + 4 * u), vTad, u * UNIT + 1024 * i))
        for u in range(TU):
            a("s_waitcnt lgkmcnt(%d)" % (TU - 1 - u))
            a("%s %s, %s, %s, %s" % (MFMA, q4(A), q4(vAt + 4 * u), q4(vD + 4 * u), q4(A)))
        a("s_nop 7")
        a("v_permlane32_swap_b32 v%d, v%d" % (A, A + 2))
        a("v_permlane32_swap_b32 v%d, v%d" % (A + 1, A + 3))
        a("s_nop 0")
        a("v_add_f32_dpp v%d, v%d, v%d row_ror:8 row_mask:0xf bank_mask:0xf" % (vT, A + 2, A))
        a("v_add_f32_dpp v%d, v%d, v%d row_ror:8 row_mask:0xf bank_mask:0xf" % (vT + 1, A + 3, A + 1))
        a("s_mov_b32 exec_lo, 0x00ff00ff")
        a("s_mov_b32 exec_hi, 0x00ff00ff")
        a("v_cvt_pk_bf16_f32 v%d, v%d, v%d" % (vT, vT, vT + 1))
        a("ds_write_b32 v%d, v%d offset:%d" % (vOad, vT, 128 * i))
        a("s_mov_b64 exec, -1")
        a("s_waitcnt lgkmcnt(0)")

    a("s_cmp_lg_u32 s%d, 0" % sC)
    a("s_barrier")
    a("s_cbranch_scc0 L_c_fin0")
    take(1)
    a("s_barrier")
    finish(1)
    a("s_barrier")
    a("s_endpgm")
    lab("L_c_fin0")
    take(0)
    finish(0)
    a("s_barrier")
    take(2)
    c("setup of the final sum over the heads")
    sTry, sGo = sA0, sA1
    G = vD
    sG = sIn
    if spread:
        a("s_mul_i32 s%d, s%d, 5" % (sG, sH))
        a("s_and_b32 s%d, s%d, 7" % (sGo, sG))
        a("s_lshr_b32 s%d, s%d, 3" % (sG, sG))
        a("s_cmp_lt_u32 s%d, 5" % sGo)
        a("s_cselect_b32 s%d, s%d, 99" % (sG, sG))
    else:
        a("s_mov_b32 s%d, s%d" % (sG, sH))
    a("s_lshl_b32 s%d, s%d, 12" % (sGo, sG))
    a("s_mov_b32 s%d, 0" % sTry)
    for r in range(4):
        a("s_bfe_u32 s%d, s%d, 0x%x" % (t0 + r, sTagY, (8 << 16) | (8 * r)))
    a("v_and_b32 v1, 7, v0")
    a("v_bfe_u32 v2, v0, 4, 1")
    a("v_lshrrev_b32 v3, 5, v0")
    a("v_lshl_add_u32 v2, v2, 1, v3")
    a("v_lshl_add_u32 v1, v1, 2, v2")
    a("v_lshlrev_b32 v1, 1, v1")
    sets = [132 + 16 * d for d in range(depth)]
    sMk = 24
    if own:
        c("this workgroup's own record comes through LDS: its 8 lanes are left out of the loads")
        a("s_and_b32 s%d, s%d, 7" % (sSc, sH))
        a("s_lshl_b32 s%d, s%d, 3" % (sSc, sSc))
        a("s_lshl_b64 s[%d:%d], 0xff, s%d" % (sMk + 6, sMk + 7, sSc))
        a("s_lshr_b32 s%d, s%d, 3" % (sSc, sH))
        for k in range(3):
            a("s_cmp_eq_u32 s%d, %d" % (sSc, k))
            a("s_cselect_b64 s[%d:%d], s[%d:%d], 0" % (sMk + 2 * k, sMk + 2 * k + 1, sMk + 6, sMk + 7))
            a("s_not_b64 s[%d:%d], s[%d:%d]" % (sMk + 2 * k, sMk + 2 * k + 1, sMk + 2 * k, sMk + 2 * k + 1))
        for P in sets:
            for k in range(3):
                for r in range(4):
                    a("v_mov_b32 v%d, s%d" % (P + 4 * k + r, t0 + r))
        a("v_and_b32 v3, 7, v0")
        a("v_lshlrev_b32 v3, 4, v3")
        a("v_add_u32 v3, %d, v3" % YO)
    a("s_barrier")
    finish(2)
    a("s_barrier")
    c("wave 1 of the workgroups with head < 20 sums 32 output columns over the 32 heads")
    a("s_cmp_ge_u32 s%d, 20" % sG)
    a("s_cbranch_scc1 L_r_done")
    if not own and ybar:
        c("wait until this workgroup's own records are written")
        a("s_barrier")
    if dbg & 2:
        stamp(9)

    def poll(P):
        for k in range(4):
            if own:
                a("s_mov_b64 exec, %s" % ("s[%d:%d]" % (sMk + 2 * k, sMk + 2 * k + 1) if k < 3 else "-1"))
            a("buffer_load_dwordx4 %s, v%d, %s, s%d offen offset:%d %s" % (q4(P + 4 * k), vL16, s4(YS), sGo, 1024 * k, rpol))

    for P in sets[:-1]:
        poll(P)
    lab("L_r_poll")
    for d, P in enumerate(sets):
        poll(sets[d - 1])
        for k in range(4):
            a("s_waitcnt vmcnt(%d)" % (4 * (depth - 1) + 3 - k))
            for r in range(4):
                a("v_xor_b32 v%d, s%d, v%d" % (G + 4 * k + r, t0 + r, P + 4 * k + r))
            if k == 0:
                a("v_or3_b32 v2, v%d, v%d, v%d" % (G, G + 1, G + 2))
                a("v_or_b32 v2, v2, v%d" % (G + 3))
            else:
                a("v_or3_b32 v2, v2, v%d, v%d" % (G + 4 * k, G + 4 * k + 1))
                a("v_or3_b32 v2, v2, v%d, v%d" % (G + 4 * k + 2, G + 4 * k + 3))
        a("v_and_b32 v2, 0xff, v2")
        a("v_cmp_ne_u32 vcc, 0, v2")
        a("s_cbranch_vccz L_r_sum")
        if rsleep:
            a("s_bcnt1_i32_b64 s%d, vcc" % sSc)
            a("s_cmp_le_u32 s%d, %d" % (sSc, thr))
            a("s_cbranch_scc1 L_r_near%d" % d)
            a("s_sleep %d" % rsleep)
            lab("L_r_near%d" % d)
    a("s_add_u32 s%d, s%d, 1" % (sTry, sTry))
    a("s_cmp_lt_u32 s%d, 0x100000" % sTry)
    a("s_cbranch_scc1 L_r_poll")
    lab("L_r_sum")
    if own:
        a("s_barrier")
        a("s_lshr_b32 s%d, s%d, 3" % (sSc, sH))
        a("s_mov_b64 exec, s[%d:%d]" % (sMk + 6, sMk + 7))
        for k in range(3):
            if k < 2:
                a("s_cmp_lg_u32 s%d, %d" % (sSc, k))
                a("s_cbranch_scc1 L_r_own%d" % (k + 1))
            a("ds_read_b128 %s, v3" % q4(G + 4 * k))
            if k < 2:
                a("s_branch L_r_owned")
                lab("L_r_own%d" % (k + 1))
        lab("L_r_owned")
        a("s_mov_b64 exec, -1")
        a("s_waitcnt lgkmcnt(0)")
    if dbg & 2:
        stamp(10)
    for r in range(4):
        a("v_add_f32 v%d, v%d, v%d" % (G + r, G + r, G + 4 + r))
        a("v_add_f32 v%d, v%d, v%d" % (G + 8 + r, G + 8 + r, G + 12 + r))
    for r in range(4):
        a("v_add_f32 v%d, v%d, v%d" % (G + r, G + r, G + 8 + r))
    a("s_lshl_b32 s%d, s%d, 6" % (sGo, sG))
    a("s_nop 0")
    a("v_permlane32_swap_b32 v%d, v%d" % (G, G + 1))
    a("v_permlane32_swap_b32 v%d, v%d" % (G + 2, G + 3))
    a("s_nop 0")
    a("v_add_f32 v%d, v%d, v%d" % (G, G, G + 1))
    a("v_add_f32 v%d, v%d, v%d" % (G + 2, G + 2, G + 3))
    a("s_nop 1")
    a("v_permlane16_swap_b32 v%d, v%d" % (G, G + 2))
    a("s_nop 0")
    a("v_add_f32 v%d, v%d, v%d" % (G, G, G + 2))
    a("s_nop 1")
    a("v_add_f32_dpp v%d, v%d, v%d row_ror:8 row_mask:0xf bank_mask:0xf" % (G, G, G))
    a("s_mov_b32 exec_lo, 0x00ff00ff")
    a("s_mov_b32 exec_hi, 0x00ff00ff")
    a("v_cvt_pk_bf16_f32 v%d, v%d, v%d" % (G, G, G))
    a("buffer_store_short v%d, v1, %s, s%d offen %s" % (G, s4(OS), sGo, opol))
    c("every workgroup of this row has read the tag word: advance it for the next launch")
    a("s_cmp_lg_u32 s%d, 0" % sH)
    a("s_cbranch_scc1 L_r_done")
    a("s_lshl_b32 s%d, s%d, 8" % (t0, sB))
    a("s_add_u32 s%d, s%d, 0x%x" % (t0, t0, EB))
    a("s_mov_b64 exec, 1")
    a("v_mov_b32 v1, s%d" % t0)
    a("v_mov_b32 v2, s%d" % sTagY)
    a("global_store_dword v1, v2, s[18:19] sc1")
    lab("L_r_done")
    if stamps:
        a("s_waitcnt vmcnt(0)")
        stamp(7)
        flush_stamps([7, 9, 10] if dbg & 2 else [7])
    a("s_endpgm")

    c("======== holders ========")
    lab("L_holder")
    sHj, sO, sTag, sTagR, sLoop, sTry = 54, 55, 56, 57, 58, 59
    sPlo, sPhi = 60, 61
    vWq, vWo, vY, vTag = 4, 5, 6, 7
    vX = 8
    blk = lambda k: 32 + 32 * k
    a("s_sub_u32 s%d, s%d, 3" % (sHj, sW))
    a("s_mov_b32 s%d, 0x05040100" % sPlo)
    a("s_mov_b32 s%d, 0x07060302" % sPhi)
    a("s_cmp_lg_u32 s%d, 0" % sHj)
    a("s_cbranch_scc1 L_h_setup")
    c("q projection, shared by the 8 workgroups of the head: workgroup b < 6 multiplies x (all 8 rows) by")
    c("rows [320*(b/3), +320) x columns [64*(b%3), +64) of the head's wq slice and sends each row to its owner")
    a("v_and_b32 v1, 7, v0")
    a("v_bfe_u32 v2, v0, 3, 1")
    a("v_lshrrev_b32 v3, 4, v0")
    a("v_lshl_add_u32 v29, v2, 2, v3")
    a("v_mul_u32_u24 v%d, %d, v29" % (vWq, 8 * 12288))
    a("v_lshl_add_u32 v%d, v1, 4, v%d" % (vWq, vWq))
    a("v_mul_u32_u24 v30, 1280, v1")
    a("v_lshl_add_u32 v30, v29, 4, v30")
    a("v_lshlrev_b32 v31, 11, v1")
    a("s_cmp_ge_u32 s%d, 3" % sB)
    a("s_cselect_b32 s%d, 320, 0" % t2)
    a("s_cselect_b32 s%d, 3, 0" % t3)
    a("s_sub_u32 s%d, s%d, s%d" % (t3, sB, t3))
    a("s_mul_i32 s%d, s%d, 12288" % (sO, t2))
    a("s_lshl_b32 s%d, s%d, 7" % (t3, t3))
    a("s_add_u32 s%d, s%d, s%d" % (sO, sO, t3))
    a("s_lshl_b32 s%d, s%d, 1" % (t2, t2))
    a("s_mul_i32 s%d, s%d, 384" % (t0, sH))
    a("s_lshl_b32 s%d, s%d, 14" % (t1, sH))
    a("s_add_u32 s%d, s%d, 0x%x" % (t1, t1, QB))
    a("s_waitcnt lgkmcnt(0)")
    srd(YS, 18, 19, t1, 16384)
    load_row_tag(sTagR)
    c("tags of the 8 receivers: the words found in d_ws, advanced")
    a("buffer_load_dword v%d, v31, %s, 0 offen offset:1536 sc1" % (vTag, s4(YS)))
    a("s_cmp_ge_u32 s%d, 6" % sB)
    a("s_cbranch_scc1 L_q_tag")
    srd(WQ, 10, 11, t0, "s_sub_u32 s%%d, 7864320, s%d" % t0)
    a("s_mov_b32 s%d, s4" % XS)
    a("s_mov_b32 s%d, s5" % (XS + 1))
    a("s_mov_b32 s%d, 10240" % (XS + 2))
    a("s_mov_b32 s%d, 0x20000" % (XS + 3))
    for rb in range(5):
        for i in range(8):
            a("buffer_load_dwordx4 %s, v%d, %s, s%d offen %s" % (q4(blk(rb + 1) + 4 * i), vWq, s4(WQ), sO, wqpol))
            a("s_add_u32 s%d, s%d, %d" % (sO, sO, 12288 if i < 7 else 57 * 12288))
        a("buffer_load_dwordx4 %s, v30, %s, s%d offen offset:%d" % (q4(vX + 4 * rb), s4(XS), t2, 128 * rb))
    a("v_lshl_add_u32 v31, v29, 4, v31")
    a("s_lshl_b32 s%d, s%d, 8" % (sO, sB))
    qacc = blk(6)

    def transpose(dst, src, col):
        for p in range(4):
            a("v_perm_b32 v%d, v%d, v%d, s%d" % (dst + 4 * col + p, src + 4 * (2 * p + 1) + col // 2,
                                                src + 4 * (2 * p) + col // 2, sPhi if col % 2 else sPlo))

    for rb in range(5):
        a("s_waitcnt vmcnt(%d)" % (9 * (4 - rb)))
        transpose(blk(0), blk(rb + 1), 0)
        for col in range(8):
            if col < 7:
                transpose(blk(0), blk(rb + 1), col + 1)
            else:
                a("s_nop 0")
            d = qacc + 4 * col
            a("%s %s, %s, %s, %s" % (MFMA, q4(d), q4(blk(0) + 4 * col), q4(vX + 4 * rb), "0" if rb == 0 else q4(d)))
    a("v_add_u32 v%d, 0x11111111, v%d" % (vTag, vTag))
    for k in range(1, 8):
        a("v_lshrrev_b32 v%d, %d, v%d" % (16 + k, 4 * k, vTag))
    c("add the two 32-row halves; lanes 0-7 / 8-15 of each row end up with even / odd columns")
    for col in range(4):
        for r in range(4):
            a("v_permlane32_swap_b32 v%d, v%d" % (qacc + 4 * col + r, qacc + 4 * (col + 4) + r))
    for st in range(2):
        for r in range(4):
            a("v_add_f32_dpp v%d, v%d, v%d row_ror:8 row_mask:0xf bank_mask:0x3" % (vX + 4 * st + r, qacc + 4 * (2 * st + 4) + r, qacc + 4 * (2 * st) + r))
    for st in range(2):
        for r in range(4):
            a("v_add_f32_dpp v%d, v%d, v%d row_ror:8 row_mask:0xf bank_mask:0xc" % (vX + 4 * st + r, qacc + 4 * (2 * st + 1) + r, qacc + 4 * (2 * st + 5) + r))
    c("the low 4 bits of each word carry 4 bits of the receiver's tag")
    for st in range(2):
        for r in range(4):
            t = vX + 4 * st + r
            k = 4 * st + r
            a("v_bfi_b32 v%d, 15, v%d, v%d" % (t, 16 + k if k else vTag, t))
        a("buffer_store_dwordx4 %s, v31, %s, s%d offen offset:%d sc1" % (q4(vX + 4 * st), s4(YS), sO, 128 * st))
    a("s_branch L_q_gather")
    lab("L_q_tag")
    a("s_waitcnt vmcnt(0)")
    a("v_add_u32 v%d, 0x11111111, v%d" % (vTag, vTag))
    lab("L_q_gather")
    stamp(4)
    a("v_lshlrev_b32 v1, 4, v0")
    a("v_readlane_b32 s%d, v%d, s%d" % (sTag, vTag, sB))
    a("s_lshl_b32 s%d, s%d, 11" % (sO, sB))
    a("s_mov_b32 s%d, 0" % sTry)
    a("v_bfe_u32 v2, v0, 3, 1")
    a("v_lshlrev_b32 v2, 4, v2")
    a("v_lshrrev_b32 v28, v2, s%d" % sTag)
    for r in range(1, 4):
        a("v_lshrrev_b32 v%d, %d, v28" % (28 + r, 4 * r))
    a("s_mov_b32 exec_hi, 0xffff")
    GA, GB = 16, 20
    lab("L_q_poll")
    a("buffer_load_dwordx4 %s, v1, %s, s%d offen %s" % (q4(GA), s4(YS), sO, qpol))
    a("buffer_load_dwordx4 %s, v1, %s, s%d offen offset:768 %s" % (q4(GB), s4(YS), sO, qpol))
    a("s_add_u32 s%d, s%d, 1" % (sTry, sTry))
    a("s_waitcnt vmcnt(0)")
    for r in range(4):
        a("v_xor_b32 v%d, v%d, v%d" % (24 + r, GA + r, 28 + r))
    a("v_or3_b32 v24, v24, v25, v26")
    for r in range(3):
        a("v_xor_b32 v%d, v%d, v%d" % (25 + r if r < 2 else 3, GB + r, 28 + r))
    a("v_or3_b32 v24, v24, v27, v25")
    a("v_xor_b32 v25, v%d, v31" % (GB + 3))
    a("v_or3_b32 v24, v24, v26, v3")
    a("v_or_b32 v24, v24, v25")
    a("v_and_b32 v24, 15, v24")
    a("v_cmp_ne_u32 vcc, 0, v24")
    a("s_cbranch_vccz L_q_got")
    if sleep:
        a("s_sleep %d" % sleep)
    a("s_cmp_lt_u32 s%d, 0x100000" % sTry)
    a("s_cbranch_scc1 L_q_poll")
    lab("L_q_got")
    a("v_lshrrev_b32 v2, 4, v0")
    a("v_lshlrev_b32 v2, 6, v2")
    a("v_and_b32 v3, 1, v0")
    a("v_lshl_add_u32 v2, v3, 5, v2")
    a("v_bfe_u32 v3, v0, 2, 2")
    a("v_add_u32 v2, v2, v3")
    a("v_bfe_u32 v3, v0, 1, 1")
    a("v_lshl_add_u32 v2, v3, 2, v2")
    a("v_lshlrev_b32 v2, 1, v2")
    a("v_add_u32 v2, %d, v2" % Q)
    for r in range(8):
        a("v_bfi_b32 v%d, 15, 8, v%d" % (GA + r, GA + r))
    for r in range(4):
        a("v_add_f32 v%d, v%d, v%d" % (GA + r, GA + r, GB + r))
    a("v_cvt_pk_bf16_f32 v%d, v%d, v%d" % (GA, GA, GA + 1))
    a("v_cvt_pk_bf16_f32 v%d, v%d, v%d" % (GA + 2, GA + 2, GA + 3))
    a("ds_write_b16 v2, v%d" % GA)
    a("ds_write_b16_d16_hi v2, v%d offset:16" % GA)
    a("ds_write_b16 v2, v%d offset:32" % (GA + 2))
    a("ds_write_b16_d16_hi v2, v%d offset:48" % (GA + 2))
    c("all six senders have read this workgroup's tag word: advance it for the next launch")
    a("v_mov_b32 v3, s%d" % sTag)
    a("s_mov_b64 exec, 1")
    a("buffer_store_dword v3, v1, %s, s%d offen offset:1536 sc1" % (s4(YS), sO))
    a("s_mov_b64 exec, -1")
    stamp(14)
    a("s_branch L_h_go")
    lab("L_h_setup")
    a("s_waitcnt lgkmcnt(0)")
    load_row_tag(sTagR)
    if g2:
        c("the group's offset word starts at zero")
        a("s_and_b32 s%d, s2, 7" % t0)
        a("s_lshl_b32 s%d, s%d, 12" % (t0, t0))
        a("s_add_u32 s%d, s%d, 0x%x" % (t0, t0, PB + 128))
        a("v_mov_b32 v24, s%d" % t0)
        a("v_add_u32 v25, 1920, v24")
        a("v_mov_b32 v26, 0")
        a("s_lshl_b32 s%d, s%d, 3" % (t1, sJ))
        a("s_add_u32 s%d, s%d, s%d" % (t1, t1, sHj))
        a("s_cmp_lg_u32 s%d, 1" % t1)
        a("s_cbranch_scc1 L_m_noinit")
        a("s_mov_b64 exec, 1")
        a("global_store_dword v24, v26, s[18:19]")
        a("s_mov_b64 exec, -1")
        lab("L_m_noinit")
    lab("L_h_go")
    a("s_waitcnt lgkmcnt(0)")
    a("s_barrier")
    nb = 1
    a("s_add_u32 s%d, s%d, 0x01010101" % (sTagR, sTagR))
    a("s_mul_i32 s%d, s%d, 245760" % (t0, sH))
    srd(WO, 12, 13, t0, 245760)
    a("s_mul_i32 s%d, s%d, 81920" % (t0, sB))
    srd(YS, 18, 19, t0, 81920)
    c("this wave holds columns [128*j, +128) of all 192 rows: lane = (8-row group, 8-column chunk)")
    a("v_lshrrev_b32 v1, 4, v0")
    a("v_and_b32 v2, 15, v0")
    a("v_mul_u32_u24 v%d, 10240, v1" % vWo)
    a("v_lshl_add_u32 v%d, v2, 4, v%d" % (vWo, vWo))
    a("s_lshl_b32 s%d, s%d, 8" % (t0, sHj))
    a("v_add_u32 v%d, s%d, v%d" % (vWo, t0, vWo))
    c("hand-off record [32-column group][head][128 bytes]")
    a("v_bfe_u32 v3, v0, 2, 2")
    a("v_lshlrev_b32 v%d, 12, v3" % vY)
    a("v_and_b32 v3, 3, v0")
    a("v_lshl_add_u32 v%d, v3, 5, v%d" % (vY, vY))
    a("v_lshl_add_u32 v%d, v1, 4, v%d" % (vY, vY))
    a("s_lshl_b32 s%d, s%d, 14" % (t0, sHj))
    a("s_lshl_b32 s%d, s%d, 7" % (t1, sH))
    a("s_add_u32 s%d, s%d, s%d" % (t0, t0, t1))
    a("v_add_u32 v%d, s%d, v%d" % (vY, t0, vY))
    a("v_mov_b32 v%d, s%d" % (vTag, sTagR))

    def idle(n):
        if n <= 2:
            for _ in range(n):
                a("s_barrier")
            return
        name = "L_h_idle%d" % len(L)
        a("s_mov_b32 s%d, %d" % (sLoop, n))
        lab(name)
        a("s_barrier")
        a("s_sub_u32 s%d, s%d, 1" % (sLoop, sLoop))
        a("s_cmp_lg_u32 s%d, 0" % sLoop)
        a("s_cbranch_scc1 %s" % name)

    sP = 62
    if wo_p > 1:
        c("one wo load every %d rounds; the wave that later compares group progress loads every round" % wo_p)
        a("s_lshl_b32 s%d, s%d, 3" % (t1, sJ))
        a("s_add_u32 s%d, s%d, s%d" % (t1, t1, sHj))
        a("s_cmp_eq_u32 s%d, 1" % t1)
        a("s_cselect_b32 s%d, 1, %d" % (sP, wo_p))
        a("s_and_b32 s%d, s%d, %d" % (t1, sHj, wo_p - 1))
        a("s_cmp_eq_u32 s%d, 1" % sP)
        a("s_cselect_b32 s%d, 0, s%d" % (sTry, t1))
        a("s_add_u32 s%d, s%d, %d" % (sLoop, sTry, wo_r0))
        lab("L_h_wo0")
        a("s_barrier")
        a("s_sub_u32 s%d, s%d, 1" % (sLoop, sLoop))
        a("s_cmp_lg_u32 s%d, 0" % sLoop)
        a("s_cbranch_scc1 L_h_wo0")
    else:
        idle(wo_r0)
    nb += wo_r0
    n = 0
    while n < 48:
        for _ in range(wo_k):
            ks, i = divmod(n, 8)
            if i % 4 == 0:
                a("s_mov_b32 s%d, %d" % (sO, ks * 40960 + (i // 4) * 5120))
            a("buffer_load_dwordx4 %s, v%d, %s, s%d offen offset:%d %s" % (q4(blk(ks + 1) + 4 * i), vWo, s4(WO), sO, (i % 4) * 1280, wopol))
            n += 1
        a("s_barrier")
        if wo_p > 1:
            a("s_cmp_eq_u32 s%d, 1" % sP)
            a("s_cbranch_scc1 L_h_wo%d" % n)
            for _ in range(wo_p - 1):
                a("s_barrier")
            lab("L_h_wo%d" % n)
        nb += 1
    idle(8)
    nb += 8
    a("s_waitcnt vmcnt(0)")
    c("transpose each 8x8 block into the previous block's registers: MFMA operands with k along rows")
    for ks in range(6):
        for col in range(8):
            transpose(blk(ks), blk(ks + 1), col)
        a("s_barrier")
        nb += 1
    a("v_lshrrev_b32 v1, 4, v0")
    a("v_lshlrev_b32 v1, 4, v1")
    a("v_add_u32 v1, %d, v1" % OP)
    if g2:
        c("one wave per group compares the group's progress with the other seven groups'")
        nit = (NB - mend - nb) // mp
        sAd, sNew, sPrev, sD, sR, sPc, sMo = 4, 24, 32, 44, 62, 63, 12
        a("s_lshl_b32 s%d, s%d, 3" % (t1, sJ))
        a("s_add_u32 s%d, s%d, s%d" % (t1, t1, sHj))
        a("s_cmp_lg_u32 s%d, 1" % t1)
        a("s_cbranch_scc1 L_m_idle")
        for i in range(8):
            a("s_add_u32 s%d, s2, %d" % (t0, i))
            a("s_and_b32 s%d, s%d, 7" % (t0, t0))
            a("s_lshl_b32 s%d, s%d, 12" % (t0, t0))
            a("s_add_u32 s%d, s%d, 0x%x" % (sAd + i, t0, PB + 2048))
            a("s_load_dword s%d, s[18:19], s%d %s" % (sNew + i, sAd + i, sglc))
        a("v_mov_b32 v27, %d" % MTOT)
        a("s_mov_b32 s%d, %d" % (sR, nb))
        a("s_mov_b32 s%d, %d" % (sPc, 1))
        a("s_mov_b32 s%d, %d" % (sTry, nit - 1))
        a("s_mov_b64 exec, 1")
        idle(mp)
        a("s_waitcnt lgkmcnt(0)")
        for i in range(8):
            a("s_mov_b32 s%d, s%d" % (sPrev + i, sNew + i))
            a("s_mov_b32 s%d, 0" % (sD + i if i < 4 else 13 + i - 4))
        dreg = lambda i: sD + i if i < 4 else 13 + i - 4
        lab("L_m_loop")
        a("s_add_u32 s%d, s%d, %d" % (sR, sR, mp))
        a("ds_read_b32 v26, v27")
        a("s_waitcnt lgkmcnt(0)")
        a("v_readfirstlane_b32 s%d, v26" % sMo)
        a("s_lshl_b32 s%d, s%d, 5" % (t0, sR))
        a("s_add_i32 s%d, s%d, s%d" % (sMo, sMo, t0))
        for i in range(8):
            a("s_load_dword s%d, s[18:19], s%d %s" % (sNew + i, sAd + i, sglc))
        a("s_sub_u32 s%d, s%d, 1" % (sPc, sPc))
        a("s_cbranch_scc0 L_m_nopub")
        a("s_mov_b32 s%d, %d" % (sPc, mpub - 1))
        a("v_mov_b32 v26, s%d" % sMo)
        a("global_store_dword v25, v26, s[18:19] sc1")
        lab("L_m_nopub")
        idle(mp)
        a("s_waitcnt lgkmcnt(0)")
        a("s_mov_b32 s%d, 0" % t1)
        for i in range(8):
            a("s_sub_i32 s%d, s%d, s%d" % (t0, sNew + i, sMo))
            a("s_cmp_lg_u32 s%d, s%d" % (sNew + i, sPrev + i))
            a("s_cselect_b32 s%d, s%d, s%d" % (dreg(i), t0, dreg(i)))
            a("s_mov_b32 s%d, s%d" % (sPrev + i, sNew + i))
            if mmin:
                a(("s_min_i32 s%d, s%d, s%d" % (t1, t1, dreg(i))) if i else ("s_mov_b32 s%d, s%d" % (t1, dreg(i))))
            else:
                a("s_add_i32 s%d, s%d, s%d" % (t1, t1, dreg(i)))
        if not mmin:
            a("s_ashr_i32 s%d, s%d, 3" % (t1, t1))
        a("s_add_i32 s%d, s%d, %d" % (t1, t1, b2))
        a("s_sub_i32 s%d, s%d, s%d" % (t1, t1, dreg(0)))
        a("s_max_i32 s%d, s%d, -256" % (t1, t1))
        a("s_min_i32 s%d, s%d, %d" % (t1, t1, mhi))
        a("s_cmp_gt_u32 s%d, %d" % (sTry, nit - 2 - 2 * mpub))
        a("s_cselect_b32 s%d, 0, s%d" % (t1, t1))
        a("v_mov_b32 v28, s%d" % t1)
        a("global_store_dword v24, v28, s[18:19]")
        a("s_sub_u32 s%d, s%d, 1" % (sTry, sTry))
        a("s_cmp_lg_u32 s%d, 0" % sTry)
        a("s_cbranch_scc1 L_m_loop")
        a("s_mov_b64 exec, -1")
        a("s_branch L_m_done")
        lab("L_m_idle")
        if wo_p > 1:
            a("s_sub_u32 s%d, %d, s%d" % (sLoop, nit * mp - 48 * (wo_p - 1), sTry))
            lab("L_m_idle2")
            a("s_barrier")
            a("s_sub_u32 s%d, s%d, 1" % (sLoop, sLoop))
            a("s_cmp_lg_u32 s%d, 0" % sLoop)
            a("s_cbranch_scc1 L_m_idle2")
            assert nit * mp - 48 * (wo_p - 1) > wo_p
        else:
            idle(nit * mp)
        lab("L_m_done")
        nb += nit * mp
    for r in range(4):
        a("s_mov_b32 s%d, 0x%08x" % (t0 + r, 0x07060500 + r))
    if own:
        c("the wave and lanes that hold the 32 columns this workgroup sums")
        a("s_lshr_b32 s%d, s%d, 2" % (sTry, sH))
        a("s_and_b32 s%d, s%d, 3" % (sPhi, sH))
        a("s_lshl_b32 s%d, s%d, 2" % (sPhi, sPhi))
        a("s_lshl_b32 s%d, 0x000f000f, s%d" % (sPlo, sPhi))
        a("s_mov_b32 s%d, 0" % sPhi)
        a("v_and_b32 v2, 3, v0")
        a("v_bfe_u32 v3, v0, 4, 1")
        a("v_lshl_add_u32 v2, v2, 1, v3")
        a("v_lshlrev_b32 v2, 4, v2")
        a("v_add_u32 v2, %d, v2" % YO)
    a("s_mov_b32 vcc_lo, 0xffff0000")
    a("s_mov_b32 vcc_hi, 0xffff0000")
    idle(NB + 1 - nb)
    c("y = o x wo, 64 rows per barrier; every row of the A operand is o")
    oacc = blk(6)
    for i in range(3):
        a("s_barrier")
        if i == 2:
            stamp(5)
        a("ds_read_b128 v[8:11], v1 offset:%d" % (128 * i))
        a("ds_read_b128 v[12:15], v1 offset:%d" % (128 * i + 64))
        for kk in range(2):
            ks = 2 * i + kk
            a("s_waitcnt lgkmcnt(%d)" % (1 - kk))
            for col in range(8):
                d = oacc + 4 * col
                a("%s %s, %s, %s, %s" % (MFMA, q4(d), q4(8 + 4 * kk), q4(blk(ks) + 4 * col), "0" if ks == 0 else q4(d)))
    a("s_nop %d" % (3 if own else 4))
    if own:
        a("s_cmp_lg_u32 s%d, s%d" % (sHj, sTry))
    for r in range(4):
        a("v_cndmask_b32 v%d, v%d, v%d, vcc" % (20 + r, oacc + 4 * r, oacc + 16 + 4 * r))
    if own:
        a("s_cbranch_scc1 L_h_notown")
        a("s_mov_b64 exec, s[%d:%d]" % (sPlo, sPhi))
        a("ds_write_b128 v2, v[20:23]")
        a("s_mov_b64 exec, -1")
        lab("L_h_notown")
    for r in range(4):
        a("v_perm_b32 v%d, v%d, v%d, s%d" % (24 + r, 20 + r, vTag, t0 + r))
    a("s_mov_b32 exec_hi, 0")
    a("buffer_store_dwordx4 v[24:27], v%d, %s, 0 offen %s" % (vY, s4(YS), ypol))
    stamp(6)
    if own:
        a("s_waitcnt lgkmcnt(0)")
        a("s_barrier")
    elif ybar:
        if ybar == 1:
            a("s_waitcnt vmcnt(0)")
        a("s_barrier")
    if stamps:
        a("s_cmp_lg_u32 s%d, 0" % sHj)
        a("s_cbranch_scc1 L_h_st")
        flush_stamps([4, 5, 14])
        lab("L_h_st")
        a("s_cmp_lg_u32 s%d, 4" % sHj)
        a("s_cbranch_scc1 L_end")
        flush_stamps([6])
    lab("L_end")
    a("s_endpgm")
    return HEADER.format(lds=LDS, name=NAME) + "\n".join(L) + FOOTER.format(name=NAME)


if __name__ == "__main__":
    spec = json.loads(sys.argv[1])
    names = []
    for cfg in spec:
        cfg = dict(cfg)
        out = cfg.pop("out", None)
        name = out or ("work/k_" + "_".join("%s%s" % (k, str(v).replace(" ", "")) for k, v in cfg.items()) + ".s")
        open("code/" + name, "w").write(gen(**cfg))
        names.append(name)
    print(" ".join(names))
```

```python
import json
import math
import struct
import sys

NAME = "standalone__mha_block_cached__sampling_kernel"

HEADER = """; Kernarg layout for this problem (64 bytes, ptrs only, base s[0:1]):
; @launch grid=(256,1,1) block=(512,1,1) lds={lds}
.amdgcn_target "amdgcn-amd-amdhsa--gfx950"
.text
.globl {name}
.p2align 8
.type {name},@function
{name}:
"""
FOOTER = """
.section .rodata,"a"
.p2align 6
.amdhsa_kernel {name}
  .amdhsa_next_free_vgpr 256
  .amdhsa_next_free_sgpr 96
  .amdhsa_accum_offset 256
  .amdhsa_group_segment_fixed_size 0
  .amdhsa_kernarg_size 64
  .amdhsa_user_sgpr_count 2
  .amdhsa_user_sgpr_kernarg_segment_ptr 1
  .amdhsa_system_sgpr_workgroup_id_x 1
  .amdhsa_float_denorm_mode_32 3
.end_amdhsa_kernel
"""

BH = 1572864
UNIT = 3072
RS = 4
TU = 8
NM = 1024 - TU
MFMA = "v_mfma_f32_16x16x32_bf16"


def f32bits(x):
    return struct.unpack("<I", struct.pack("<f", x))[0]


def gen(w1=18, NSLOT=44, wo_r0=14, wo_k=1, stamps=0, wqpol="nt", wopol="nt", prio=3, sleep=16, rsleep=4,
        ctl=1, pp=3, gain=112, bias=24, wlim=2, c0=9, pair=(172, 172, 168), wt=19, dbg=0, rpol="sc1", ypol="sc1", qpol="sc1", r0sleep=0, depth=2, thr=24, ybar=1, opol="", g2=12, mp=3, mpub=3, mend=12, sglc="glc", b2=-56, mmin=0, mhi=256, pb=4, cu=2, own=0, spread=0, wadj=0, wo_p=1, qdelay=0, qspol="sc1", bqw=8, bqn=9, sent=0):
    L = []

    def a(s):
        L.append("    " + s)

    def lab(s):
        L.append(s + ":")

    def c(s):
        L.append("    ; " + s)

    def q4(r):
        return "v[%d:%d]" % (r, r + 3)

    def s4(r):
        return "s[%d:%d]" % (r, r + 3)

    RING = NSLOT * UNIT
    SC = RING
    MISC = SC + 8192
    Q = MISC
    MX = MISC + 384
    WIN = MISC + 512
    MTOT = MISC + 516
    LDS = MISC + 528
    OP = SC
    XA = SC + 512
    YO = SC + 384
    assert LDS <= 163840 and NSLOT % RS == 0 and NM % NSLOT + TU <= NSLOT
    EB = 0xC0000
    QB = 0x100000
    PB = 0x200000

    wmax = w1 + (wlim if ctl else 0)
    wt = w1 if wt is None else wt
    R = -(-wmax // 3) + 1
    N0 = NSLOT - RS
    L0 = (N0 - R) // RS * RS
    NB = (NM - L0) // RS + 1
    ndouble = L0 // RS - 1
    steps = [2 if (j % cu == 0 and 0 < j <= cu * ndouble) else 1 for j in range(NB)]
    assert sum(steps) == NM // RS and len(steps) == NB
    cons = 0
    for j, st in enumerate(steps):
        assert min(1024, N0 + (j + 1) * RS + (TU if N0 + (j + 1) * RS > NM else 0)) - NSLOT <= cons
        cons += RS * st
        assert cons <= L0 + RS * j

    sW, sH, sB, sJ = 20, 21, 22, 23
    KV, WQ, WO, XS, YS, OS = 24, 28, 32, 36, 40, 44
    sVlo, sVhi = 48, 49
    t0, t1, t2, t3 = 50, 51, 52, 53
    stamp_reg = {k: 66 + 2 * k for k in range(15)}

    def stamp(k):
        if stamps:
            a("s_memrealtime s[%d:%d]" % (stamp_reg[k], stamp_reg[k] + 1))

    def flush_stamps(ks):
        if not stamps:
            return
        a("s_waitcnt lgkmcnt(0)")
        a("s_mov_b64 exec, 1")
        a("s_lshl_b32 s%d, s2, 7" % t0)
        a("s_add_u32 s%d, s%d, 0x4000000" % (t0, t0))
        a("v_mov_b32 v1, s%d" % t0)
        for k in ks:
            a("v_mov_b32 v2, s%d" % stamp_reg[k])
            a("v_mov_b32 v3, s%d" % (stamp_reg[k] + 1))
            a("global_store_dwordx2 v1, v[2:3], s[18:19] offset:%d" % (8 * k))
            a("s_nop 1")

    def srd(d, lo, hi, off_sreg, nbytes):
        a("s_add_u32 s%d, s%d, s%d" % (d, lo, off_sreg))
        a("s_addc_u32 s%d, s%d, 0" % (d + 1, hi))
        if isinstance(nbytes, int):
            a("s_mov_b32 s%d, %d" % (d + 2, nbytes))
        else:
            a(nbytes % (d + 2))
        a("s_mov_b32 s%d, 0x20000" % (d + 3))

    def load_row_tag(dst):
        c("tag word of this batch row's hand-off (advanced by 0x01010101 once it has arrived)")
        a("s_lshl_b32 s%d, s%d, 8" % (dst, sB))
        a("s_add_u32 s%d, s%d, 0x%x" % (dst, dst, EB))
        a("s_load_dword s%d, s[18:19], s%d" % (dst, dst))

    stamp(0)
    a("s_cmp_ge_u32 s2, 256")
    a("s_cbranch_scc1 L_end")
    a("s_load_dwordx16 s[4:19], s[0:1], 0")
    a("v_lshrrev_b32 v1, 6, v0")
    a("v_and_b32 v0, 63, v0")
    a("s_and_b32 s%d, s2, 7" % t0)
    a("v_readfirstlane_b32 s%d, v1" % sW)
    c("head = 4 * (id & 7) + ((id >> 3) & 3), batch = id >> 5")
    a("s_lshr_b32 s%d, s2, 3" % sJ)
    a("s_lshl_b32 s%d, s%d, 2" % (t0, t0))
    a("s_and_b32 s%d, s%d, 3" % (t1, sJ))
    a("s_add_u32 s%d, s%d, s%d" % (sH, t0, t1))
    a("s_lshr_b32 s%d, s%d, 2" % (sB, sJ))
    a("s_cmp_ge_u32 s%d, 3" % sW)
    a("s_cbranch_scc1 L_holder")
    a("s_cmp_ge_u32 s%d, 1" % sW)
    a("s_cbranch_scc1 L_consumer")

    c("======== loader ========")
    sM, sOff, sCnt, sSkip, sSeg, sMod, sWin, sRot = 54, 55, 57, 58, 59, 60, 61, 62
    sRet = 44
    vOff, vSh, vWa, vWv = 4, 8, 16, 17
    BIAS = 1792
    STEP = 4 * 384
    D0, D1, D2 = pair
    assert D0 + D1 + D2 == 512
    if prio:
        a("s_setprio %d" % prio)
    a("s_lshl_b32 s%d, s%d, 5" % (t0, sB))
    a("s_add_u32 s%d, s%d, s%d" % (t0, t0, sH))
    a("s_mul_i32 s%d, s%d, %d" % (t0, t0, BH))
    c("a unit is 4 keys (lanes 0-31) and the 4 keys about 64 KiB further on (lanes 32-63), 8 lanes per key.")
    c("1024 keys form three blocks of 2*%d, 2*%d and 2*%d keys; a unit may straddle two blocks." % pair)
    c("load i uses offset:1024*i, which is added to both addresses, so its lane offset carries 896*(2-i)")
    a("v_bfe_u32 v1, v0, 3, 2")
    a("v_lshrrev_b32 v3, 5, v0")
    a("v_mul_u32_u24 v2, 384, v1")
    a("v_and_b32 v%d, 7, v0" % vSh)
    a("v_lshl_add_u32 v2, v%d, 4, v2" % vSh)
    a("v_mul_u32_u24 v%d, %d, v3" % (vSh, D0 * 384))
    a("v_add_u32 v%d, v2, v%d" % (vSh, vSh))

    def shape(k):
        a("v_mov_b32 v%d, v%d" % (vOff + 2, vSh + k))
        a("v_add_u32 v%d, 896, v%d" % (vOff + 1, vSh + k))
        a("v_add_u32 v%d, 1792, v%d" % (vOff, vSh + k))

    shape(0)
    bounds = [D0, D0 + D1]
    segs = []
    pos = 0
    for bi, bd in enumerate(bounds + [512]):
        segs.append((2 * bi, bd // 4 - pos))
        pos = bd // 4
        if bd % 4:
            segs.append((2 * bi + 1, 1))
            pos += 1
    assert sum(n for _, n in segs) == 128
    NSEG = len(segs)
    c("the unit sequence starts sRot units into the first block and ends with the units skipped")
    assert TU + 1 + 7 * pb < segs[0][1]
    a("s_mul_i32 s%d, s%d, %d" % (sRot, sB, pb))
    a("s_add_u32 s%d, s%d, %d" % (sRot, sRot, TU + 1))

    def start_off():
        a("s_mul_i32 s%d, s%d, %d" % (sOff, sRot, STEP))
        a("s_mov_b32 s%d, 0" % sMod)
        a("s_sub_u32 s%d, %d, s%d" % (sCnt, segs[0][1] - 1, sRot))

    a("s_mov_b32 s%d, %d" % (sM, RING - RS * UNIT))
    a("s_mov_b32 s%d, 0" % sSeg)
    start_off()
    a("s_mov_b32 s%d, %d" % (sSkip, N0 // RS))
    a("s_waitcnt lgkmcnt(0)")
    a("s_sub_u32 s6, s6, %d" % BIAS)
    a("s_subb_u32 s7, s7, 0")
    srd(KV, 6, 7, t0, BH + BIAS)
    if stamps:
        a("s_mov_b32 s46, 0")
        a("s_memtime s[64:65]")

    def ld(i, so):
        a("buffer_load_dwordx4 v%d, %s, s%d offen offset:%d nt lds" % (vOff + i, s4(KV), so, 1024 * i))

    def round_body(w, tag, first=False):
        for u in range(RS):
            if u == 0:
                a("s_add_u32 s%d, s%d, %d" % (sM, sM, RS * UNIT))
                a("s_cmp_eq_u32 s%d, %d" % (sM, RING))
                a("s_cselect_b32 s%d, 0, s%d" % (sM, sM))
                a("s_mov_b32 m0, s%d" % sM)
            else:
                a("s_add_u32 m0, s%d, %d" % (sM, u * UNIT))
            a("s_nop 0" if first else "s_waitcnt vmcnt(%d)" % w)
            for i in range(3):
                ld(i, sOff)
            a("s_add_u32 s%d, s%d, %d" % (sOff, sOff, STEP))
            a("s_sub_u32 s%d, s%d, 1" % (sCnt, sCnt))
            if not first:
                a("s_cbranch_scc1 L_ld_seg_%s_%d" % (tag, u))
                lab("L_ld_cont_%s_%d" % (tag, u))

    c("first round, then the rest of the setup")
    assert TU + 1 + 7 * pb + RS < segs[0][1]
    round_body(0, "", first=True)
    a("s_sub_u32 s%d, s%d, 1" % (sSkip, sSkip))
    a("s_sub_u32 s8, s8, %d" % BIAS)
    a("s_subb_u32 s9, s9, 0")
    a("s_add_u32 s%d, s8, s%d" % (sVlo, t0))
    a("s_addc_u32 s%d, s9, 0" % sVhi)
    a("v_mul_u32_u24 v%d, %d, v3" % (vSh + 2, D1 * 384))
    a("v_add_u32 v%d, %d, v%d" % (vSh + 2, D0 * 384, vSh + 2))
    a("v_add_u32 v%d, v2, v%d" % (vSh + 2, vSh + 2))
    a("v_mul_u32_u24 v%d, %d, v3" % (vSh + 4, D2 * 384))
    a("v_add_u32 v%d, %d, v%d" % (vSh + 4, (D0 + D1) * 384, vSh + 4))
    a("v_add_u32 v%d, v2, v%d" % (vSh + 4, vSh + 4))
    for bi, bd in enumerate(bounds):
        if bd % 4:
            a("v_cmp_gt_u32 vcc, %d, v1" % (bd % 4))
            a("s_nop 1")
            a("v_cndmask_b32 v%d, v%d, v%d, vcc" % (vSh + 2 * bi + 1, vSh + 2 * bi + 2, vSh + 2 * bi))
    if ctl:
        a("v_mov_b32 v%d, %d" % (vWa, WIN))
        a("v_mov_b32 v%d, %d" % (vWv, w1))
    wins = list(range(w1 - wlim, w1 + wlim + 1)) if ctl else [w1]
    order = sorted(wins, key=lambda w: abs(w - w1))
    sBq = 47
    if bqw:
        c("one barrier while the ring fills releases the wave that collects q")
        a("s_cmp_ge_u32 s%d, 6" % sB)
        a("s_cselect_b32 s%d, %d, %d" % (sBq, N0 // RS - 1 - bqn, N0 // RS - 1 - bqw))
        a("s_branch L_ld")
        lab("L_ld_fill")
        a("s_cmp_lg_u32 s%d, s%d" % (sSkip, sBq))
        a("s_cbranch_scc1 L_ld_w%d" % order[0])
        a("s_barrier")
        a("s_branch L_ld_w%d" % order[0])
        assert 1 <= bqw < N0 // RS and 1 <= bqn < N0 // RS
    lab("L_ld")
    c("no other barriers until the ring is full")
    a("s_sub_u32 s%d, s%d, 1" % (sSkip, sSkip))
    a("s_cbranch_scc0 %s" % ("L_ld_fill" if bqw else "L_ld_w%d" % order[0]))
    if stamps:
        a("s_cmp_lg_u32 s46, 0")
        a("s_cbranch_scc1 L_st1")
        a("s_mov_b32 s46, 1")
        stamp(1)
        lab("L_st1")
    a("s_mov_b32 s%d, 0" % sSkip)
    if ctl:
        a("s_waitcnt lgkmcnt(0)")
        a("v_readfirstlane_b32 s%d, v%d" % (sWin, vWv))
        a("s_barrier")
        a("ds_read_b32 v%d, v%d" % (vWv, vWa))
        for w in order[1:]:
            a("s_cmp_eq_u32 s%d, %d" % (sWin, w))
            a("s_cbranch_scc1 L_ld_w%d" % w)
    else:
        a("s_barrier")
    for w in order:
        lab("L_ld_w%d" % w)
        round_body(w, str(w))
        a("s_branch L_ld")
    for w in order:
        for u in range(RS):
            lab("L_ld_seg_%d_%d" % (w, u))
            a("s_call_b64 s[%d:%d], L_ld_seg" % (sRet, sRet + 1))
            a("s_branch L_ld_cont_%d_%d" % (w, u))
    lab("L_ld_seg")
    c("end of a run of units with one lane-offset pattern: pick the next one")
    a("s_add_u32 s%d, s%d, 1" % (sSeg, sSeg))
    a("s_add_u32 s%d, s%d, 1" % (sMod, sMod))
    if stamps:
        for k, bn in ((8, 1), (9, NSEG), (10, 2 * NSEG), (11, 4 * NSEG + 1), (12, 6 * NSEG + 1)):
            a("s_cmp_lg_u32 s%d, %d" % (sSeg, bn))
            a("s_cbranch_scc1 L_st%d" % k)
            stamp(k)
            lab("L_st%d" % k)
    a("s_cmp_eq_u32 s%d, %d" % (sSeg, 4 * NSEG + 1))
    a("s_cbranch_scc1 L_ld_tov")
    a("s_cmp_eq_u32 s%d, %d" % (sSeg, 8 * NSEG + 2))
    a("s_cbranch_scc1 L_ld_done")
    for k in range(1, NSEG):
        a("s_cmp_lg_u32 s%d, %d" % (sMod, k))
        a("s_cbranch_scc1 L_ld_not%d" % k)
        shape(segs[k][0])
        a("s_mov_b32 s%d, %d" % (sCnt, segs[k][1] - 1))
        a("s_setpc_b64 s[%d:%d]" % (sRet, sRet + 1))
        lab("L_ld_not%d" % k)
    shape(0)
    a("s_mov_b32 s%d, 0" % sMod)
    a("s_add_u32 s%d, s%d, %d" % (sOff, sOff, 512 * 384))
    a("s_mov_b32 s%d, %d" % (sCnt, segs[0][1] - 1))
    a("s_cmp_lt_u32 s%d, %d" % (sOff, BH))
    a("s_cbranch_scc1 L_ld_ret")
    c("wrap to the units skipped at the start (over V, all but the last %d of them)" % TU)
    a("s_cmp_eq_u32 s%d, %d" % (sSeg, 4 * NSEG))
    a("s_cselect_b32 s%d, 0, %d" % (t0, TU))
    a("s_sub_u32 s%d, s%d, s%d" % (sRot, sRot, t0))
    a("s_mov_b32 s%d, 0" % sOff)
    a("s_sub_u32 s%d, s%d, 1" % (sCnt, sRot))
    lab("L_ld_ret")
    a("s_setpc_b64 s[%d:%d]" % (sRet, sRet + 1))
    lab("L_ld_tov")
    c("K done: same sequence over V")
    a("s_mov_b32 s%d, s%d" % (KV, sVlo))
    a("s_mov_b32 s%d, s%d" % (KV + 1, sVhi))
    start_off()
    a("s_setpc_b64 s[%d:%d]" % (sRet, sRet + 1))
    lab("L_ld_done")
    c("last %d units: all first thirds, then all second thirds, then all last thirds of the rows" % TU)
    a("s_mul_i32 s%d, s%d, %d" % (sOff, sRot, STEP))
    pend = {}
    for j in range((NM - 1 - N0) // RS + 1, NB):
        younger = 3 * (NM - (L0 + RS * j))
        k = max(0, wt - younger)
        pend.setdefault(k, []).append(younger + k)
    for k in range(3 * TU + 1):
        for n in pend.get(k, []):
            a("s_waitcnt vmcnt(%d)" % n)
            a("s_barrier")
        if k == 3 * TU:
            break
        i, u = divmod(k, TU)
        a("s_add_u32 s%d, s%d, %d" % (t0, sOff, u * STEP))
        a("s_mov_b32 m0, %d" % ((NM + u) % NSLOT * UNIT))
        a("s_waitcnt vmcnt(%d)" % (wt + 2))
        ld(i, t0)
    assert max(pend) <= 3 * TU
    stamp(2)
    for i in range(3):
        a("s_waitcnt vmcnt(%d)" % (TU * (2 - i)))
        a("s_barrier")
    stamp(3)
    if stamps:
        r13 = stamp_reg[13]
        a("s_memtime s[%d:%d]" % (r13, r13 + 1))
        a("s_waitcnt lgkmcnt(0)")
        a("s_sub_u32 s%d, s%d, s64" % (r13, r13))
        a("s_lshr_b32 s%d, s%d, 4" % (r13, r13))
        a("s_add_u32 s%d, s%d, s%d" % (r13, r13, stamp_reg[0]))
        a("s_addc_u32 s%d, s%d, 0" % (r13 + 1, stamp_reg[0] + 1))
    flush_stamps([0, 1, 2, 3, 8, 11, 12, 13] if dbg & 2 else [0, 1, 2, 3, 8, 9, 10, 11, 12, 13])
    a("s_endpgm")

    c("======== consumers ========")
    lab("L_consumer")
    sC, sA0, sA1, sSc, sRound, sIn, sScale, sTagY = 54, 55, 56, 57, 58, 59, 60, 61
    sOne, sNext, sPub, sLog2e = 62, 64, 65, 3
    vL16, vAd0, vSA, vM, vLsum, vInv, vE = 4, 5, 7, 8, 9, 10, 11
    vS, vT, vMask, vQ, vAcc, vAop, vD = 12, 20, 28, 32, 44, 56, 88
    vLad, vOad, vTad = 120, 121, 122
    vPa, vPo, vPv, vPw, vWin = 124, 125, 126, 127, 128
    a("s_sub_u32 s%d, s%d, 1" % (sC, sW))
    a("v_lshlrev_b32 v%d, 4, v0" % vL16)
    c("lane-constant masks: element (lane & 7) of an 8 x bf16 operand")
    a("v_and_b32 v%d, 1, v0" % vT)
    a("v_lshlrev_b32 v%d, 4, v%d" % (vT, vT))
    a("v_mov_b32 v%d, 0xffff" % (vT + 1))
    a("v_lshlrev_b32 v%d, v%d, v%d" % (vT, vT, vT + 1))
    a("v_bfe_u32 v%d, v0, 1, 2" % (vT + 1))
    for j in range(4):
        a("v_cmp_eq_u32 vcc, %d, v%d" % (j, vT + 1))
        a("s_nop 1")
        a("v_cndmask_b32 v%d, 0, v%d, vcc" % (vMask + j, vT))
    a("s_mul_i32 s%d, s%d, %d" % (sA0, sC, 2 * UNIT))
    a("v_add_u32 v%d, %d, v%d" % (vTad, NM % NSLOT * UNIT, vL16))
    c("scores (two bf16 per word) at [step][consumer][key], (max, sum) pairs at [consumer][key]")
    a("v_lshrrev_b32 v%d, 3, v0" % vT)
    a("s_lshl_b32 s%d, s%d, 5" % (t0, sC))
    a("s_add_u32 s%d, s%d, %d" % (t0, t0, SC))
    a("v_lshl_add_u32 v%d, v%d, 2, s%d" % (vSA, vT, t0))
    a("s_lshl_b32 s%d, s%d, 6" % (t0, sC))
    a("s_add_u32 s%d, s%d, %d" % (t0, t0, MX))
    a("v_lshl_add_u32 v%d, v%d, 3, s%d" % (vLad, vT, t0))
    a("v_mov_b32 v%d, 0xff800000" % vM)
    a("v_mov_b32 v%d, 0" % vLsum)
    for i in range(12):
        a("v_mov_b32 v%d, 0" % (vAcc + i))
    c("o columns 8*(lane & 7) + 4*((lane >> 4) & 1) + 2*(lane >> 5) + 0..1 of each third")
    a("v_and_b32 v%d, 7, v0" % vOad)
    a("v_bfe_u32 v%d, v0, 4, 1" % vT)
    a("v_lshl_add_u32 v%d, v%d, 1, v%d" % (vOad, vOad, vT))
    a("v_lshrrev_b32 v%d, 5, v0" % vT)
    a("v_lshl_add_u32 v%d, v%d, 1, v%d" % (vOad, vOad, vT))
    a("v_lshlrev_b32 v%d, 2, v%d" % (vOad, vOad))
    a("v_add_u32 v%d, %d, v%d" % (vOad, OP, vOad))
    a("s_mov_b32 s%d, 0x01010101" % sOne)
    a("s_mov_b32 s%d, 0x01010101" % (sOne + 1))
    a("s_mov_b32 s%d, 0x%08x" % (sScale, f32bits(192 ** -0.5)))
    a("s_mov_b32 s%d, 0x%08x" % (sLog2e, f32bits(math.log2(math.e))))
    a("s_waitcnt lgkmcnt(0)")
    load_row_tag(sTagY)
    a("s_mul_i32 s%d, s%d, 81920" % (t0, sB))
    srd(YS, 18, 19, t0, 81920)
    a("s_mul_i32 s%d, s%d, 1280" % (t0, sB))
    srd(OS, 14, 15, t0, 1280)
    if ctl:
        c("progress words of the 32 workgroups whose id is equal mod 8, one cache line")
        a("s_and_b32 s%d, s2, 7" % t0)
        a("s_lshl_b32 s%d, s%d, 12" % (t0, t0))
        a("s_add_u32 s%d, s%d, 0x%x" % (t0, t0, PB))
        a("v_and_b32 v%d, 31, v0" % vPa)
        a("v_lshl_add_u32 v%d, v%d, 2, s%d" % (vPa, vPa, t0))
        a("s_lshl_b32 s%d, s%d, 2" % (t1, sJ))
        a("s_add_u32 s%d, s%d, s%d" % (t0, t0, t1))
        a("v_mov_b32 v%d, s%d" % (vPo, t0))
        if g2:
            c("lane 32 reads the group's offset word")
            a("s_sub_u32 s%d, s%d, s%d" % (t0, t0, t1))
            a("s_add_u32 s%d, s%d, 128" % (t0, t0))
            a("v_writelane_b32 v%d, s%d, 32" % (vPa, t0))
        a("v_mov_b32 v%d, %d" % (vWin, WIN))
        a("v_mov_b32 v%d, %d" % (vPw, w1))
        a("v_mov_b32 v%d, 0" % vPv)
        a("s_mov_b32 s%d, 0" % sPub)
        a("s_cmp_eq_u32 s%d, 1" % sC)
        a("s_cselect_b32 s%d, %d, 0x7fffffff" % (sNext, c0))
        a("s_cbranch_scc0 L_c_noinit")
        a("s_mov_b64 exec, 1")
        a("global_store_dword v%d, v%d, s[18:19]" % (vPo, vPv))
        a("s_mov_b64 exec, -1")
        lab("L_c_noinit")
        a("ds_write_b32 v%d, v%d" % (vWin, vPw))
    a("s_waitcnt lgkmcnt(0)")
    a("s_add_u32 s%d, s%d, 0x01010101" % (sTagY, sTagY))

    def control(tag):
        if not ctl:
            return
        a("s_cmp_lt_u32 s%d, s%d" % (sRound, sNext))
        a("s_cbranch_scc1 L_c_noctl%s" % tag)
        a("s_waitcnt vmcnt(0)")
        if g2:
            a("v_readlane_b32 s%d, v%d, 32" % (t2, vPv))
            a("s_lshl_b32 s%d, s%d, 5" % (t3, sPub))
        a("v_subrev_u32 v%d, s%d, v%d" % (vPv, sPub, vPv))
        a("v_add_u32 v%d, 24, v%d" % (vPw, vPv))
        a("v_cmp_gt_u32 vcc, 48, v%d" % vPw)
        a("s_mov_b32 s%d, s%d" % (sPub, sRound))
        a("s_add_u32 s%d, s%d, %d" % (sNext, sRound, pp))
        a("v_cndmask_b32 v%d, 0, v%d, vcc" % (vPw, vPv))
        a("v_mov_b32 v%d, s%d" % (vPv, sPub))
        a("s_mov_b64 exec, 1")
        a("global_store_dword v%d, v%d, s[18:19]" % (vPo, vPv))
        a("s_mov_b64 exec, -1")
        for dpp in ("quad_perm:[1,0,3,2]", "quad_perm:[2,3,0,1]", "row_half_mirror", "row_mirror"):
            a("v_add_u32_dpp v%d, v%d, v%d %s row_mask:0xf bank_mask:0xf" % (vPw, vPw, vPw, dpp))
            a("s_nop 1")
        a("global_load_dword v%d, v%d, s[18:19] sc1" % (vPv, vPa))
        a("v_readlane_b32 s%d, v%d, 0" % (t0, vPw))
        a("v_readlane_b32 s%d, v%d, 16" % (t1, vPw))
        a("s_nop 1")
        a("s_add_i32 s%d, s%d, s%d" % (t0, t0, t1))
        if g2:
            a("s_add_i32 s%d, s%d, s%d" % (t3, t3, t0))
            a("s_lshl_b32 s%d, s%d, 5" % (t1, sRound))
            a("s_sub_i32 s%d, s%d, s%d" % (t3, t3, t1))
            a("v_mov_b32 v%d, s%d" % (vPw, t3))
            a("ds_write_b32 v%d, v%d offset:4" % (vWin, vPw))
            a("s_add_u32 s%d, s%d, 0x200" % (t1, t2))
            a("s_cmp_lt_u32 s%d, 0x400" % t1)
            a("s_cselect_b32 s%d, s%d, 0" % (t2, t2))
            a("s_mul_i32 s%d, s%d, %d" % (t2, t2, g2))
            a("s_ashr_i32 s%d, s%d, 4" % (t2, t2))
            a("s_add_i32 s%d, s%d, s%d" % (t0, t0, t2))
        a("s_add_i32 s%d, s%d, %d" % (t0, t0, bias))
        a("s_mul_i32 s%d, s%d, %d" % (t0, t0, gain))
        if wadj and tag == "k":
            a("s_cmp_lt_u32 s%d, %d" % (sRound, wo_r0 + 48 // wo_k))
            a("s_cselect_b32 s%d, %d, 0" % (t1, wadj))
            a("s_add_i32 s%d, s%d, s%d" % (t0, t0, t1))
        a("s_add_i32 s%d, s%d, 2048" % (t0, t0))
        a("s_ashr_i32 s%d, s%d, 12" % (t0, t0))
        a("s_max_i32 s%d, s%d, %d" % (t0, t0, -wlim))
        a("s_min_i32 s%d, s%d, %d" % (t0, t0, wlim))
        a("s_add_i32 s%d, s%d, %d" % (t0, t0, w1))
        a("v_mov_b32 v%d, s%d" % (vPw, t0))
        a("ds_write_b32 v%d, v%d" % (vWin, vPw))
        lab("L_c_noctl%s" % tag)

    if bqw:
        a("s_barrier")
    a("s_barrier")
    a("v_and_b32 v%d, 7, v0" % vT)
    a("v_lshlrev_b32 v%d, 4, v%d" % (vT, vT))
    a("v_add_u32 v%d, %d, v%d" % (vT, Q, vT))
    for i in range(3):
        a("ds_read_b128 %s, v%d offset:%d" % (q4(vQ + 4 * i), vT, 128 * i))
    a("s_mov_b32 s%d, 0" % sRound)
    a("s_mov_b32 s%d, 1" % sIn)
    a("s_mov_b32 s%d, 0" % sSc)

    def data_reads():
        a("v_add_u32 v%d, s%d, v%d" % (vAd0, sA0, vL16))
        for u in range(2):
            for i in range(3):
                a("ds_read_b128 %s, v%d offset:%d" % (q4(vD + 12 * u + 4 * i), vAd0, UNIT * u + 1024 * i))
        for s in (sA0,):
            a("s_add_u32 s%d, s%d, %d" % (s, s, RS * UNIT))
            a("s_cmp_ge_u32 s%d, %d" % (s, RING))
            a("s_cselect_b32 s%d, %d, 0" % (t0, RING))
            a("s_sub_u32 s%d, s%d, s%d" % (s, s, t0))

    def weights(n, vAop=vAop):
        for u in range(0, n, 2):
            a("v_lshlrev_b32 v%d, 16, v%d" % (vS + u, vT + u // 2))
            a("v_and_b32 v%d, 0xffff0000, v%d" % (vS + u + 1, vT + u // 2))
        for u in range(n):
            a("v_sub_f32 v%d, v%d, v%d" % (vS + u, vS + u, vM))
        for u in range(n):
            a("v_mul_f32 v%d, s%d, v%d" % (vS + u, sLog2e, vS + u))
        for u in range(n):
            a("v_exp_f32 v%d, v%d" % (vS + u, vS + u))
        a("s_add_u32 s%d, s%d, 1" % (sSc, sSc))
        for u in range(n):
            a("v_mul_f32 v%d, v%d, v%d" % (vS + u, vInv, vS + u))
        for u in range(n):
            a("v_cvt_pk_bf16_f32 v%d, v%d, v%d" % (vS + u, vS + u, vS + u))
        for u in range(n):
            for j in range(4):
                a("v_and_b32 v%d, v%d, v%d" % (vAop + 4 * u + j, vMask + j, vS + u))

    c("---- K steps: scores of 2 units")
    lab("L_c_k")
    data_reads()
    for u in range(2):
        for i in range(3):
            a("s_waitcnt lgkmcnt(%d)" % (5 - 3 * u - i))
            for k in range(4):
                src = "0" if (i == 0 and k == 0) else "v%d" % (vS + u)
                a("v_dot2_f32_bf16 v%d, v%d, v%d, %s" % (vS + u, vD + 12 * u + 4 * i + k, vQ + 4 * i + k, src))
    for step, dpp in enumerate(("quad_perm:[1,0,3,2]", "quad_perm:[2,3,0,1]", "row_half_mirror")):
        a("v_add_f32_dpp v%d, v%d, v%d %s row_mask:0xf bank_mask:0xf" % (vS, vS, vS, dpp))
        a("s_nop %d" % (1 if step == 0 else 0))
        a("v_add_f32_dpp v%d, v%d, v%d %s row_mask:0xf bank_mask:0xf" % (vS + 1, vS + 1, vS + 1, dpp))
    c("scores = bf16(bf16(q.k) * scale); running max and running sum of exp(score - max)")
    a("v_cvt_pk_bf16_f32 v%d, v%d, v%d" % (vT, vS, vS + 1))
    a("v_lshlrev_b32 v%d, 16, v%d" % (vS, vT))
    a("v_and_b32 v%d, 0xffff0000, v%d" % (vS + 1, vT))
    a("v_mul_f32 v%d, s%d, v%d" % (vS, sScale, vS))
    a("v_mul_f32 v%d, s%d, v%d" % (vS + 1, sScale, vS + 1))
    a("v_cvt_pk_bf16_f32 v%d, v%d, v%d" % (vT, vS, vS + 1))
    a("s_mov_b64 exec, s[%d:%d]" % (sOne, sOne + 1))
    a("ds_write_b32 v%d, v%d" % (vSA, vT))
    a("s_mov_b64 exec, -1")
    a("v_lshlrev_b32 v%d, 16, v%d" % (vS, vT))
    a("v_and_b32 v%d, 0xffff0000, v%d" % (vS + 1, vT))
    a("v_mov_b32 v%d, v%d" % (vS + 2, vM))
    a("v_max3_f32 v%d, v%d, v%d, v%d" % (vM, vM, vS, vS + 1))
    for u in range(3):
        a("v_sub_f32 v%d, v%d, v%d" % (vS + u, vS + u, vM))
    for u in range(3):
        a("v_mul_f32 v%d, s%d, v%d" % (vS + u, sLog2e, vS + u))
    for u in range(3):
        a("v_exp_f32 v%d, v%d" % (vS + u, vS + u))
    a("s_add_u32 s%d, s%d, 1" % (sSc, sSc))
    a("v_add_u32 v%d, 64, v%d" % (vSA, vSA))
    a("v_add_f32 v%d, v%d, v%d" % (vS, vS, vS + 1))
    a("v_fma_f32 v%d, v%d, v%d, v%d" % (vLsum, vLsum, vS + 2, vS))
    a("s_cmp_eq_u32 s%d, 128" % sSc)
    a("s_cbranch_scc1 L_c_kdone")
    a("s_sub_u32 s%d, s%d, 1" % (sIn, sIn))
    a("s_cmp_lg_u32 s%d, 0" % sIn)
    a("s_cbranch_scc1 L_c_k")
    a("s_add_u32 s%d, s%d, 1" % (sRound, sRound))
    control("k")
    a("s_cmp_lt_u32 s%d, %d" % (sRound, 1 + cu * ndouble))
    a("s_cselect_b32 s%d, 2, 1" % sIn)
    if cu > 1:
        a("s_and_b32 s%d, s%d, %d" % (t0, sRound, cu - 1))
        a("s_cselect_b32 s%d, 1, s%d" % (sIn, sIn))
    a("s_barrier")
    a("s_branch L_c_k")
    lab("L_c_kdone")
    assert 1 + (cu + 1) * ndouble < 128
    c("exact row max and sum over all 4096 scores, from the 16 (max, sum) pairs")
    a("s_mov_b64 exec, s[%d:%d]" % (sOne, sOne + 1))
    a("ds_write_b64 v%d, v[%d:%d]" % (vLad, vM, vLsum))
    a("s_mov_b64 exec, -1")
    a("s_add_u32 s%d, s%d, 1" % (sRound, sRound))
    a("v_subrev_u32 v%d, %d, v%d" % (vSA, 8192, vSA))
    a("v_and_b32 v%d, 15, v0" % vT)
    a("v_lshlrev_b32 v%d, 3, v%d" % (vT, vT))
    a("v_add_u32 v%d, %d, v%d" % (vT, MX, vT))
    a("s_waitcnt lgkmcnt(0)")
    a("s_barrier")
    a("ds_read_b64 v[%d:%d], v%d" % (vS, vS + 1, vT))
    a("s_waitcnt lgkmcnt(0)")
    rows = ("quad_perm:[1,0,3,2]", "quad_perm:[2,3,0,1]", "row_half_mirror", "row_mirror")
    for k, dpp in enumerate(rows):
        src = vS if k == 0 else vM
        a("v_max_f32_dpp v%d, v%d, v%d %s row_mask:0xf bank_mask:0xf" % (vM, src, src, dpp))
        a("s_nop 1")
    a("v_sub_f32 v%d, v%d, v%d" % (vS, vS, vM))
    a("v_mul_f32 v%d, s%d, v%d" % (vS, sLog2e, vS))
    a("v_exp_f32 v%d, v%d" % (vS, vS))
    a("s_nop 0")
    a("v_mul_f32 v%d, v%d, v%d" % (vLsum, vS, vS + 1))
    for dpp in rows:
        a("s_nop 1")
        a("v_add_f32_dpp v%d, v%d, v%d %s row_mask:0xf bank_mask:0xf" % (vLsum, vLsum, vLsum, dpp))
    a("v_rcp_f32 v%d, v%d" % (vInv, vLsum))
    a("s_mov_b32 s%d, 0" % sSc)
    a("v_fma_f32 v%d, -v%d, v%d, 1.0" % (vE, vLsum, vInv))
    a("v_fma_f32 v%d, v%d, v%d, v%d" % (vInv, vE, vInv, vInv))
    c("---- V steps: acc += diag(p) x V for 2 units")
    vAt = 164

    def v_step():
        a("ds_read_b32 v%d, v%d" % (vT, vSA))
        data_reads()
        a("v_add_u32 v%d, 64, v%d" % (vSA, vSA))
        a("s_waitcnt lgkmcnt(6)")
        weights(2)
        a("s_nop 0")
        for u in range(2):
            for i in range(3):
                a("s_waitcnt lgkmcnt(%d)" % (5 - 3 * u - i))
                a("%s %s, %s, %s, %s" % (MFMA, q4(vAcc + 4 * i), q4(vAop + 4 * u), q4(vD + 12 * u + 4 * i), q4(vAcc + 4 * i)))

    lab("L_c_v")
    v_step()
    a("s_cmp_eq_u32 s%d, %d" % (sSc, 127 - TU // RS))
    a("s_cbranch_scc1 L_c_vdone")
    if ctl:
        a("s_add_u32 s%d, s%d, 1" % (sRound, sRound))
        control("v")
    a("s_barrier")
    a("s_branch L_c_v")
    lab("L_c_vdone")
    c("weights of the last %d units, then one more regular step" % TU)
    a("s_lshl_b32 s%d, s%d, 5" % (t0, sC))
    a("v_subrev_u32 v%d, s%d, v%d" % (vAd0, t0, vSA))
    for k in range(4):
        a("ds_read_b32 v%d, v%d offset:%d" % (vT + k, vAd0, 64 + 32 * k))
    a("s_waitcnt lgkmcnt(0)")
    weights(8, vAt)
    a("s_barrier")
    v_step()
    c("last units: wave 1 finishes thirds 0 and 2 of the columns, wave 2 third 1; o is rounded to bf16 once")
    a("v_add_u32 v%d, %d, v%d" % (vAd0, XA, vL16))
    a("s_nop 3")
    a("s_cmp_lg_u32 s%d, 0" % sC)
    a("s_cbranch_scc1 L_c_give1")
    a("ds_write_b128 v%d, %s offset:1024" % (vAd0, q4(vAcc + 4)))
    a("s_branch L_c_given")
    lab("L_c_give1")
    a("ds_write_b128 v%d, %s" % (vAd0, q4(vAcc)))
    a("ds_write_b128 v%d, %s offset:2048" % (vAd0, q4(vAcc + 8)))
    lab("L_c_given")
    a("s_waitcnt lgkmcnt(0)")

    def take(i):
        a("ds_read_b128 %s, v%d offset:%d" % (q4(vQ), vAd0, 1024 * i))
        a("s_waitcnt lgkmcnt(0)")
        for r in range(4):
            a("v_add_f32 v%d, v%d, v%d" % (vAcc + 4 * i + r, vAcc + 4 * i + r, vQ + r))

    def finish(i):
        A = vAcc + 4 * i
        for u in range(TU):
            a("ds_read_b128 %s, v%d offset:%d" % (q4(vD + 4 * u), vTad, u * UNIT + 1024 * i))
        for u in range(TU):
            a("s_waitcnt lgkmcnt(%d)" % (TU - 1 - u))
            a("%s %s, %s, %s, %s" % (MFMA, q4(A), q4(vAt + 4 * u), q4(vD + 4 * u), q4(A)))
        a("s_nop 7")
        a("v_permlane32_swap_b32 v%d, v%d" % (A, A + 2))
        a("v_permlane32_swap_b32 v%d, v%d" % (A + 1, A + 3))
        a("s_nop 0")
        a("v_add_f32_dpp v%d, v%d, v%d row_ror:8 row_mask:0xf bank_mask:0xf" % (vT, A + 2, A))
        a("v_add_f32_dpp v%d, v%d, v%d row_ror:8 row_mask:0xf bank_mask:0xf" % (vT + 1, A + 3, A + 1))
        a("s_mov_b32 exec_lo, 0x00ff00ff")
        a("s_mov_b32 exec_hi, 0x00ff00ff")
        a("v_cvt_pk_bf16_f32 v%d, v%d, v%d" % (vT, vT, vT + 1))
        a("ds_write_b32 v%d, v%d offset:%d" % (vOad, vT, 128 * i))
        a("s_mov_b64 exec, -1")
        a("s_waitcnt lgkmcnt(0)")

    a("s_cmp_lg_u32 s%d, 0" % sC)
    a("s_barrier")
    a("s_cbranch_scc0 L_c_fin0")
    take(1)
    a("s_barrier")
    finish(1)
    a("s_barrier")
    a("s_endpgm")
    lab("L_c_fin0")
    take(0)
    finish(0)
    a("s_barrier")
    take(2)
    c("setup of the final sum over the heads")
    sTry, sGo = sA0, sA1
    G = vD
    sG = sIn
    if spread:
        a("s_mul_i32 s%d, s%d, 5" % (sG, sH))
        a("s_and_b32 s%d, s%d, 7" % (sGo, sG))
        a("s_lshr_b32 s%d, s%d, 3" % (sG, sG))
        a("s_cmp_lt_u32 s%d, 5" % sGo)
        a("s_cselect_b32 s%d, s%d, 99" % (sG, sG))
    else:
        a("s_mov_b32 s%d, s%d" % (sG, sH))
    a("s_lshl_b32 s%d, s%d, 12" % (sGo, sG))
    a("s_mov_b32 s%d, 0" % sTry)
    for r in range(4):
        a("s_bfe_u32 s%d, s%d, 0x%x" % (t0 + r, sTagY, (8 << 16) | (8 * r)))
    a("v_and_b32 v1, 7, v0")
    a("v_bfe_u32 v2, v0, 4, 1")
    a("v_lshrrev_b32 v3, 5, v0")
    a("v_lshl_add_u32 v2, v2, 1, v3")
    a("v_lshl_add_u32 v1, v1, 2, v2")
    a("v_lshlrev_b32 v1, 1, v1")
    sets = [132 + 16 * d for d in range(depth)]
    sMk = 24
    if own:
        c("this workgroup's own record comes through LDS: its 8 lanes are left out of the loads")
        a("s_and_b32 s%d, s%d, 7" % (sSc, sH))
        a("s_lshl_b32 s%d, s%d, 3" % (sSc, sSc))
        a("s_lshl_b64 s[%d:%d], 0xff, s%d" % (sMk + 6, sMk + 7, sSc))
        a("s_lshr_b32 s%d, s%d, 3" % (sSc, sH))
        for k in range(3):
            a("s_cmp_eq_u32 s%d, %d" % (sSc, k))
            a("s_cselect_b64 s[%d:%d], s[%d:%d], 0" % (sMk + 2 * k, sMk + 2 * k + 1, sMk + 6, sMk + 7))
            a("s_not_b64 s[%d:%d], s[%d:%d]" % (sMk + 2 * k, sMk + 2 * k + 1, sMk + 2 * k, sMk + 2 * k + 1))
        for P in sets:
            for k in range(3):
                for r in range(4):
                    a("v_mov_b32 v%d, s%d" % (P + 4 * k + r, t0 + r))
        a("v_and_b32 v3, 7, v0")
        a("v_lshlrev_b32 v3, 4, v3")
        a("v_add_u32 v3, %d, v3" % YO)
    a("s_barrier")
    finish(2)
    a("s_barrier")
    c("wave 1 of the workgroups with head < 20 sums 32 output columns over the 32 heads")
    a("s_cmp_ge_u32 s%d, 20" % sG)
    a("s_cbranch_scc1 L_r_done")
    if not own and ybar:
        c("wait until this workgroup's own records are written")
        a("s_barrier")
    if r0sleep:
        a("s_sleep %d" % r0sleep)
    if sent:
        c("wait for one record per group of 4 heads before reading them all")
        a("v_lshrrev_b32 v3, 3, v0")
        a("v_lshlrev_b32 v3, 9, v3")
        a("v_add_u32 v3, %d, v3" % (128 * (sent - 1)))
        a("s_mov_b64 exec, s[%d:%d]" % (sOne, sOne + 1))
        lab("L_r_sent")
        a("buffer_load_dword v2, v3, %s, s%d offen %s" % (s4(YS), sGo, rpol))
        a("s_add_u32 s%d, s%d, 1" % (sTry, sTry))
        a("s_waitcnt vmcnt(0)")
        a("v_xor_b32 v2, s%d, v2" % t0)
        a("v_and_b32 v2, 0xff, v2")
        a("v_cmp_ne_u32 vcc, 0, v2")
        a("s_cbranch_vccz L_r_sentok")
        a("s_cmp_lt_u32 s%d, 0x100000" % sTry)
        a("s_cbranch_scc1 L_r_sent")
        lab("L_r_sentok")
        a("s_mov_b64 exec, -1")
    if dbg & 2:
        stamp(9)

    def poll(P):
        for k in range(4):
            if own:
                a("s_mov_b64 exec, %s" % ("s[%d:%d]" % (sMk + 2 * k, sMk + 2 * k + 1) if k < 3 else "-1"))
            a("buffer_load_dwordx4 %s, v%d, %s, s%d offen offset:%d %s" % (q4(P + 4 * k), vL16, s4(YS), sGo, 1024 * k, rpol))

    for P in sets[:-1]:
        poll(P)
    lab("L_r_poll")
    for d, P in enumerate(sets):
        poll(sets[d - 1])
        for k in range(4):
            a("s_waitcnt vmcnt(%d)" % (4 * (depth - 1) + 3 - k))
            for r in range(4):
                a("v_xor_b32 v%d, s%d, v%d" % (G + 4 * k + r, t0 + r, P + 4 * k + r))
            if k == 0:
                a("v_or3_b32 v2, v%d, v%d, v%d" % (G, G + 1, G + 2))
                a("v_or_b32 v2, v2, v%d" % (G + 3))
            else:
                a("v_or3_b32 v2, v2, v%d, v%d" % (G + 4 * k, G + 4 * k + 1))
                a("v_or3_b32 v2, v2, v%d, v%d" % (G + 4 * k + 2, G + 4 * k + 3))
        a("v_and_b32 v2, 0xff, v2")
        a("v_cmp_ne_u32 vcc, 0, v2")
        a("s_cbranch_vccz L_r_sum")
        if rsleep:
            a("s_bcnt1_i32_b64 s%d, vcc" % sSc)
            a("s_cmp_le_u32 s%d, %d" % (sSc, thr))
            a("s_cbranch_scc1 L_r_near%d" % d)
            a("s_sleep %d" % rsleep)
            lab("L_r_near%d" % d)
    a("s_add_u32 s%d, s%d, 1" % (sTry, sTry))
    a("s_cmp_lt_u32 s%d, 0x100000" % sTry)
    a("s_cbranch_scc1 L_r_poll")
    lab("L_r_sum")
    if own:
        a("s_barrier")
        a("s_lshr_b32 s%d, s%d, 3" % (sSc, sH))
        a("s_mov_b64 exec, s[%d:%d]" % (sMk + 6, sMk + 7))
        for k in range(3):
            if k < 2:
                a("s_cmp_lg_u32 s%d, %d" % (sSc, k))
                a("s_cbranch_scc1 L_r_own%d" % (k + 1))
            a("ds_read_b128 %s, v3" % q4(G + 4 * k))
            if k < 2:
                a("s_branch L_r_owned")
                lab("L_r_own%d" % (k + 1))
        lab("L_r_owned")
        a("s_mov_b64 exec, -1")
        a("s_waitcnt lgkmcnt(0)")
    if dbg & 2:
        stamp(10)
    for r in range(4):
        a("v_add_f32 v%d, v%d, v%d" % (G + r, G + r, G + 4 + r))
        a("v_add_f32 v%d, v%d, v%d" % (G + 8 + r, G + 8 + r, G + 12 + r))
    for r in range(4):
        a("v_add_f32 v%d, v%d, v%d" % (G + r, G + r, G + 8 + r))
    a("s_lshl_b32 s%d, s%d, 6" % (sGo, sG))
    a("s_nop 0")
    a("v_permlane32_swap_b32 v%d, v%d" % (G, G + 1))
    a("v_permlane32_swap_b32 v%d, v%d" % (G + 2, G + 3))
    a("s_nop 0")
    a("v_add_f32 v%d, v%d, v%d" % (G, G, G + 1))
    a("v_add_f32 v%d, v%d, v%d" % (G + 2, G + 2, G + 3))
    a("s_nop 1")
    a("v_permlane16_swap_b32 v%d, v%d" % (G, G + 2))
    a("s_nop 0")
    a("v_add_f32 v%d, v%d, v%d" % (G, G, G + 2))
    a("s_nop 1")
    a("v_add_f32_dpp v%d, v%d, v%d row_ror:8 row_mask:0xf bank_mask:0xf" % (G, G, G))
    a("s_mov_b32 exec_lo, 0x00ff00ff")
    a("s_mov_b32 exec_hi, 0x00ff00ff")
    a("v_cvt_pk_bf16_f32 v%d, v%d, v%d" % (G, G, G))
    a("buffer_store_short v%d, v1, %s, s%d offen %s" % (G, s4(OS), sGo, opol))
    c("every workgroup of this row has read the tag word: advance it for the next launch")
    a("s_cmp_lg_u32 s%d, 0" % sH)
    a("s_cbranch_scc1 L_r_done")
    a("s_lshl_b32 s%d, s%d, 8" % (t0, sB))
    a("s_add_u32 s%d, s%d, 0x%x" % (t0, t0, EB))
    a("s_mov_b64 exec, 1")
    a("v_mov_b32 v1, s%d" % t0)
    a("v_mov_b32 v2, s%d" % sTagY)
    a("global_store_dword v1, v2, s[18:19] sc1")
    lab("L_r_done")
    if stamps:
        a("s_waitcnt vmcnt(0)")
        stamp(7)
        flush_stamps([7, 9, 10] if dbg & 2 else [7])
    a("s_endpgm")

    c("======== holders ========")
    lab("L_holder")
    sHj, sO, sTag, sTagR, sLoop, sTry = 54, 55, 56, 57, 58, 59
    sPlo, sPhi = 60, 61
    vWq, vWo, vY, vTag = 4, 5, 6, 7
    vX = 8
    blk = lambda k: 32 + 32 * k
    a("s_sub_u32 s%d, s%d, 3" % (sHj, sW))
    a("s_mov_b32 s%d, 0x05040100" % sPlo)
    a("s_mov_b32 s%d, 0x07060302" % sPhi)
    a("s_cmp_lg_u32 s%d, 0" % sHj)
    a("s_cbranch_scc1 L_h_setup")
    c("q projection, shared by the 8 workgroups of the head: workgroup b < 6 multiplies x (all 8 rows) by")
    c("rows [320*(b/3), +320) x columns [64*(b%3), +64) of the head's wq slice and sends each row to its owner")
    a("v_and_b32 v1, 7, v0")
    a("v_bfe_u32 v2, v0, 3, 1")
    a("v_lshrrev_b32 v3, 4, v0")
    a("v_lshl_add_u32 v29, v2, 2, v3")
    a("v_mul_u32_u24 v%d, %d, v29" % (vWq, 12288 if dbg & 384 else 8 * 12288))
    a("v_lshl_add_u32 v%d, v1, 4, v%d" % (vWq, vWq))
    a("v_mul_u32_u24 v30, 1280, v1")
    a("v_lshl_add_u32 v30, v29, 4, v30")
    a("v_lshlrev_b32 v31, 11, v1")
    a("s_cmp_ge_u32 s%d, 3" % sB)
    a("s_cselect_b32 s%d, 320, 0" % t2)
    a("s_cselect_b32 s%d, 3, 0" % t3)
    a("s_sub_u32 s%d, s%d, s%d" % (t3, sB, t3))
    a("s_mul_i32 s%d, s%d, 12288" % (sO, t2))
    a("s_lshl_b32 s%d, s%d, 7" % (t3, t3))
    a("s_add_u32 s%d, s%d, s%d" % (sO, sO, t3))
    if dbg & 128:
        a("s_mul_i32 s%d, s%d, %d" % (sO, sB, 104 * 12288))
    a("s_lshl_b32 s%d, s%d, 1" % (t2, t2))
    a("s_mul_i32 s%d, s%d, 384" % (t0, sH))
    a("s_lshl_b32 s%d, s%d, 14" % (t1, sH))
    a("s_add_u32 s%d, s%d, 0x%x" % (t1, t1, QB))
    a("s_waitcnt lgkmcnt(0)")
    srd(YS, 18, 19, t1, 16384)
    load_row_tag(sTagR)
    c("tags of the 8 receivers: the words found in d_ws, advanced")
    a("buffer_load_dword v%d, v31, %s, 0 offen offset:1536 sc1" % (vTag, s4(YS)))
    a("s_cmp_ge_u32 s%d, %d" % (sB, 0 if dbg & 8 else 6))
    a("s_cbranch_scc1 L_q_tag")
    srd(WQ, 10, 11, t0, "s_sub_u32 s%%d, 7864320, s%d" % t0)
    a("s_mov_b32 s%d, s4" % XS)
    a("s_mov_b32 s%d, s5" % (XS + 1))
    a("s_mov_b32 s%d, 10240" % (XS + 2))
    a("s_mov_b32 s%d, 0x20000" % (XS + 3))
    for rb in range(5):
        for i in range(8):
            if not dbg & 32:
                a("buffer_load_dwordx4 %s, v%d, %s, s%d offen %s" % (q4(blk(rb + 1) + 4 * i), vWq, s4(WQ), sO, wqpol))
            if dbg & 128:
                a("s_add_u32 s%d, s%d, %d" % (sO, sO, 128 if (rb * 8 + i) % 3 < 2 else 8 * 12288 - 256))
            elif dbg & 256:
                a("s_add_u32 s%d, s%d, %d" % (sO, sO, 8 * 12288))
            else:
                a("s_add_u32 s%d, s%d, %d" % (sO, sO, 12288 if i < 7 else 57 * 12288))
        a("buffer_load_dwordx4 %s, v30, %s, s%d offen offset:%d" % (q4(vX + 4 * rb), s4(XS), t2, 128 * rb))
    a("v_lshl_add_u32 v31, v29, 4, v31")
    a("s_lshl_b32 s%d, s%d, 8" % (sO, sB))
    qacc = blk(6)

    def transpose(dst, src, col):
        for p in range(4):
            a("v_perm_b32 v%d, v%d, v%d, s%d" % (dst + 4 * col + p, src + 4 * (2 * p + 1) + col // 2,
                                                src + 4 * (2 * p) + col // 2, sPhi if col % 2 else sPlo))

    for rb in range(5):
        a("s_waitcnt vmcnt(%d)" % (9 * (4 - rb)))
        transpose(blk(0), blk(rb + 1), 0)
        for col in range(8):
            if col < 7:
                transpose(blk(0), blk(rb + 1), col + 1)
            else:
                a("s_nop 0")
            d = qacc + 4 * col
            a("%s %s, %s, %s, %s" % (MFMA, q4(d), q4(blk(0) + 4 * col), q4(vX + 4 * rb), "0" if rb == 0 else q4(d)))
    a("v_add_u32 v%d, 0x11111111, v%d" % (vTag, vTag))
    for k in range(1, 8):
        a("v_lshrrev_b32 v%d, %d, v%d" % (16 + k, 4 * k, vTag))
    c("add the two 32-row halves; lanes 0-7 / 8-15 of each row end up with even / odd columns")
    for col in range(4):
        for r in range(4):
            a("v_permlane32_swap_b32 v%d, v%d" % (qacc + 4 * col + r, qacc + 4 * (col + 4) + r))
    for st in range(2):
        for r in range(4):
            a("v_add_f32_dpp v%d, v%d, v%d row_ror:8 row_mask:0xf bank_mask:0x3" % (vX + 4 * st + r, qacc + 4 * (2 * st + 4) + r, qacc + 4 * (2 * st) + r))
    for st in range(2):
        for r in range(4):
            a("v_add_f32_dpp v%d, v%d, v%d row_ror:8 row_mask:0xf bank_mask:0xc" % (vX + 4 * st + r, qacc + 4 * (2 * st + 1) + r, qacc + 4 * (2 * st + 5) + r))
    c("the low 4 bits of each word carry 4 bits of the receiver's tag")
    for st in range(2):
        for r in range(4):
            t = vX + 4 * st + r
            k = 4 * st + r
            a("v_bfi_b32 v%d, 15, v%d, v%d" % (t, 16 + k if k else vTag, t))
        if not dbg & 16:
            a("buffer_store_dwordx4 %s, v31, %s, s%d offen offset:%d %s" % (q4(vX + 4 * st), s4(YS), sO, 128 * st, qspol))
    a("s_branch L_q_gather")
    lab("L_q_tag")
    a("s_waitcnt vmcnt(0)")
    a("v_add_u32 v%d, 0x11111111, v%d" % (vTag, vTag))
    lab("L_q_gather")
    stamp(4)
    a("v_lshlrev_b32 v1, 4, v0")
    a("v_readlane_b32 s%d, v%d, s%d" % (sTag, vTag, sB))
    a("s_lshl_b32 s%d, s%d, 11" % (sO, sB))
    a("s_mov_b32 s%d, 0" % sTry)
    a("v_bfe_u32 v2, v0, 3, 1")
    a("v_lshlrev_b32 v2, 4, v2")
    a("v_lshrrev_b32 v28, v2, s%d" % sTag)
    for r in range(1, 4):
        a("v_lshrrev_b32 v%d, %d, v28" % (28 + r, 4 * r))
    a("s_mov_b32 exec_hi, 0xffff")
    GA, GB = 16, 20
    if bqw:
        a("s_barrier")
    if qdelay:
        a("s_sleep %d" % qdelay)
    lab("L_q_poll")
    if dbg & 512:
        a("s_branch L_q_got")
    a("buffer_load_dwordx4 %s, v1, %s, s%d offen %s" % (q4(GA), s4(YS), sO, qpol))
    a("buffer_load_dwordx4 %s, v1, %s, s%d offen offset:768 %s" % (q4(GB), s4(YS), sO, qpol))
    a("s_add_u32 s%d, s%d, 1" % (sTry, sTry))
    a("s_waitcnt vmcnt(0)")
    for r in range(4):
        a("v_xor_b32 v%d, v%d, v%d" % (24 + r, GA + r, 28 + r))
    a("v_or3_b32 v24, v24, v25, v26")
    for r in range(3):
        a("v_xor_b32 v%d, v%d, v%d" % (25 + r if r < 2 else 3, GB + r, 28 + r))
    a("v_or3_b32 v24, v24, v27, v25")
    a("v_xor_b32 v25, v%d, v31" % (GB + 3))
    a("v_or3_b32 v24, v24, v26, v3")
    a("v_or_b32 v24, v24, v25")
    a("v_and_b32 v24, 15, v24")
    a("v_cmp_ne_u32 vcc, 0, v24")
    a("s_branch L_q_got" if dbg & 4 else "s_cbranch_vccz L_q_got")
    if sleep:
        a("s_sleep %d" % sleep)
    a("s_cmp_lt_u32 s%d, 0x100000" % sTry)
    a("s_cbranch_scc1 L_q_poll")
    lab("L_q_got")
    a("v_lshrrev_b32 v2, 4, v0")
    a("v_lshlrev_b32 v2, 6, v2")
    a("v_and_b32 v3, 1, v0")
    a("v_lshl_add_u32 v2, v3, 5, v2")
    a("v_bfe_u32 v3, v0, 2, 2")
    a("v_add_u32 v2, v2, v3")
    a("v_bfe_u32 v3, v0, 1, 1")
    a("v_lshl_add_u32 v2, v3, 2, v2")
    a("v_lshlrev_b32 v2, 1, v2")
    a("v_add_u32 v2, %d, v2" % Q)
    for r in range(8):
        a("v_bfi_b32 v%d, 15, 8, v%d" % (GA + r, GA + r))
    for r in range(4):
        a("v_add_f32 v%d, v%d, v%d" % (GA + r, GA + r, GB + r))
    a("v_cvt_pk_bf16_f32 v%d, v%d, v%d" % (GA, GA, GA + 1))
    a("v_cvt_pk_bf16_f32 v%d, v%d, v%d" % (GA + 2, GA + 2, GA + 3))
    a("ds_write_b16 v2, v%d" % GA)
    a("ds_write_b16_d16_hi v2, v%d offset:16" % GA)
    a("ds_write_b16 v2, v%d offset:32" % (GA + 2))
    a("ds_write_b16_d16_hi v2, v%d offset:48" % (GA + 2))
    c("all six senders have read this workgroup's tag word: advance it for the next launch")
    a("v_mov_b32 v3, s%d" % sTag)
    a("s_mov_b64 exec, 1")
    if not dbg & 64:
        a("buffer_store_dword v3, v1, %s, s%d offen offset:1536 sc1" % (s4(YS), sO))
    a("s_mov_b64 exec, -1")
    stamp(14)
    a("s_branch L_h_go")
    lab("L_h_setup")
    a("s_waitcnt lgkmcnt(0)")
    load_row_tag(sTagR)
    if bqw:
        a("s_barrier")
    lab("L_h_go")
    if g2:
        c("the group's offset word starts at zero")
        a("s_and_b32 s%d, s2, 7" % t0)
        a("s_lshl_b32 s%d, s%d, 12" % (t0, t0))
        a("s_add_u32 s%d, s%d, 0x%x" % (t0, t0, PB + 128))
        a("v_mov_b32 v24, s%d" % t0)
        a("v_add_u32 v25, 1920, v24")
        a("v_mov_b32 v26, 0")
        a("s_lshl_b32 s%d, s%d, 3" % (t1, sJ))
        a("s_add_u32 s%d, s%d, s%d" % (t1, t1, sHj))
        a("s_cmp_lg_u32 s%d, 1" % t1)
        a("s_cbranch_scc1 L_m_noinit")
        a("s_mov_b64 exec, 1")
        a("global_store_dword v24, v26, s[18:19]")
        a("s_mov_b64 exec, -1")
        lab("L_m_noinit")
    a("s_waitcnt lgkmcnt(0)")
    a("s_barrier")
    nb = 1
    a("s_add_u32 s%d, s%d, 0x01010101" % (sTagR, sTagR))
    a("s_mul_i32 s%d, s%d, 245760" % (t0, sH))
    srd(WO, 12, 13, t0, 245760)
    a("s_mul_i32 s%d, s%d, 81920" % (t0, sB))
    srd(YS, 18, 19, t0, 81920)
    c("this wave holds columns [128*j, +128) of all 192 rows: lane = (8-row group, 8-column chunk)")
    a("v_lshrrev_b32 v1, 4, v0")
    a("v_and_b32 v2, 15, v0")
    a("v_mul_u32_u24 v%d, 10240, v1" % vWo)
    a("v_lshl_add_u32 v%d, v2, 4, v%d" % (vWo, vWo))
    a("s_lshl_b32 s%d, s%d, 8" % (t0, sHj))
    a("v_add_u32 v%d, s%d, v%d" % (vWo, t0, vWo))
    c("hand-off record [32-column group][head][128 bytes]")
    a("v_bfe_u32 v3, v0, 2, 2")
    a("v_lshlrev_b32 v%d, 12, v3" % vY)
    a("v_and_b32 v3, 3, v0")
    a("v_lshl_add_u32 v%d, v3, 5, v%d" % (vY, vY))
    a("v_lshl_add_u32 v%d, v1, 4, v%d" % (vY, vY))
    a("s_lshl_b32 s%d, s%d, 14" % (t0, sHj))
    a("s_lshl_b32 s%d, s%d, 7" % (t1, sH))
    a("s_add_u32 s%d, s%d, s%d" % (t0, t0, t1))
    a("v_add_u32 v%d, s%d, v%d" % (vY, t0, vY))
    a("v_mov_b32 v%d, s%d" % (vTag, sTagR))

    def idle(n):
        if n <= 2:
            for _ in range(n):
                a("s_barrier")
            return
        name = "L_h_idle%d" % len(L)
        a("s_mov_b32 s%d, %d" % (sLoop, n))
        lab(name)
        a("s_barrier")
        a("s_sub_u32 s%d, s%d, 1" % (sLoop, sLoop))
        a("s_cmp_lg_u32 s%d, 0" % sLoop)
        a("s_cbranch_scc1 %s" % name)

    sP = 62
    if wo_p > 1:
        c("one wo load every %d rounds; the wave that later compares group progress loads every round" % wo_p)
        a("s_lshl_b32 s%d, s%d, 3" % (t1, sJ))
        a("s_add_u32 s%d, s%d, s%d" % (t1, t1, sHj))
        a("s_cmp_eq_u32 s%d, 1" % t1)
        a("s_cselect_b32 s%d, 1, %d" % (sP, wo_p))
        a("s_and_b32 s%d, s%d, %d" % (t1, sHj, wo_p - 1))
        a("s_cmp_eq_u32 s%d, 1" % sP)
        a("s_cselect_b32 s%d, 0, s%d" % (sTry, t1))
        a("s_add_u32 s%d, s%d, %d" % (sLoop, sTry, wo_r0))
        lab("L_h_wo0")
        a("s_barrier")
        a("s_sub_u32 s%d, s%d, 1" % (sLoop, sLoop))
        a("s_cmp_lg_u32 s%d, 0" % sLoop)
        a("s_cbranch_scc1 L_h_wo0")
    else:
        idle(wo_r0)
    nb += wo_r0
    n = 0
    while n < 48:
        for _ in range(wo_k):
            ks, i = divmod(n, 8)
            if i % 4 == 0:
                a("s_mov_b32 s%d, %d" % (sO, ks * 40960 + (i // 4) * 5120))
            a("buffer_load_dwordx4 %s, v%d, %s, s%d offen offset:%d %s" % (q4(blk(ks + 1) + 4 * i), vWo, s4(WO), sO, (i % 4) * 1280, wopol))
            n += 1
        a("s_barrier")
        if wo_p > 1:
            a("s_cmp_eq_u32 s%d, 1" % sP)
            a("s_cbranch_scc1 L_h_wo%d" % n)
            for _ in range(wo_p - 1):
                a("s_barrier")
            lab("L_h_wo%d" % n)
        nb += 1
    idle(8)
    nb += 8
    a("s_waitcnt vmcnt(0)")
    c("transpose each 8x8 block into the previous block's registers: MFMA operands with k along rows")
    for ks in range(6):
        for col in range(8):
            transpose(blk(ks), blk(ks + 1), col)
        a("s_barrier")
        nb += 1
    a("v_lshrrev_b32 v1, 4, v0")
    a("v_lshlrev_b32 v1, 4, v1")
    a("v_add_u32 v1, %d, v1" % OP)
    if g2:
        c("one wave per group compares the group's progress with the other seven groups'")
        nit = (NB - mend - nb) // mp
        sAd, sNew, sPrev, sD, sR, sPc, sMo = 4, 24, 32, 44, 62, 63, 12
        a("s_lshl_b32 s%d, s%d, 3" % (t1, sJ))
        a("s_add_u32 s%d, s%d, s%d" % (t1, t1, sHj))
        a("s_cmp_lg_u32 s%d, 1" % t1)
        a("s_cbranch_scc1 L_m_idle")
        for i in range(8):
            a("s_add_u32 s%d, s2, %d" % (t0, i))
            a("s_and_b32 s%d, s%d, 7" % (t0, t0))
            a("s_lshl_b32 s%d, s%d, 12" % (t0, t0))
            a("s_add_u32 s%d, s%d, 0x%x" % (sAd + i, t0, PB + 2048))
            a("s_load_dword s%d, s[18:19], s%d %s" % (sNew + i, sAd + i, sglc))
        a("v_mov_b32 v27, %d" % MTOT)
        a("s_mov_b32 s%d, %d" % (sR, nb))
        a("s_mov_b32 s%d, %d" % (sPc, 1))
        a("s_mov_b32 s%d, %d" % (sTry, nit - 1))
        a("s_mov_b64 exec, 1")
        idle(mp)
        a("s_waitcnt lgkmcnt(0)")
        for i in range(8):
            a("s_mov_b32 s%d, s%d" % (sPrev + i, sNew + i))
            a("s_mov_b32 s%d, 0" % (sD + i if i < 4 else 13 + i - 4))
        dreg = lambda i: sD + i if i < 4 else 13 + i - 4
        lab("L_m_loop")
        a("s_add_u32 s%d, s%d, %d" % (sR, sR, mp))
        a("ds_read_b32 v26, v27")
        a("s_waitcnt lgkmcnt(0)")
        a("v_readfirstlane_b32 s%d, v26" % sMo)
        a("s_lshl_b32 s%d, s%d, 5" % (t0, sR))
        a("s_add_i32 s%d, s%d, s%d" % (sMo, sMo, t0))
        for i in range(8):
            a("s_load_dword s%d, s[18:19], s%d %s" % (sNew + i, sAd + i, sglc))
        a("s_sub_u32 s%d, s%d, 1" % (sPc, sPc))
        a("s_cbranch_scc0 L_m_nopub")
        a("s_mov_b32 s%d, %d" % (sPc, mpub - 1))
        a("v_mov_b32 v26, s%d" % sMo)
        a("global_store_dword v25, v26, s[18:19] sc1")
        lab("L_m_nopub")
        idle(mp)
        a("s_waitcnt lgkmcnt(0)")
        a("s_mov_b32 s%d, 0" % t1)
        for i in range(8):
            a("s_sub_i32 s%d, s%d, s%d" % (t0, sNew + i, sMo))
            a("s_cmp_lg_u32 s%d, s%d" % (sNew + i, sPrev + i))
            a("s_cselect_b32 s%d, s%d, s%d" % (dreg(i), t0, dreg(i)))
            a("s_mov_b32 s%d, s%d" % (sPrev + i, sNew + i))
            if mmin:
                a(("s_min_i32 s%d, s%d, s%d" % (t1, t1, dreg(i))) if i else ("s_mov_b32 s%d, s%d" % (t1, dreg(i))))
            else:
                a("s_add_i32 s%d, s%d, s%d" % (t1, t1, dreg(i)))
        if not mmin:
            a("s_ashr_i32 s%d, s%d, 3" % (t1, t1))
        a("s_add_i32 s%d, s%d, %d" % (t1, t1, b2))
        a("s_sub_i32 s%d, s%d, s%d" % (t1, t1, dreg(0)))
        a("s_max_i32 s%d, s%d, -256" % (t1, t1))
        a("s_min_i32 s%d, s%d, %d" % (t1, t1, mhi))
        a("s_cmp_gt_u32 s%d, %d" % (sTry, nit - 2 - 2 * mpub))
        a("s_cselect_b32 s%d, 0, s%d" % (t1, t1))
        a("v_mov_b32 v28, s%d" % t1)
        a("global_store_dword v24, v28, s[18:19]")
        a("s_sub_u32 s%d, s%d, 1" % (sTry, sTry))
        a("s_cmp_lg_u32 s%d, 0" % sTry)
        a("s_cbranch_scc1 L_m_loop")
        a("s_mov_b64 exec, -1")
        a("s_branch L_m_done")
        lab("L_m_idle")
        if wo_p > 1:
            a("s_sub_u32 s%d, %d, s%d" % (sLoop, nit * mp - 48 * (wo_p - 1), sTry))
            lab("L_m_idle2")
            a("s_barrier")
            a("s_sub_u32 s%d, s%d, 1" % (sLoop, sLoop))
            a("s_cmp_lg_u32 s%d, 0" % sLoop)
            a("s_cbranch_scc1 L_m_idle2")
            assert nit * mp - 48 * (wo_p - 1) > wo_p
        else:
            idle(nit * mp)
        lab("L_m_done")
        nb += nit * mp
    for r in range(4):
        a("s_mov_b32 s%d, 0x%08x" % (t0 + r, 0x07060500 + r))
    if own:
        c("the wave and lanes that hold the 32 columns this workgroup sums")
        a("s_lshr_b32 s%d, s%d, 2" % (sTry, sH))
        a("s_and_b32 s%d, s%d, 3" % (sPhi, sH))
        a("s_lshl_b32 s%d, s%d, 2" % (sPhi, sPhi))
        a("s_lshl_b32 s%d, 0x000f000f, s%d" % (sPlo, sPhi))
        a("s_mov_b32 s%d, 0" % sPhi)
        a("v_and_b32 v2, 3, v0")
        a("v_bfe_u32 v3, v0, 4, 1")
        a("v_lshl_add_u32 v2, v2, 1, v3")
        a("v_lshlrev_b32 v2, 4, v2")
        a("v_add_u32 v2, %d, v2" % YO)
    a("s_mov_b32 vcc_lo, 0xffff0000")
    a("s_mov_b32 vcc_hi, 0xffff0000")
    idle(NB + 1 - nb)
    c("y = o x wo, 64 rows per barrier; every row of the A operand is o")
    oacc = blk(6)
    for i in range(3):
        a("s_barrier")
        if i == 2:
            stamp(5)
        a("ds_read_b128 v[8:11], v1 offset:%d" % (128 * i))
        a("ds_read_b128 v[12:15], v1 offset:%d" % (128 * i + 64))
        for kk in range(2):
            ks = 2 * i + kk
            a("s_waitcnt lgkmcnt(%d)" % (1 - kk))
            for col in range(8):
                d = oacc + 4 * col
                a("%s %s, %s, %s, %s" % (MFMA, q4(d), q4(8 + 4 * kk), q4(blk(ks) + 4 * col), "0" if ks == 0 else q4(d)))
    a("s_nop %d" % (3 if own else 4))
    if own:
        a("s_cmp_lg_u32 s%d, s%d" % (sHj, sTry))
    for r in range(4):
        a("v_cndmask_b32 v%d, v%d, v%d, vcc" % (20 + r, oacc + 4 * r, oacc + 16 + 4 * r))
    if own:
        a("s_cbranch_scc1 L_h_notown")
        a("s_mov_b64 exec, s[%d:%d]" % (sPlo, sPhi))
        a("ds_write_b128 v2, v[20:23]")
        a("s_mov_b64 exec, -1")
        lab("L_h_notown")
    for r in range(4):
        a("v_perm_b32 v%d, v%d, v%d, s%d" % (24 + r, 20 + r, vTag, t0 + r))
    a("s_mov_b32 exec_hi, 0")
    a("buffer_store_dwordx4 v[24:27], v%d, %s, 0 offen %s" % (vY, s4(YS), ypol))
    stamp(6)
    if own:
        a("s_waitcnt lgkmcnt(0)")
        a("s_barrier")
    elif ybar:
        if ybar == 1:
            a("s_waitcnt vmcnt(0)")
        a("s_barrier")
    if stamps:
        a("s_cmp_lg_u32 s%d, 0" % sHj)
        a("s_cbranch_scc1 L_h_st")
        flush_stamps([4, 5, 14])
        lab("L_h_st")
        a("s_cmp_lg_u32 s%d, 4" % sHj)
        a("s_cbranch_scc1 L_end")
        flush_stamps([6])
    lab("L_end")
    a("s_endpgm")
    return HEADER.format(lds=LDS, name=NAME) + "\n".join(L) + FOOTER.format(name=NAME)


if __name__ == "__main__":
    spec = json.loads(sys.argv[1])
    names = []
    for cfg in spec:
        cfg = dict(cfg)
        out = cfg.pop("out", None)
        name = out or ("work/k_" + "_".join("%s%s" % (k, str(v).replace(" ", "")) for k, v in cfg.items()) + ".s")
        open("code/" + name, "w").write(gen(**cfg))
        names.append(name)
    print(" ".join(names))
```

```python
import json
import math
import struct
import sys

NAME = "standalone__mha_block_cached__sampling_kernel"

HEADER = """; Kernarg layout for this problem (64 bytes, ptrs only, base s[0:1]):
; @launch grid=(256,1,1) block=(512,1,1) lds={lds}
.amdgcn_target "amdgcn-amd-amdhsa--gfx950"
.text
.globl {name}
.p2align 8
.type {name},@function
{name}:
"""
FOOTER = """
.section .rodata,"a"
.p2align 6
.amdhsa_kernel {name}
  .amdhsa_next_free_vgpr 256
  .amdhsa_next_free_sgpr 96
  .amdhsa_accum_offset 256
  .amdhsa_group_segment_fixed_size 0
  .amdhsa_kernarg_size 64
  .amdhsa_user_sgpr_count 2
  .amdhsa_user_sgpr_kernarg_segment_ptr 1
  .amdhsa_system_sgpr_workgroup_id_x 1
  .amdhsa_float_denorm_mode_32 3
.end_amdhsa_kernel
"""

BH = 1572864
UNIT = 3072
RS = 4
TU = 8
NM = 1024 - TU
MFMA = "v_mfma_f32_16x16x32_bf16"


def f32bits(x):
    return struct.unpack("<I", struct.pack("<f", x))[0]


def gen(w1=18, NSLOT=44, wo_r0=14, wo_k=1, stamps=0, wqpol="nt", wopol="nt", prio=3, sleep=16, rsleep=4,
        ctl=1, pp=2, gain=112, bias=20, wlim=2, c0=9, pair=(172, 172, 168), wt=19, dbg=0, rpol="sc1", ypol="sc1", qpol="sc1", r0sleep=0, depth=2, thr=24, ybar=1, opol="", g2=10, mp=3, mpub=3, mend=12, sglc="glc", b2=-56, mmin=0, mhi=256, pb=4, cu=2, own=0, spread=0, wadj=0, wo_p=1, qdelay=0, qspol="sc1", bqw=8, bqn=9, sent=0, peel=0, wp=40):
    L = []

    def a(s):
        L.append("    " + s)

    def lab(s):
        L.append(s + ":")

    def c(s):
        L.append("    ; " + s)

    def q4(r):
        return "v[%d:%d]" % (r, r + 3)

    def s4(r):
        return "s[%d:%d]" % (r, r + 3)

    RING = NSLOT * UNIT
    SC = RING
    MISC = SC + 8192
    Q = MISC
    MX = MISC + 384
    WIN = MISC + 512
    MTOT = MISC + 516
    LDS = MISC + 528
    OP = SC
    XA = SC + 512
    YO = SC + 384
    assert LDS <= 163840 and NSLOT % RS == 0 and NM % NSLOT + TU <= NSLOT
    EB = 0xC0000
    QB = 0x100000
    PB = 0x200000

    wmax = w1 + (wlim if ctl else 0)
    wt = w1 if wt is None else wt
    R = -(-wmax // 3) + 1
    N0 = NSLOT - RS
    L0 = (N0 - R) // RS * RS
    NB = (NM - L0) // RS + 1
    ndouble = L0 // RS - 1
    steps = [2 if (j % cu == 0 and 0 < j <= cu * ndouble) else 1 for j in range(NB)]
    assert sum(steps) == NM // RS and len(steps) == NB
    cons = 0
    for j, st in enumerate(steps):
        assert min(1024, N0 + (j + 1) * RS + (TU if N0 + (j + 1) * RS > NM else 0)) - NSLOT <= cons
        cons += RS * st
        assert cons <= L0 + RS * j

    sW, sH, sB, sJ = 20, 21, 22, 23
    KV, WQ, WO, XS, YS, OS = 24, 28, 32, 36, 40, 44
    sVlo, sVhi = 48, 49
    t0, t1, t2, t3 = 50, 51, 52, 53
    stamp_reg = {k: 66 + 2 * k for k in range(15)}

    def stamp(k):
        if stamps:
            a("s_memrealtime s[%d:%d]" % (stamp_reg[k], stamp_reg[k] + 1))

    def flush_stamps(ks):
        if not stamps:
            return
        a("s_waitcnt lgkmcnt(0)")
        a("s_mov_b64 exec, 1")
        a("s_lshl_b32 s%d, s2, 7" % t0)
        a("s_add_u32 s%d, s%d, 0x4000000" % (t0, t0))
        a("v_mov_b32 v1, s%d" % t0)
        for k in ks:
            a("v_mov_b32 v2, s%d" % stamp_reg[k])
            a("v_mov_b32 v3, s%d" % (stamp_reg[k] + 1))
            a("global_store_dwordx2 v1, v[2:3], s[18:19] offset:%d" % (8 * k))
            a("s_nop 1")

    def srd(d, lo, hi, off_sreg, nbytes):
        a("s_add_u32 s%d, s%d, s%d" % (d, lo, off_sreg))
        a("s_addc_u32 s%d, s%d, 0" % (d + 1, hi))
        if isinstance(nbytes, int):
            a("s_mov_b32 s%d, %d" % (d + 2, nbytes))
        else:
            a(nbytes % (d + 2))
        a("s_mov_b32 s%d, 0x20000" % (d + 3))

    def load_row_tag(dst):
        c("tag word of this batch row's hand-off (advanced by 0x01010101 once it has arrived)")
        a("s_lshl_b32 s%d, s%d, 8" % (dst, sB))
        a("s_add_u32 s%d, s%d, 0x%x" % (dst, dst, EB))
        a("s_load_dword s%d, s[18:19], s%d" % (dst, dst))

    stamp(0)
    a("s_cmp_ge_u32 s2, 256")
    a("s_cbranch_scc1 L_end")
    a("s_load_dwordx16 s[4:19], s[0:1], 0")
    a("v_lshrrev_b32 v1, 6, v0")
    a("v_and_b32 v0, 63, v0")
    a("s_and_b32 s%d, s2, 7" % t0)
    a("v_readfirstlane_b32 s%d, v1" % sW)
    c("head = 4 * (id & 7) + ((id >> 3) & 3), batch = id >> 5")
    a("s_lshr_b32 s%d, s2, 3" % sJ)
    a("s_lshl_b32 s%d, s%d, 2" % (t0, t0))
    a("s_and_b32 s%d, s%d, 3" % (t1, sJ))
    a("s_add_u32 s%d, s%d, s%d" % (sH, t0, t1))
    a("s_lshr_b32 s%d, s%d, 2" % (sB, sJ))
    a("s_cmp_ge_u32 s%d, 3" % sW)
    a("s_cbranch_scc1 L_holder")
    a("s_cmp_ge_u32 s%d, 1" % sW)
    a("s_cbranch_scc1 L_consumer")

    c("======== loader ========")
    sM, sOff, sCnt, sSkip, sSeg, sMod, sWin, sRot = 54, 55, 57, 58, 59, 60, 61, 62
    sRet = 44
    vOff, vSh, vWa, vWv = 4, 8, 16, 17
    BIAS = 1792
    STEP = 4 * 384
    D0, D1, D2 = pair
    assert D0 + D1 + D2 == 512
    if prio:
        a("s_setprio %d" % prio)
    a("s_lshl_b32 s%d, s%d, 5" % (t0, sB))
    a("s_add_u32 s%d, s%d, s%d" % (t0, t0, sH))
    a("s_mul_i32 s%d, s%d, %d" % (t0, t0, BH))
    c("a unit is 4 keys (lanes 0-31) and the 4 keys about 64 KiB further on (lanes 32-63), 8 lanes per key.")
    c("1024 keys form three blocks of 2*%d, 2*%d and 2*%d keys; a unit may straddle two blocks." % pair)
    c("load i uses offset:1024*i, which is added to both addresses, so its lane offset carries 896*(2-i)")
    a("v_bfe_u32 v1, v0, 3, 2")
    a("v_lshrrev_b32 v3, 5, v0")
    a("v_mul_u32_u24 v2, 384, v1")
    a("v_and_b32 v%d, 7, v0" % vSh)
    a("v_lshl_add_u32 v2, v%d, 4, v2" % vSh)
    a("v_mul_u32_u24 v%d, %d, v3" % (vSh, D0 * 384))
    a("v_add_u32 v%d, v2, v%d" % (vSh, vSh))

    def shape(k):
        a("v_mov_b32 v%d, v%d" % (vOff + 2, vSh + k))
        a("v_add_u32 v%d, 896, v%d" % (vOff + 1, vSh + k))
        a("v_add_u32 v%d, 1792, v%d" % (vOff, vSh + k))

    shape(0)
    bounds = [D0, D0 + D1]
    segs = []
    pos = 0
    for bi, bd in enumerate(bounds + [512]):
        segs.append((2 * bi, bd // 4 - pos))
        pos = bd // 4
        if bd % 4:
            segs.append((2 * bi + 1, 1))
            pos += 1
    assert sum(n for _, n in segs) == 128
    NSEG = len(segs)
    c("the unit sequence starts sRot units into the first block and ends with the units skipped")
    assert TU + 1 + 7 * pb < segs[0][1]
    a("s_mul_i32 s%d, s%d, %d" % (sRot, sB, pb))
    a("s_add_u32 s%d, s%d, %d" % (sRot, sRot, TU + 1))

    def start_off():
        a("s_mul_i32 s%d, s%d, %d" % (sOff, sRot, STEP))
        a("s_mov_b32 s%d, 0" % sMod)
        a("s_sub_u32 s%d, %d, s%d" % (sCnt, segs[0][1] - 1, sRot))

    a("s_mov_b32 s%d, %d" % (sM, RING - RS * UNIT))
    a("s_mov_b32 s%d, 0" % sSeg)
    start_off()
    a("s_mov_b32 s%d, %d" % (sSkip, N0 // RS))
    a("s_waitcnt lgkmcnt(0)")
    a("s_sub_u32 s6, s6, %d" % BIAS)
    a("s_subb_u32 s7, s7, 0")
    srd(KV, 6, 7, t0, BH + BIAS)
    if stamps:
        a("s_mov_b32 s46, 0")
        a("s_memtime s[64:65]")

    def ld(i, so):
        a("buffer_load_dwordx4 v%d, %s, s%d offen offset:%d nt lds" % (vOff + i, s4(KV), so, 1024 * i))

    def round_body(w, tag, first=False):
        for u in range(RS):
            if u == 0:
                a("s_add_u32 s%d, s%d, %d" % (sM, sM, RS * UNIT))
                a("s_cmp_eq_u32 s%d, %d" % (sM, RING))
                a("s_cselect_b32 s%d, 0, s%d" % (sM, sM))
                a("s_mov_b32 m0, s%d" % sM)
            else:
                a("s_add_u32 m0, s%d, %d" % (sM, u * UNIT))
            a("s_nop 0" if first else "s_waitcnt vmcnt(%d)" % w)
            for i in range(3):
                ld(i, sOff)
            a("s_add_u32 s%d, s%d, %d" % (sOff, sOff, STEP))
            a("s_sub_u32 s%d, s%d, 1" % (sCnt, sCnt))
            if not first:
                a("s_cbranch_scc1 L_ld_seg_%s_%d" % (tag, u))
                lab("L_ld_cont_%s_%d" % (tag, u))

    c("first round, then the rest of the setup")
    assert TU + 1 + 7 * pb + RS < segs[0][1]
    round_body(0, "", first=True)
    a("s_sub_u32 s%d, s%d, 1" % (sSkip, sSkip))
    a("s_sub_u32 s8, s8, %d" % BIAS)
    a("s_subb_u32 s9, s9, 0")
    a("s_add_u32 s%d, s8, s%d" % (sVlo, t0))
    a("s_addc_u32 s%d, s9, 0" % sVhi)
    a("v_mul_u32_u24 v%d, %d, v3" % (vSh + 2, D1 * 384))
    a("v_add_u32 v%d, %d, v%d" % (vSh + 2, D0 * 384, vSh + 2))
    a("v_add_u32 v%d, v2, v%d" % (vSh + 2, vSh + 2))
    a("v_mul_u32_u24 v%d, %d, v3" % (vSh + 4, D2 * 384))
    a("v_add_u32 v%d, %d, v%d" % (vSh + 4, (D0 + D1) * 384, vSh + 4))
    a("v_add_u32 v%d, v2, v%d" % (vSh + 4, vSh + 4))
    for bi, bd in enumerate(bounds):
        if bd % 4:
            a("v_cmp_gt_u32 vcc, %d, v1" % (bd % 4))
            a("s_nop 1")
            a("v_cndmask_b32 v%d, v%d, v%d, vcc" % (vSh + 2 * bi + 1, vSh + 2 * bi + 2, vSh + 2 * bi))
    if ctl:
        a("v_mov_b32 v%d, %d" % (vWa, WIN))
        a("v_mov_b32 v%d, %d" % (vWv, w1))
    for k in range(peel):
        round_body(wp, "p%d" % k)
        a("s_sub_u32 s%d, s%d, 1" % (sSkip, sSkip))
    wins = list(range(w1 - wlim, w1 + wlim + 1)) if ctl else [w1]
    order = sorted(wins, key=lambda w: abs(w - w1))
    sBq = 47
    if bqw:
        c("one barrier while the ring fills releases the wave that collects q")
        a("s_cmp_ge_u32 s%d, 6" % sB)
        a("s_cselect_b32 s%d, %d, %d" % (sBq, N0 // RS - 1 - bqn, N0 // RS - 1 - bqw))
        a("s_branch L_ld")
        lab("L_ld_fill")
        a("s_cmp_lg_u32 s%d, s%d" % (sSkip, sBq))
        a("s_cbranch_scc1 L_ld_w%d" % order[0])
        a("s_barrier")
        a("s_branch L_ld_w%d" % order[0])
        assert 1 <= bqw < N0 // RS and 1 <= bqn < N0 // RS
    lab("L_ld")
    c("no other barriers until the ring is full")
    a("s_sub_u32 s%d, s%d, 1" % (sSkip, sSkip))
    a("s_cbranch_scc0 %s" % ("L_ld_fill" if bqw else "L_ld_w%d" % order[0]))
    if stamps:
        a("s_cmp_lg_u32 s46, 0")
        a("s_cbranch_scc1 L_st1")
        a("s_mov_b32 s46, 1")
        stamp(1)
        lab("L_st1")
    a("s_mov_b32 s%d, 0" % sSkip)
    if ctl:
        a("s_waitcnt lgkmcnt(0)")
        a("v_readfirstlane_b32 s%d, v%d" % (sWin, vWv))
        a("s_barrier")
        a("ds_read_b32 v%d, v%d" % (vWv, vWa))
        for w in order[1:]:
            a("s_cmp_eq_u32 s%d, %d" % (sWin, w))
            a("s_cbranch_scc1 L_ld_w%d" % w)
    else:
        a("s_barrier")
    for w in order:
        lab("L_ld_w%d" % w)
        round_body(w, str(w))
        a("s_branch L_ld")
    for w in [str(w) for w in order] + ["p%d" % k for k in range(peel)]:
        for u in range(RS):
            lab("L_ld_seg_%s_%d" % (w, u))
            a("s_call_b64 s[%d:%d], L_ld_seg" % (sRet, sRet + 1))
            a("s_branch L_ld_cont_%s_%d" % (w, u))
    lab("L_ld_seg")
    c("end of a run of units with one lane-offset pattern: pick the next one")
    a("s_add_u32 s%d, s%d, 1" % (sSeg, sSeg))
    a("s_add_u32 s%d, s%d, 1" % (sMod, sMod))
    if stamps:
        for k, bn in ((8, 1), (9, NSEG), (10, 2 * NSEG), (11, 4 * NSEG + 1), (12, 6 * NSEG + 1)):
            a("s_cmp_lg_u32 s%d, %d" % (sSeg, bn))
            a("s_cbranch_scc1 L_st%d" % k)
            stamp(k)
            lab("L_st%d" % k)
    a("s_cmp_eq_u32 s%d, %d" % (sSeg, 4 * NSEG + 1))
    a("s_cbranch_scc1 L_ld_tov")
    a("s_cmp_eq_u32 s%d, %d" % (sSeg, 8 * NSEG + 2))
    a("s_cbranch_scc1 L_ld_done")
    for k in range(1, NSEG):
        a("s_cmp_lg_u32 s%d, %d" % (sMod, k))
        a("s_cbranch_scc1 L_ld_not%d" % k)
        shape(segs[k][0])
        a("s_mov_b32 s%d, %d" % (sCnt, segs[k][1] - 1))
        a("s_setpc_b64 s[%d:%d]" % (sRet, sRet + 1))
        lab("L_ld_not%d" % k)
    shape(0)
    a("s_mov_b32 s%d, 0" % sMod)
    a("s_add_u32 s%d, s%d, %d" % (sOff, sOff, 512 * 384))
    a("s_mov_b32 s%d, %d" % (sCnt, segs[0][1] - 1))
    a("s_cmp_lt_u32 s%d, %d" % (sOff, BH))
    a("s_cbranch_scc1 L_ld_ret")
    c("wrap to the units skipped at the start (over V, all but the last %d of them)" % TU)
    a("s_cmp_eq_u32 s%d, %d" % (sSeg, 4 * NSEG))
    a("s_cselect_b32 s%d, 0, %d" % (t0, TU))
    a("s_sub_u32 s%d, s%d, s%d" % (sRot, sRot, t0))
    a("s_mov_b32 s%d, 0" % sOff)
    a("s_sub_u32 s%d, s%d, 1" % (sCnt, sRot))
    lab("L_ld_ret")
    a("s_setpc_b64 s[%d:%d]" % (sRet, sRet + 1))
    lab("L_ld_tov")
    c("K done: same sequence over V")
    a("s_mov_b32 s%d, s%d" % (KV, sVlo))
    a("s_mov_b32 s%d, s%d" % (KV + 1, sVhi))
    start_off()
    a("s_setpc_b64 s[%d:%d]" % (sRet, sRet + 1))
    lab("L_ld_done")
    c("last %d units: all first thirds, then all second thirds, then all last thirds of the rows" % TU)
    a("s_mul_i32 s%d, s%d, %d" % (sOff, sRot, STEP))
    pend = {}
    for j in range((NM - 1 - N0) // RS + 1, NB):
        younger = 3 * (NM - (L0 + RS * j))
        k = max(0, wt - younger)
        pend.setdefault(k, []).append(younger + k)
    for k in range(3 * TU + 1):
        for n in pend.get(k, []):
            a("s_waitcnt vmcnt(%d)" % n)
            a("s_barrier")
        if k == 3 * TU:
            break
        i, u = divmod(k, TU)
        a("s_add_u32 s%d, s%d, %d" % (t0, sOff, u * STEP))
        a("s_mov_b32 m0, %d" % ((NM + u) % NSLOT * UNIT))
        a("s_waitcnt vmcnt(%d)" % (wt + 2))
        ld(i, t0)
    assert max(pend) <= 3 * TU
    stamp(2)
    for i in range(3):
        a("s_waitcnt vmcnt(%d)" % (TU * (2 - i)))
        a("s_barrier")
    stamp(3)
    if stamps:
        r13 = stamp_reg[13]
        a("s_memtime s[%d:%d]" % (r13, r13 + 1))
        a("s_waitcnt lgkmcnt(0)")
        a("s_sub_u32 s%d, s%d, s64" % (r13, r13))
        a("s_lshr_b32 s%d, s%d, 4" % (r13, r13))
        a("s_add_u32 s%d, s%d, s%d" % (r13, r13, stamp_reg[0]))
        a("s_addc_u32 s%d, s%d, 0" % (r13 + 1, stamp_reg[0] + 1))
    flush_stamps([0, 1, 2, 3, 8, 11, 12, 13] if dbg & 2 else [0, 1, 2, 3, 8, 9, 10, 11, 12, 13])
    a("s_endpgm")

    c("======== consumers ========")
    lab("L_consumer")
    sC, sA0, sA1, sSc, sRound, sIn, sScale, sTagY = 54, 55, 56, 57, 58, 59, 60, 61
    sOne, sNext, sPub, sLog2e = 62, 64, 65, 3
    vL16, vAd0, vSA, vM, vLsum, vInv, vE = 4, 5, 7, 8, 9, 10, 11
    vS, vT, vMask, vQ, vAcc, vAop, vD = 12, 20, 28, 32, 44, 56, 88
    vLad, vOad, vTad = 120, 121, 122
    vPa, vPo, vPv, vPw, vWin = 124, 125, 126, 127, 128
    a("s_sub_u32 s%d, s%d, 1" % (sC, sW))
    a("v_lshlrev_b32 v%d, 4, v0" % vL16)
    c("lane-constant masks: element (lane & 7) of an 8 x bf16 operand")
    a("v_and_b32 v%d, 1, v0" % vT)
    a("v_lshlrev_b32 v%d, 4, v%d" % (vT, vT))
    a("v_mov_b32 v%d, 0xffff" % (vT + 1))
    a("v_lshlrev_b32 v%d, v%d, v%d" % (vT, vT, vT + 1))
    a("v_bfe_u32 v%d, v0, 1, 2" % (vT + 1))
    for j in range(4):
        a("v_cmp_eq_u32 vcc, %d, v%d" % (j, vT + 1))
        a("s_nop 1")
        a("v_cndmask_b32 v%d, 0, v%d, vcc" % (vMask + j, vT))
    a("s_mul_i32 s%d, s%d, %d" % (sA0, sC, 2 * UNIT))
    a("v_add_u32 v%d, %d, v%d" % (vTad, NM % NSLOT * UNIT, vL16))
    c("scores (two bf16 per word) at [step][consumer][key], (max, sum) pairs at [consumer][key]")
    a("v_lshrrev_b32 v%d, 3, v0" % vT)
    a("s_lshl_b32 s%d, s%d, 5" % (t0, sC))
    a("s_add_u32 s%d, s%d, %d" % (t0, t0, SC))
    a("v_lshl_add_u32 v%d, v%d, 2, s%d" % (vSA, vT, t0))
    a("s_lshl_b32 s%d, s%d, 6" % (t0, sC))
    a("s_add_u32 s%d, s%d, %d" % (t0, t0, MX))
    a("v_lshl_add_u32 v%d, v%d, 3, s%d" % (vLad, vT, t0))
    a("v_mov_b32 v%d, 0xff800000" % vM)
    a("v_mov_b32 v%d, 0" % vLsum)
    for i in range(12):
        a("v_mov_b32 v%d, 0" % (vAcc + i))
    c("o columns 8*(lane & 7) + 4*((lane >> 4) & 1) + 2*(lane >> 5) + 0..1 of each third")
    a("v_and_b32 v%d, 7, v0" % vOad)
    a("v_bfe_u32 v%d, v0, 4, 1" % vT)
    a("v_lshl_add_u32 v%d, v%d, 1, v%d" % (vOad, vOad, vT))
    a("v_lshrrev_b32 v%d, 5, v0" % vT)
    a("v_lshl_add_u32 v%d, v%d, 1, v%d" % (vOad, vOad, vT))
    a("v_lshlrev_b32 v%d, 2, v%d" % (vOad, vOad))
    a("v_add_u32 v%d, %d, v%d" % (vOad, OP, vOad))
    a("s_mov_b32 s%d, 0x01010101" % sOne)
    a("s_mov_b32 s%d, 0x01010101" % (sOne + 1))
    a("s_mov_b32 s%d, 0x%08x" % (sScale, f32bits(192 ** -0.5)))
    a("s_mov_b32 s%d, 0x%08x" % (sLog2e, f32bits(math.log2(math.e))))
    a("s_waitcnt lgkmcnt(0)")
    load_row_tag(sTagY)
    a("s_mul_i32 s%d, s%d, 81920" % (t0, sB))
    srd(YS, 18, 19, t0, 81920)
    a("s_mul_i32 s%d, s%d, 1280" % (t0, sB))
    srd(OS, 14, 15, t0, 1280)
    if ctl:
        c("progress words of the 32 workgroups whose id is equal mod 8, one cache line")
        a("s_and_b32 s%d, s2, 7" % t0)
        a("s_lshl_b32 s%d, s%d, 12" % (t0, t0))
        a("s_add_u32 s%d, s%d, 0x%x" % (t0, t0, PB))
        a("v_and_b32 v%d, 31, v0" % vPa)
        a("v_lshl_add_u32 v%d, v%d, 2, s%d" % (vPa, vPa, t0))
        a("s_lshl_b32 s%d, s%d, 2" % (t1, sJ))
        a("s_add_u32 s%d, s%d, s%d" % (t0, t0, t1))
        a("v_mov_b32 v%d, s%d" % (vPo, t0))
        if g2:
            c("lane 32 reads the group's offset word")
            a("s_sub_u32 s%d, s%d, s%d" % (t0, t0, t1))
            a("s_add_u32 s%d, s%d, 128" % (t0, t0))
            a("v_writelane_b32 v%d, s%d, 32" % (vPa, t0))
        a("v_mov_b32 v%d, %d" % (vWin, WIN))
        a("v_mov_b32 v%d, %d" % (vPw, w1))
        a("v_mov_b32 v%d, 0" % vPv)
        a("s_mov_b32 s%d, 0" % sPub)
        a("s_cmp_eq_u32 s%d, 1" % sC)
        a("s_cselect_b32 s%d, %d, 0x7fffffff" % (sNext, c0))
        a("s_cbranch_scc0 L_c_noinit")
        a("s_mov_b64 exec, 1")
        a("global_store_dword v%d, v%d, s[18:19]" % (vPo, vPv))
        a("s_mov_b64 exec, -1")
        lab("L_c_noinit")
        a("ds_write_b32 v%d, v%d" % (vWin, vPw))
    a("s_waitcnt lgkmcnt(0)")
    a("s_add_u32 s%d, s%d, 0x01010101" % (sTagY, sTagY))

    def control(tag):
        if not ctl:
            return
        a("s_cmp_lt_u32 s%d, s%d" % (sRound, sNext))
        a("s_cbranch_scc1 L_c_noctl%s" % tag)
        a("s_waitcnt vmcnt(0)")
        if g2:
            a("v_readlane_b32 s%d, v%d, 32" % (t2, vPv))
            a("s_lshl_b32 s%d, s%d, 5" % (t3, sPub))
        a("v_subrev_u32 v%d, s%d, v%d" % (vPv, sPub, vPv))
        a("v_add_u32 v%d, 24, v%d" % (vPw, vPv))
        a("v_cmp_gt_u32 vcc, 48, v%d" % vPw)
        a("s_mov_b32 s%d, s%d" % (sPub, sRound))
        a("s_add_u32 s%d, s%d, %d" % (sNext, sRound, pp))
        a("v_cndmask_b32 v%d, 0, v%d, vcc" % (vPw, vPv))
        a("v_mov_b32 v%d, s%d" % (vPv, sPub))
        a("s_mov_b64 exec, 1")
        a("global_store_dword v%d, v%d, s[18:19]" % (vPo, vPv))
        a("s_mov_b64 exec, -1")
        for dpp in ("quad_perm:[1,0,3,2]", "quad_perm:[2,3,0,1]", "row_half_mirror", "row_mirror"):
            a("v_add_u32_dpp v%d, v%d, v%d %s row_mask:0xf bank_mask:0xf" % (vPw, vPw, vPw, dpp))
            a("s_nop 1")
        a("global_load_dword v%d, v%d, s[18:19] sc1" % (vPv, vPa))
        a("v_readlane_b32 s%d, v%d, 0" % (t0, vPw))
        a("v_readlane_b32 s%d, v%d, 16" % (t1, vPw))
        a("s_nop 1")
        a("s_add_i32 s%d, s%d, s%d" % (t0, t0, t1))
        if g2:
            a("s_add_i32 s%d, s%d, s%d" % (t3, t3, t0))
            a("s_lshl_b32 s%d, s%d, 5" % (t1, sRound))
            a("s_sub_i32 s%d, s%d, s%d" % (t3, t3, t1))
            a("v_mov_b32 v%d, s%d" % (vPw, t3))
            a("ds_write_b32 v%d, v%d offset:4" % (vWin, vPw))
            a("s_add_u32 s%d, s%d, 0x200" % (t1, t2))
            a("s_cmp_lt_u32 s%d, 0x400" % t1)
            a("s_cselect_b32 s%d, s%d, 0" % (t2, t2))
            a("s_mul_i32 s%d, s%d, %d" % (t2, t2, g2))
            a("s_ashr_i32 s%d, s%d, 4" % (t2, t2))
            a("s_add_i32 s%d, s%d, s%d" % (t0, t0, t2))
        a("s_add_i32 s%d, s%d, %d" % (t0, t0, bias))
        a("s_mul_i32 s%d, s%d, %d" % (t0, t0, gain))
        if wadj and tag == "k":
            a("s_cmp_lt_u32 s%d, %d" % (sRound, wo_r0 + 48 // wo_k))
            a("s_cselect_b32 s%d, %d, 0" % (t1, wadj))
            a("s_add_i32 s%d, s%d, s%d" % (t0, t0, t1))
        a("s_add_i32 s%d, s%d, 2048" % (t0, t0))
        a("s_ashr_i32 s%d, s%d, 12" % (t0, t0))
        a("s_max_i32 s%d, s%d, %d" % (t0, t0, -wlim))
        a("s_min_i32 s%d, s%d, %d" % (t0, t0, wlim))
        a("s_add_i32 s%d, s%d, %d" % (t0, t0, w1))
        a("v_mov_b32 v%d, s%d" % (vPw, t0))
        a("ds_write_b32 v%d, v%d" % (vWin, vPw))
        lab("L_c_noctl%s" % tag)

    if bqw:
        a("s_barrier")
    a("s_barrier")
    a("v_and_b32 v%d, 7, v0" % vT)
    a("v_lshlrev_b32 v%d, 4, v%d" % (vT, vT))
    a("v_add_u32 v%d, %d, v%d" % (vT, Q, vT))
    for i in range(3):
        a("ds_read_b128 %s, v%d offset:%d" % (q4(vQ + 4 * i), vT, 128 * i))
    a("s_mov_b32 s%d, 0" % sRound)
    a("s_mov_b32 s%d, 1" % sIn)
    a("s_mov_b32 s%d, 0" % sSc)

    def data_reads():
        a("v_add_u32 v%d, s%d, v%d" % (vAd0, sA0, vL16))
        for u in range(2):
            for i in range(3):
                if dbg & 4096:
                    a("ds_read_b32 v%d, v%d offset:%d" % (vD + 12 * u + 4 * i, vSA, 0))
                else:
                    a("ds_read_b128 %s, v%d offset:%d" % (q4(vD + 12 * u + 4 * i), vAd0, UNIT * u + 1024 * i))
        for s in (sA0,):
            a("s_add_u32 s%d, s%d, %d" % (s, s, RS * UNIT))
            a("s_cmp_ge_u32 s%d, %d" % (s, RING))
            a("s_cselect_b32 s%d, %d, 0" % (t0, RING))
            a("s_sub_u32 s%d, s%d, s%d" % (s, s, t0))

    def weights(n, vAop=vAop):
        for u in range(0, n, 2):
            a("v_lshlrev_b32 v%d, 16, v%d" % (vS + u, vT + u // 2))
            a("v_and_b32 v%d, 0xffff0000, v%d" % (vS + u + 1, vT + u // 2))
        for u in range(n):
            a("v_sub_f32 v%d, v%d, v%d" % (vS + u, vS + u, vM))
        for u in range(n):
            a("v_mul_f32 v%d, s%d, v%d" % (vS + u, sLog2e, vS + u))
        for u in range(n):
            a("v_exp_f32 v%d, v%d" % (vS + u, vS + u))
        a("s_add_u32 s%d, s%d, 1" % (sSc, sSc))
        for u in range(n):
            a("v_mul_f32 v%d, v%d, v%d" % (vS + u, vInv, vS + u))
        for u in range(n):
            a("v_cvt_pk_bf16_f32 v%d, v%d, v%d" % (vS + u, vS + u, vS + u))
        for u in range(n):
            for j in range(4):
                a("v_and_b32 v%d, v%d, v%d" % (vAop + 4 * u + j, vMask + j, vS + u))

    c("---- K steps: scores of 2 units")
    lab("L_c_k")
    data_reads()
    for u in range(2):
        for i in range(3):
            a("s_waitcnt lgkmcnt(%d)" % (5 - 3 * u - i))
            for k in range(4):
                src = "0" if (i == 0 and k == 0) else "v%d" % (vS + u)
                a("v_dot2_f32_bf16 v%d, v%d, v%d, %s" % (vS + u, vD + 12 * u + 4 * i + k, vQ + 4 * i + k, src))
    for step, dpp in enumerate(("quad_perm:[1,0,3,2]", "quad_perm:[2,3,0,1]", "row_half_mirror")):
        a("v_add_f32_dpp v%d, v%d, v%d %s row_mask:0xf bank_mask:0xf" % (vS, vS, vS, dpp))
        a("s_nop %d" % (1 if step == 0 else 0))
        a("v_add_f32_dpp v%d, v%d, v%d %s row_mask:0xf bank_mask:0xf" % (vS + 1, vS + 1, vS + 1, dpp))
    c("scores = bf16(bf16(q.k) * scale); running max and running sum of exp(score - max)")
    a("v_cvt_pk_bf16_f32 v%d, v%d, v%d" % (vT, vS, vS + 1))
    a("v_lshlrev_b32 v%d, 16, v%d" % (vS, vT))
    a("v_and_b32 v%d, 0xffff0000, v%d" % (vS + 1, vT))
    a("v_mul_f32 v%d, s%d, v%d" % (vS, sScale, vS))
    a("v_mul_f32 v%d, s%d, v%d" % (vS + 1, sScale, vS + 1))
    a("v_cvt_pk_bf16_f32 v%d, v%d, v%d" % (vT, vS, vS + 1))
    a("s_mov_b64 exec, s[%d:%d]" % (sOne, sOne + 1))
    a("ds_write_b32 v%d, v%d" % (vSA, vT))
    a("s_mov_b64 exec, -1")
    a("v_lshlrev_b32 v%d, 16, v%d" % (vS, vT))
    a("v_and_b32 v%d, 0xffff0000, v%d" % (vS + 1, vT))
    a("v_mov_b32 v%d, v%d" % (vS + 2, vM))
    a("v_max3_f32 v%d, v%d, v%d, v%d" % (vM, vM, vS, vS + 1))
    for u in range(3):
        a("v_sub_f32 v%d, v%d, v%d" % (vS + u, vS + u, vM))
    for u in range(3):
        a("v_mul_f32 v%d, s%d, v%d" % (vS + u, sLog2e, vS + u))
    for u in range(3):
        a("v_exp_f32 v%d, v%d" % (vS + u, vS + u))
    a("s_add_u32 s%d, s%d, 1" % (sSc, sSc))
    a("v_add_u32 v%d, 64, v%d" % (vSA, vSA))
    a("v_add_f32 v%d, v%d, v%d" % (vS, vS, vS + 1))
    a("v_fma_f32 v%d, v%d, v%d, v%d" % (vLsum, vLsum, vS + 2, vS))
    a("s_cmp_eq_u32 s%d, 128" % sSc)
    a("s_cbranch_scc1 L_c_kdone")
    a("s_sub_u32 s%d, s%d, 1" % (sIn, sIn))
    a("s_cmp_lg_u32 s%d, 0" % sIn)
    a("s_cbranch_scc1 L_c_k")
    a("s_add_u32 s%d, s%d, 1" % (sRound, sRound))
    control("k")
    a("s_cmp_lt_u32 s%d, %d" % (sRound, 1 + cu * ndouble))
    a("s_cselect_b32 s%d, 2, 1" % sIn)
    if cu > 1:
        a("s_and_b32 s%d, s%d, %d" % (t0, sRound, cu - 1))
        a("s_cselect_b32 s%d, 1, s%d" % (sIn, sIn))
    a("s_barrier")
    a("s_branch L_c_k")
    lab("L_c_kdone")
    assert 1 + (cu + 1) * ndouble < 128
    c("exact row max and sum over all 4096 scores, from the 16 (max, sum) pairs")
    a("s_mov_b64 exec, s[%d:%d]" % (sOne, sOne + 1))
    a("ds_write_b64 v%d, v[%d:%d]" % (vLad, vM, vLsum))
    a("s_mov_b64 exec, -1")
    a("s_add_u32 s%d, s%d, 1" % (sRound, sRound))
    a("v_subrev_u32 v%d, %d, v%d" % (vSA, 8192, vSA))
    a("v_and_b32 v%d, 15, v0" % vT)
    a("v_lshlrev_b32 v%d, 3, v%d" % (vT, vT))
    a("v_add_u32 v%d, %d, v%d" % (vT, MX, vT))
    a("s_waitcnt lgkmcnt(0)")
    a("s_barrier")
    a("ds_read_b64 v[%d:%d], v%d" % (vS, vS + 1, vT))
    a("s_waitcnt lgkmcnt(0)")
    rows = ("quad_perm:[1,0,3,2]", "quad_perm:[2,3,0,1]", "row_half_mirror", "row_mirror")
    for k, dpp in enumerate(rows):
        src = vS if k == 0 else vM
        a("v_max_f32_dpp v%d, v%d, v%d %s row_mask:0xf bank_mask:0xf" % (vM, src, src, dpp))
        a("s_nop 1")
    a("v_sub_f32 v%d, v%d, v%d" % (vS, vS, vM))
    a("v_mul_f32 v%d, s%d, v%d" % (vS, sLog2e, vS))
    a("v_exp_f32 v%d, v%d" % (vS, vS))
    a("s_nop 0")
    a("v_mul_f32 v%d, v%d, v%d" % (vLsum, vS, vS + 1))
    for dpp in rows:
        a("s_nop 1")
        a("v_add_f32_dpp v%d, v%d, v%d %s row_mask:0xf bank_mask:0xf" % (vLsum, vLsum, vLsum, dpp))
    a("v_rcp_f32 v%d, v%d" % (vInv, vLsum))
    a("s_mov_b32 s%d, 0" % sSc)
    a("v_fma_f32 v%d, -v%d, v%d, 1.0" % (vE, vLsum, vInv))
    a("v_fma_f32 v%d, v%d, v%d, v%d" % (vInv, vE, vInv, vInv))
    c("---- V steps: acc += diag(p) x V for 2 units")
    vAt = 164

    def v_step():
        a("ds_read_b32 v%d, v%d" % (vT, vSA))
        data_reads()
        a("v_add_u32 v%d, 64, v%d" % (vSA, vSA))
        a("s_waitcnt lgkmcnt(6)")
        weights(2)
        a("s_nop 0")
        for u in range(2):
            for i in range(3):
                a("s_waitcnt lgkmcnt(%d)" % (5 - 3 * u - i))
                a("%s %s, %s, %s, %s" % (MFMA, q4(vAcc + 4 * i), q4(vAop + 4 * u), q4(vD + 12 * u + 4 * i), q4(vAcc + 4 * i)))

    lab("L_c_v")
    v_step()
    a("s_cmp_eq_u32 s%d, %d" % (sSc, 127 - TU // RS))
    a("s_cbranch_scc1 L_c_vdone")
    if ctl:
        a("s_add_u32 s%d, s%d, 1" % (sRound, sRound))
        control("v")
    a("s_barrier")
    a("s_branch L_c_v")
    lab("L_c_vdone")
    c("weights of the last %d units, then one more regular step" % TU)
    a("s_lshl_b32 s%d, s%d, 5" % (t0, sC))
    a("v_subrev_u32 v%d, s%d, v%d" % (vAd0, t0, vSA))
    for k in range(4):
        a("ds_read_b32 v%d, v%d offset:%d" % (vT + k, vAd0, 64 + 32 * k))
    a("s_waitcnt lgkmcnt(0)")
    weights(8, vAt)
    a("s_barrier")
    v_step()
    c("last units: wave 1 finishes thirds 0 and 2 of the columns, wave 2 third 1; o is rounded to bf16 once")
    a("v_add_u32 v%d, %d, v%d" % (vAd0, XA, vL16))
    a("s_nop 3")
    a("s_cmp_lg_u32 s%d, 0" % sC)
    a("s_cbranch_scc1 L_c_give1")
    a("ds_write_b128 v%d, %s offset:1024" % (vAd0, q4(vAcc + 4)))
    a("s_branch L_c_given")
    lab("L_c_give1")
    a("ds_write_b128 v%d, %s" % (vAd0, q4(vAcc)))
    a("ds_write_b128 v%d, %s offset:2048" % (vAd0, q4(vAcc + 8)))
    lab("L_c_given")
    a("s_waitcnt lgkmcnt(0)")

    def take(i):
        a("ds_read_b128 %s, v%d offset:%d" % (q4(vQ), vAd0, 1024 * i))
        a("s_waitcnt lgkmcnt(0)")
        for r in range(4):
            a("v_add_f32 v%d, v%d, v%d" % (vAcc + 4 * i + r, vAcc + 4 * i + r, vQ + r))

    def finish(i):
        A = vAcc + 4 * i
        for u in range(TU):
            a("ds_read_b128 %s, v%d offset:%d" % (q4(vD + 4 * u), vTad, u * UNIT + 1024 * i))
        for u in range(TU):
            a("s_waitcnt lgkmcnt(%d)" % (TU - 1 - u))
            a("%s %s, %s, %s, %s" % (MFMA, q4(A), q4(vAt + 4 * u), q4(vD + 4 * u), q4(A)))
        a("s_nop 7")
        a("v_permlane32_swap_b32 v%d, v%d" % (A, A + 2))
        a("v_permlane32_swap_b32 v%d, v%d" % (A + 1, A + 3))
        a("s_nop 0")
        a("v_add_f32_dpp v%d, v%d, v%d row_ror:8 row_mask:0xf bank_mask:0xf" % (vT, A + 2, A))
        a("v_add_f32_dpp v%d, v%d, v%d row_ror:8 row_mask:0xf bank_mask:0xf" % (vT + 1, A + 3, A + 1))
        a("s_mov_b32 exec_lo, 0x00ff00ff")
        a("s_mov_b32 exec_hi, 0x00ff00ff")
        a("v_cvt_pk_bf16_f32 v%d, v%d, v%d" % (vT, vT, vT + 1))
        a("ds_write_b32 v%d, v%d offset:%d" % (vOad, vT, 128 * i))
        a("s_mov_b64 exec, -1")
        a("s_waitcnt lgkmcnt(0)")

    a("s_cmp_lg_u32 s%d, 0" % sC)
    a("s_barrier")
    a("s_cbranch_scc0 L_c_fin0")
    take(1)
    a("s_barrier")
    finish(1)
    a("s_barrier")
    a("s_endpgm")
    lab("L_c_fin0")
    take(0)
    finish(0)
    a("s_barrier")
    take(2)
    c("setup of the final sum over the heads")
    sTry, sGo = sA0, sA1
    G = vD
    sG = sIn
    if spread:
        a("s_mul_i32 s%d, s%d, 5" % (sG, sH))
        a("s_and_b32 s%d, s%d, 7" % (sGo, sG))
        a("s_lshr_b32 s%d, s%d, 3" % (sG, sG))
        a("s_cmp_lt_u32 s%d, 5" % sGo)
        a("s_cselect_b32 s%d, s%d, 99" % (sG, sG))
    else:
        a("s_mov_b32 s%d, s%d" % (sG, sH))
    a("s_lshl_b32 s%d, s%d, 12" % (sGo, sG))
    a("s_mov_b32 s%d, 0" % sTry)
    for r in range(4):
        a("s_bfe_u32 s%d, s%d, 0x%x" % (t0 + r, sTagY, (8 << 16) | (8 * r)))
    a("v_and_b32 v1, 7, v0")
    a("v_bfe_u32 v2, v0, 4, 1")
    a("v_lshrrev_b32 v3, 5, v0")
    a("v_lshl_add_u32 v2, v2, 1, v3")
    a("v_lshl_add_u32 v1, v1, 2, v2")
    a("v_lshlrev_b32 v1, 1, v1")
    sets = [132 + 16 * d for d in range(depth)]
    sMk = 24
    if own:
        c("this workgroup's own record comes through LDS: its 8 lanes are left out of the loads")
        a("s_and_b32 s%d, s%d, 7" % (sSc, sH))
        a("s_lshl_b32 s%d, s%d, 3" % (sSc, sSc))
        a("s_lshl_b64 s[%d:%d], 0xff, s%d" % (sMk + 6, sMk + 7, sSc))
        a("s_lshr_b32 s%d, s%d, 3" % (sSc, sH))
        for k in range(3):
            a("s_cmp_eq_u32 s%d, %d" % (sSc, k))
            a("s_cselect_b64 s[%d:%d], s[%d:%d], 0" % (sMk + 2 * k, sMk + 2 * k + 1, sMk + 6, sMk + 7))
            a("s_not_b64 s[%d:%d], s[%d:%d]" % (sMk + 2 * k, sMk + 2 * k + 1, sMk + 2 * k, sMk + 2 * k + 1))
        for P in sets:
            for k in range(3):
                for r in range(4):
                    a("v_mov_b32 v%d, s%d" % (P + 4 * k + r, t0 + r))
        a("v_and_b32 v3, 7, v0")
        a("v_lshlrev_b32 v3, 4, v3")
        a("v_add_u32 v3, %d, v3" % YO)
    a("s_barrier")
    finish(2)
    a("s_barrier")
    c("wave 1 of the workgroups with head < 20 sums 32 output columns over the 32 heads")
    a("s_cmp_ge_u32 s%d, %d" % (sG, 0 if dbg & 8192 else 20))
    a("s_cbranch_scc1 L_r_done")
    if not own and ybar:
        c("wait until this workgroup's own records are written")
        a("s_barrier")
    if r0sleep:
        a("s_sleep %d" % r0sleep)
    if sent:
        c("wait for one record per group of 4 heads before reading them all")
        a("v_lshrrev_b32 v3, 3, v0")
        a("v_lshlrev_b32 v3, 9, v3")
        a("v_add_u32 v3, %d, v3" % (128 * (sent - 1)))
        a("s_mov_b64 exec, s[%d:%d]" % (sOne, sOne + 1))
        lab("L_r_sent")
        a("buffer_load_dword v2, v3, %s, s%d offen %s" % (s4(YS), sGo, rpol))
        a("s_add_u32 s%d, s%d, 1" % (sTry, sTry))
        a("s_waitcnt vmcnt(0)")
        a("v_xor_b32 v2, s%d, v2" % t0)
        a("v_and_b32 v2, 0xff, v2")
        a("v_cmp_ne_u32 vcc, 0, v2")
        a("s_cbranch_vccz L_r_sentok")
        a("s_cmp_lt_u32 s%d, 0x100000" % sTry)
        a("s_cbranch_scc1 L_r_sent")
        lab("L_r_sentok")
        a("s_mov_b64 exec, -1")
    if dbg & 2:
        stamp(9)

    def poll(P):
        for k in range(4):
            if own:
                a("s_mov_b64 exec, %s" % ("s[%d:%d]" % (sMk + 2 * k, sMk + 2 * k + 1) if k < 3 else "-1"))
            a("buffer_load_dwordx4 %s, v%d, %s, s%d offen offset:%d %s" % (q4(P + 4 * k), vL16, s4(YS), sGo, 1024 * k, rpol))

    for P in sets[:-1]:
        poll(P)
    lab("L_r_poll")
    for d, P in enumerate(sets):
        poll(sets[d - 1])
        for k in range(4):
            a("s_waitcnt vmcnt(%d)" % (4 * (depth - 1) + 3 - k))
            for r in range(4):
                a("v_xor_b32 v%d, s%d, v%d" % (G + 4 * k + r, t0 + r, P + 4 * k + r))
            if k == 0:
                a("v_or3_b32 v2, v%d, v%d, v%d" % (G, G + 1, G + 2))
                a("v_or_b32 v2, v2, v%d" % (G + 3))
            else:
                a("v_or3_b32 v2, v2, v%d, v%d" % (G + 4 * k, G + 4 * k + 1))
                a("v_or3_b32 v2, v2, v%d, v%d" % (G + 4 * k + 2, G + 4 * k + 3))
        a("v_and_b32 v2, 0xff, v2")
        a("v_cmp_ne_u32 vcc, 0, v2")
        a("s_cbranch_vccz L_r_sum")
        if rsleep:
            a("s_bcnt1_i32_b64 s%d, vcc" % sSc)
            a("s_cmp_le_u32 s%d, %d" % (sSc, thr))
            a("s_cbranch_scc1 L_r_near%d" % d)
            a("s_sleep %d" % rsleep)
            lab("L_r_near%d" % d)
    a("s_add_u32 s%d, s%d, 1" % (sTry, sTry))
    a("s_cmp_lt_u32 s%d, 0x100000" % sTry)
    a("s_cbranch_scc1 L_r_poll")
    lab("L_r_sum")
    if own:
        a("s_barrier")
        a("s_lshr_b32 s%d, s%d, 3" % (sSc, sH))
        a("s_mov_b64 exec, s[%d:%d]" % (sMk + 6, sMk + 7))
        for k in range(3):
            if k < 2:
                a("s_cmp_lg_u32 s%d, %d" % (sSc, k))
                a("s_cbranch_scc1 L_r_own%d" % (k + 1))
            a("ds_read_b128 %s, v3" % q4(G + 4 * k))
            if k < 2:
                a("s_branch L_r_owned")
                lab("L_r_own%d" % (k + 1))
        lab("L_r_owned")
        a("s_mov_b64 exec, -1")
        a("s_waitcnt lgkmcnt(0)")
    if dbg & 2:
        stamp(10)
    for r in range(4):
        a("v_add_f32 v%d, v%d, v%d" % (G + r, G + r, G + 4 + r))
        a("v_add_f32 v%d, v%d, v%d" % (G + 8 + r, G + 8 + r, G + 12 + r))
    for r in range(4):
        a("v_add_f32 v%d, v%d, v%d" % (G + r, G + r, G + 8 + r))
    a("s_lshl_b32 s%d, s%d, 6" % (sGo, sG))
    a("s_nop 0")
    a("v_permlane32_swap_b32 v%d, v%d" % (G, G + 1))
    a("v_permlane32_swap_b32 v%d, v%d" % (G + 2, G + 3))
    a("s_nop 0")
    a("v_add_f32 v%d, v%d, v%d" % (G, G, G + 1))
    a("v_add_f32 v%d, v%d, v%d" % (G + 2, G + 2, G + 3))
    a("s_nop 1")
    a("v_permlane16_swap_b32 v%d, v%d" % (G, G + 2))
    a("s_nop 0")
    a("v_add_f32 v%d, v%d, v%d" % (G, G, G + 2))
    a("s_nop 1")
    a("v_add_f32_dpp v%d, v%d, v%d row_ror:8 row_mask:0xf bank_mask:0xf" % (G, G, G))
    a("s_mov_b32 exec_lo, 0x00ff00ff")
    a("s_mov_b32 exec_hi, 0x00ff00ff")
    a("v_cvt_pk_bf16_f32 v%d, v%d, v%d" % (G, G, G))
    a("buffer_store_short v%d, v1, %s, s%d offen %s" % (G, s4(OS), sGo, opol))
    c("every workgroup of this row has read the tag word: advance it for the next launch")
    a("s_cmp_lg_u32 s%d, 0" % sH)
    a("s_cbranch_scc1 L_r_done")
    a("s_lshl_b32 s%d, s%d, 8" % (t0, sB))
    a("s_add_u32 s%d, s%d, 0x%x" % (t0, t0, EB))
    a("s_mov_b64 exec, 1")
    a("v_mov_b32 v1, s%d" % t0)
    a("v_mov_b32 v2, s%d" % sTagY)
    a("global_store_dword v1, v2, s[18:19] sc1")
    lab("L_r_done")
    if stamps:
        a("s_waitcnt vmcnt(0)")
        stamp(7)
        flush_stamps([7, 9, 10] if dbg & 2 else [7])
    a("s_endpgm")

    c("======== holders ========")
    lab("L_holder")
    sHj, sO, sTag, sTagR, sLoop, sTry = 54, 55, 56, 57, 58, 59
    sPlo, sPhi = 60, 61
    vWq, vWo, vY, vTag = 4, 5, 6, 7
    vX = 8
    blk = lambda k: 32 + 32 * k
    a("s_sub_u32 s%d, s%d, 3" % (sHj, sW))
    a("s_mov_b32 s%d, 0x05040100" % sPlo)
    a("s_mov_b32 s%d, 0x07060302" % sPhi)
    a("s_cmp_lg_u32 s%d, 0" % sHj)
    a("s_cbranch_scc1 L_h_setup")
    c("q projection, shared by the 8 workgroups of the head: workgroup b < 6 multiplies x (all 8 rows) by")
    c("rows [320*(b/3), +320) x columns [64*(b%3), +64) of the head's wq slice and sends each row to its owner")
    a("v_and_b32 v1, 7, v0")
    a("v_bfe_u32 v2, v0, 3, 1")
    a("v_lshrrev_b32 v3, 4, v0")
    a("v_lshl_add_u32 v29, v2, 2, v3")
    a("v_mul_u32_u24 v%d, %d, v29" % (vWq, 12288 if dbg & 384 else 8 * 12288))
    a("v_lshl_add_u32 v%d, v1, 4, v%d" % (vWq, vWq))
    a("v_mul_u32_u24 v30, 1280, v1")
    a("v_lshl_add_u32 v30, v29, 4, v30")
    a("v_lshlrev_b32 v31, 11, v1")
    a("s_cmp_ge_u32 s%d, 3" % sB)
    a("s_cselect_b32 s%d, 320, 0" % t2)
    a("s_cselect_b32 s%d, 3, 0" % t3)
    a("s_sub_u32 s%d, s%d, s%d" % (t3, sB, t3))
    a("s_mul_i32 s%d, s%d, 12288" % (sO, t2))
    a("s_lshl_b32 s%d, s%d, 7" % (t3, t3))
    a("s_add_u32 s%d, s%d, s%d" % (sO, sO, t3))
    if dbg & 128:
        a("s_mul_i32 s%d, s%d, %d" % (sO, sB, 104 * 12288))
    a("s_lshl_b32 s%d, s%d, 1" % (t2, t2))
    a("s_mul_i32 s%d, s%d, 384" % (t0, sH))
    a("s_lshl_b32 s%d, s%d, 14" % (t1, sH))
    a("s_add_u32 s%d, s%d, 0x%x" % (t1, t1, QB))
    a("s_waitcnt lgkmcnt(0)")
    srd(YS, 18, 19, t1, 16384)
    load_row_tag(sTagR)
    c("tags of the 8 receivers: the words found in d_ws, advanced")
    a("buffer_load_dword v%d, v31, %s, 0 offen offset:1536 sc1" % (vTag, s4(YS)))
    a("s_cmp_ge_u32 s%d, %d" % (sB, 0 if dbg & 8 else 6))
    a("s_cbranch_scc1 L_q_tag")
    srd(WQ, 10, 11, t0, "s_sub_u32 s%%d, 7864320, s%d" % t0)
    a("s_mov_b32 s%d, s4" % XS)
    a("s_mov_b32 s%d, s5" % (XS + 1))
    a("s_mov_b32 s%d, 10240" % (XS + 2))
    a("s_mov_b32 s%d, 0x20000" % (XS + 3))
    for rb in range(5):
        for i in range(8):
            if not dbg & 32:
                a("buffer_load_dwordx4 %s, v%d, %s, s%d offen %s" % (q4(blk(rb + 1) + 4 * i), vWq, s4(WQ), sO, wqpol))
            if dbg & 128:
                a("s_add_u32 s%d, s%d, %d" % (sO, sO, 128 if (rb * 8 + i) % 3 < 2 else 8 * 12288 - 256))
            elif dbg & 256:
                a("s_add_u32 s%d, s%d, %d" % (sO, sO, 8 * 12288))
            else:
                a("s_add_u32 s%d, s%d, %d" % (sO, sO, 12288 if i < 7 else 57 * 12288))
        a("buffer_load_dwordx4 %s, v30, %s, s%d offen offset:%d" % (q4(vX + 4 * rb), s4(XS), t2, 128 * rb))
    a("v_lshl_add_u32 v31, v29, 4, v31")
    a("s_lshl_b32 s%d, s%d, 8" % (sO, sB))
    qacc = blk(6)

    def transpose(dst, src, col):
        for p in range(4):
            a("v_perm_b32 v%d, v%d, v%d, s%d" % (dst + 4 * col + p, src + 4 * (2 * p + 1) + col // 2,
                                                src + 4 * (2 * p) + col // 2, sPhi if col % 2 else sPlo))

    for rb in range(5):
        a("s_waitcnt vmcnt(%d)" % (9 * (4 - rb)))
        transpose(blk(0), blk(rb + 1), 0)
        for col in range(8):
            if col < 7:
                transpose(blk(0), blk(rb + 1), col + 1)
            else:
                a("s_nop 0")
            d = qacc + 4 * col
            a("%s %s, %s, %s, %s" % (MFMA, q4(d), q4(blk(0) + 4 * col), q4(vX + 4 * rb), "0" if rb == 0 else q4(d)))
    a("v_add_u32 v%d, 0x11111111, v%d" % (vTag, vTag))
    for k in range(1, 8):
        a("v_lshrrev_b32 v%d, %d, v%d" % (16 + k, 4 * k, vTag))
    c("add the two 32-row halves; lanes 0-7 / 8-15 of each row end up with even / odd columns")
    for col in range(4):
        for r in range(4):
            a("v_permlane32_swap_b32 v%d, v%d" % (qacc + 4 * col + r, qacc + 4 * (col + 4) + r))
    for st in range(2):
        for r in range(4):
            a("v_add_f32_dpp v%d, v%d, v%d row_ror:8 row_mask:0xf bank_mask:0x3" % (vX + 4 * st + r, qacc + 4 * (2 * st + 4) + r, qacc + 4 * (2 * st) + r))
    for st in range(2):
        for r in range(4):
            a("v_add_f32_dpp v%d, v%d, v%d row_ror:8 row_mask:0xf bank_mask:0xc" % (vX + 4 * st + r, qacc + 4 * (2 * st + 1) + r, qacc + 4 * (2 * st + 5) + r))
    c("the low 4 bits of each word carry 4 bits of the receiver's tag")
    for st in range(2):
        for r in range(4):
            t = vX + 4 * st + r
            k = 4 * st + r
            a("v_bfi_b32 v%d, 15, v%d, v%d" % (t, 16 + k if k else vTag, t))
        if not dbg & 16:
            a("buffer_store_dwordx4 %s, v31, %s, s%d offen offset:%d %s" % (q4(vX + 4 * st), s4(YS), sO, 128 * st, qspol))
    a("s_branch L_q_gather")
    lab("L_q_tag")
    a("s_waitcnt vmcnt(0)")
    a("v_add_u32 v%d, 0x11111111, v%d" % (vTag, vTag))
    lab("L_q_gather")
    stamp(4)
    a("v_lshlrev_b32 v1, 4, v0")
    a("v_readlane_b32 s%d, v%d, s%d" % (sTag, vTag, sB))
    a("s_lshl_b32 s%d, s%d, 11" % (sO, sB))
    a("s_mov_b32 s%d, 0" % sTry)
    a("v_bfe_u32 v2, v0, 3, 1")
    a("v_lshlrev_b32 v2, 4, v2")
    a("v_lshrrev_b32 v28, v2, s%d" % sTag)
    for r in range(1, 4):
        a("v_lshrrev_b32 v%d, %d, v28" % (28 + r, 4 * r))
    a("s_mov_b32 exec_hi, 0xffff")
    GA, GB = 16, 20
    if bqw:
        a("s_barrier")
    if qdelay:
        a("s_sleep %d" % qdelay)
    lab("L_q_poll")
    if dbg & 512:
        a("s_branch L_q_got")
    a("buffer_load_dwordx4 %s, v1, %s, s%d offen %s" % (q4(GA), s4(YS), sO, qpol))
    a("buffer_load_dwordx4 %s, v1, %s, s%d offen offset:768 %s" % (q4(GB), s4(YS), sO, qpol))
    a("s_add_u32 s%d, s%d, 1" % (sTry, sTry))
    a("s_waitcnt vmcnt(0)")
    for r in range(4):
        a("v_xor_b32 v%d, v%d, v%d" % (24 + r, GA + r, 28 + r))
    a("v_or3_b32 v24, v24, v25, v26")
    for r in range(3):
        a("v_xor_b32 v%d, v%d, v%d" % (25 + r if r < 2 else 3, GB + r, 28 + r))
    a("v_or3_b32 v24, v24, v27, v25")
    a("v_xor_b32 v25, v%d, v31" % (GB + 3))
    a("v_or3_b32 v24, v24, v26, v3")
    a("v_or_b32 v24, v24, v25")
    a("v_and_b32 v24, 15, v24")
    a("v_cmp_ne_u32 vcc, 0, v24")
    a("s_branch L_q_got" if dbg & 4 else "s_cbranch_vccz L_q_got")
    if sleep:
        a("s_sleep %d" % sleep)
    a("s_cmp_lt_u32 s%d, 0x100000" % sTry)
    a("s_cbranch_scc1 L_q_poll")
    lab("L_q_got")
    a("v_lshrrev_b32 v2, 4, v0")
    a("v_lshlrev_b32 v2, 6, v2")
    a("v_and_b32 v3, 1, v0")
    a("v_lshl_add_u32 v2, v3, 5, v2")
    a("v_bfe_u32 v3, v0, 2, 2")
    a("v_add_u32 v2, v2, v3")
    a("v_bfe_u32 v3, v0, 1, 1")
    a("v_lshl_add_u32 v2, v3, 2, v2")
    a("v_lshlrev_b32 v2, 1, v2")
    a("v_add_u32 v2, %d, v2" % Q)
    for r in range(8):
        a("v_bfi_b32 v%d, 15, 8, v%d" % (GA + r, GA + r))
    for r in range(4):
        a("v_add_f32 v%d, v%d, v%d" % (GA + r, GA + r, GB + r))
    a("v_cvt_pk_bf16_f32 v%d, v%d, v%d" % (GA, GA, GA + 1))
    a("v_cvt_pk_bf16_f32 v%d, v%d, v%d" % (GA + 2, GA + 2, GA + 3))
    a("ds_write_b16 v2, v%d" % GA)
    a("ds_write_b16_d16_hi v2, v%d offset:16" % GA)
    a("ds_write_b16 v2, v%d offset:32" % (GA + 2))
    a("ds_write_b16_d16_hi v2, v%d offset:48" % (GA + 2))
    c("all six senders have read this workgroup's tag word: advance it for the next launch")
    a("v_mov_b32 v3, s%d" % sTag)
    a("s_mov_b64 exec, 1")
    if not dbg & 64:
        a("buffer_store_dword v3, v1, %s, s%d offen offset:1536 sc1" % (s4(YS), sO))
    a("s_mov_b64 exec, -1")
    stamp(14)
    a("s_branch L_h_go")
    lab("L_h_setup")
    a("s_waitcnt lgkmcnt(0)")
    load_row_tag(sTagR)
    if bqw:
        a("s_barrier")
    lab("L_h_go")
    if g2:
        c("the group's offset word starts at zero")
        a("s_and_b32 s%d, s2, 7" % t0)
        a("s_lshl_b32 s%d, s%d, 12" % (t0, t0))
        a("s_add_u32 s%d, s%d, 0x%x" % (t0, t0, PB + 128))
        a("v_mov_b32 v24, s%d" % t0)
        a("v_add_u32 v25, 1920, v24")
        a("v_mov_b32 v26, 0")
        a("s_lshl_b32 s%d, s%d, 3" % (t1, sJ))
        a("s_add_u32 s%d, s%d, s%d" % (t1, t1, sHj))
        a("s_cmp_lg_u32 s%d, 1" % t1)
        a("s_cbranch_scc1 L_m_noinit")
        a("s_mov_b64 exec, 1")
        a("global_store_dword v24, v26, s[18:19]")
        a("s_mov_b64 exec, -1")
        lab("L_m_noinit")
    a("s_waitcnt lgkmcnt(0)")
    a("s_barrier")
    nb = 1
    a("s_add_u32 s%d, s%d, 0x01010101" % (sTagR, sTagR))
    a("s_mul_i32 s%d, s%d, 245760" % (t0, sH))
    srd(WO, 12, 13, t0, 245760)
    a("s_mul_i32 s%d, s%d, 81920" % (t0, sB))
    srd(YS, 18, 19, t0, 81920)
    c("this wave holds columns [128*j, +128) of all 192 rows: lane = (8-row group, 8-column chunk)")
    a("v_lshrrev_b32 v1, 4, v0")
    a("v_and_b32 v2, 15, v0")
    a("v_mul_u32_u24 v%d, 10240, v1" % vWo)
    a("v_lshl_add_u32 v%d, v2, 4, v%d" % (vWo, vWo))
    a("s_lshl_b32 s%d, s%d, 8" % (t0, sHj))
    a("v_add_u32 v%d, s%d, v%d" % (vWo, t0, vWo))
    c("hand-off record [32-column group][head][128 bytes]")
    a("v_bfe_u32 v3, v0, 2, 2")
    a("v_lshlrev_b32 v%d, 12, v3" % vY)
    a("v_and_b32 v3, 3, v0")
    a("v_lshl_add_u32 v%d, v3, 5, v%d" % (vY, vY))
    a("v_lshl_add_u32 v%d, v1, 4, v%d" % (vY, vY))
    a("s_lshl_b32 s%d, s%d, 14" % (t0, sHj))
    a("s_lshl_b32 s%d, s%d, 7" % (t1, sH))
    a("s_add_u32 s%d, s%d, s%d" % (t0, t0, t1))
    a("v_add_u32 v%d, s%d, v%d" % (vY, t0, vY))
    a("v_mov_b32 v%d, s%d" % (vTag, sTagR))

    def idle(n):
        if n <= 2:
            for _ in range(n):
                a("s_barrier")
            return
        name = "L_h_idle%d" % len(L)
        a("s_mov_b32 s%d, %d" % (sLoop, n))
        lab(name)
        a("s_barrier")
        a("s_sub_u32 s%d, s%d, 1" % (sLoop, sLoop))
        a("s_cmp_lg_u32 s%d, 0" % sLoop)
        a("s_cbranch_scc1 %s" % name)

    sP = 62
    if wo_p > 1:
        c("one wo load every %d rounds; the wave that later compares group progress loads every round" % wo_p)
        a("s_lshl_b32 s%d, s%d, 3" % (t1, sJ))
        a("s_add_u32 s%d, s%d, s%d" % (t1, t1, sHj))
        a("s_cmp_eq_u32 s%d, 1" % t1)
        a("s_cselect_b32 s%d, 1, %d" % (sP, wo_p))
        a("s_and_b32 s%d, s%d, %d" % (t1, sHj, wo_p - 1))
        a("s_cmp_eq_u32 s%d, 1" % sP)
        a("s_cselect_b32 s%d, 0, s%d" % (sTry, t1))
        a("s_add_u32 s%d, s%d, %d" % (sLoop, sTry, wo_r0))
        lab("L_h_wo0")
        a("s_barrier")
        a("s_sub_u32 s%d, s%d, 1" % (sLoop, sLoop))
        a("s_cmp_lg_u32 s%d, 0" % sLoop)
        a("s_cbranch_scc1 L_h_wo0")
    else:
        idle(wo_r0)
    nb += wo_r0
    n = 0
    while n < 48:
        for _ in range(wo_k):
            ks, i = divmod(n, 8)
            if i % 4 == 0:
                a("s_mov_b32 s%d, %d" % (sO, ks * 40960 + (i // 4) * 5120))
            if not dbg & 1024:
                a("buffer_load_dwordx4 %s, v%d, %s, s%d offen offset:%d %s" % (q4(blk(ks + 1) + 4 * i), vWo, s4(WO), sO, (i % 4) * 1280, wopol))
            n += 1
        a("s_barrier")
        if wo_p > 1:
            a("s_cmp_eq_u32 s%d, 1" % sP)
            a("s_cbranch_scc1 L_h_wo%d" % n)
            for _ in range(wo_p - 1):
                a("s_barrier")
            lab("L_h_wo%d" % n)
        nb += 1
    idle(8)
    nb += 8
    a("s_waitcnt vmcnt(0)")
    c("transpose each 8x8 block into the previous block's registers: MFMA operands with k along rows")
    for ks in range(6):
        for col in range(8):
            transpose(blk(ks), blk(ks + 1), col)
        a("s_barrier")
        nb += 1
    a("v_lshrrev_b32 v1, 4, v0")
    a("v_lshlrev_b32 v1, 4, v1")
    a("v_add_u32 v1, %d, v1" % OP)
    if g2:
        c("one wave per group compares the group's progress with the other seven groups'")
        nit = (NB - mend - nb) // mp
        sAd, sNew, sPrev, sD, sR, sPc, sMo = 4, 24, 32, 44, 62, 63, 12
        a("s_lshl_b32 s%d, s%d, 3" % (t1, sJ))
        a("s_add_u32 s%d, s%d, s%d" % (t1, t1, sHj))
        a("s_cmp_lg_u32 s%d, 1" % t1)
        a("s_cbranch_scc1 L_m_idle")
        for i in range(8):
            a("s_add_u32 s%d, s2, %d" % (t0, i))
            a("s_and_b32 s%d, s%d, 7" % (t0, t0))
            a("s_lshl_b32 s%d, s%d, 12" % (t0, t0))
            a("s_add_u32 s%d, s%d, 0x%x" % (sAd + i, t0, PB + 2048))
            a("s_load_dword s%d, s[18:19], s%d %s" % (sNew + i, sAd + i, sglc))
        a("v_mov_b32 v27, %d" % MTOT)
        a("s_mov_b32 s%d, %d" % (sR, nb))
        a("s_mov_b32 s%d, %d" % (sPc, 1))
        a("s_mov_b32 s%d, %d" % (sTry, nit - 1))
        a("s_mov_b64 exec, 1")
        idle(mp)
        a("s_waitcnt lgkmcnt(0)")
        for i in range(8):
            a("s_mov_b32 s%d, s%d" % (sPrev + i, sNew + i))
            a("s_mov_b32 s%d, 0" % (sD + i if i < 4 else 13 + i - 4))
        dreg = lambda i: sD + i if i < 4 else 13 + i - 4
        lab("L_m_loop")
        a("s_add_u32 s%d, s%d, %d" % (sR, sR, mp))
        a("ds_read_b32 v26, v27")
        a("s_waitcnt lgkmcnt(0)")
        a("v_readfirstlane_b32 s%d, v26" % sMo)
        a("s_lshl_b32 s%d, s%d, 5" % (t0, sR))
        a("s_add_i32 s%d, s%d, s%d" % (sMo, sMo, t0))
        for i in range(8):
            a("s_load_dword s%d, s[18:19], s%d %s" % (sNew + i, sAd + i, sglc))
        a("s_sub_u32 s%d, s%d, 1" % (sPc, sPc))
        a("s_cbranch_scc0 L_m_nopub")
        a("s_mov_b32 s%d, %d" % (sPc, mpub - 1))
        a("v_mov_b32 v26, s%d" % sMo)
        if not dbg & 2048:
            a("global_store_dword v25, v26, s[18:19] sc1")
        lab("L_m_nopub")
        idle(mp)
        a("s_waitcnt lgkmcnt(0)")
        a("s_mov_b32 s%d, 0" % t1)
        for i in range(8):
            a("s_sub_i32 s%d, s%d, s%d" % (t0, sNew + i, sMo))
            a("s_cmp_lg_u32 s%d, s%d" % (sNew + i, sPrev + i))
            a("s_cselect_b32 s%d, s%d, s%d" % (dreg(i), t0, dreg(i)))
            a("s_mov_b32 s%d, s%d" % (sPrev + i, sNew + i))
            if mmin:
                a(("s_min_i32 s%d, s%d, s%d" % (t1, t1, dreg(i))) if i else ("s_mov_b32 s%d, s%d" % (t1, dreg(i))))
            else:
                a("s_add_i32 s%d, s%d, s%d" % (t1, t1, dreg(i)))
        if not mmin:
            a("s_ashr_i32 s%d, s%d, 3" % (t1, t1))
        a("s_add_i32 s%d, s%d, %d" % (t1, t1, b2))
        a("s_sub_i32 s%d, s%d, s%d" % (t1, t1, dreg(0)))
        a("s_max_i32 s%d, s%d, -256" % (t1, t1))
        a("s_min_i32 s%d, s%d, %d" % (t1, t1, mhi))
        a("s_cmp_gt_u32 s%d, %d" % (sTry, nit - 2 - 2 * mpub))
        a("s_cselect_b32 s%d, 0, s%d" % (t1, t1))
        a("v_mov_b32 v28, s%d" % t1)
        a("global_store_dword v24, v28, s[18:19]")
        a("s_sub_u32 s%d, s%d, 1" % (sTry, sTry))
        a("s_cmp_lg_u32 s%d, 0" % sTry)
        a("s_cbranch_scc1 L_m_loop")
        a("s_mov_b64 exec, -1")
        a("s_branch L_m_done")
        lab("L_m_idle")
        if wo_p > 1:
            a("s_sub_u32 s%d, %d, s%d" % (sLoop, nit * mp - 48 * (wo_p - 1), sTry))
            lab("L_m_idle2")
            a("s_barrier")
            a("s_sub_u32 s%d, s%d, 1" % (sLoop, sLoop))
            a("s_cmp_lg_u32 s%d, 0" % sLoop)
            a("s_cbranch_scc1 L_m_idle2")
            assert nit * mp - 48 * (wo_p - 1) > wo_p
        else:
            idle(nit * mp)
        lab("L_m_done")
        nb += nit * mp
    for r in range(4):
        a("s_mov_b32 s%d, 0x%08x" % (t0 + r, 0x07060500 + r))
    if own:
        c("the wave and lanes that hold the 32 columns this workgroup sums")
        a("s_lshr_b32 s%d, s%d, 2" % (sTry, sH))
        a("s_and_b32 s%d, s%d, 3" % (sPhi, sH))
        a("s_lshl_b32 s%d, s%d, 2" % (sPhi, sPhi))
        a("s_lshl_b32 s%d, 0x000f000f, s%d" % (sPlo, sPhi))
        a("s_mov_b32 s%d, 0" % sPhi)
        a("v_and_b32 v2, 3, v0")
        a("v_bfe_u32 v3, v0, 4, 1")
        a("v_lshl_add_u32 v2, v2, 1, v3")
        a("v_lshlrev_b32 v2, 4, v2")
        a("v_add_u32 v2, %d, v2" % YO)
    a("s_mov_b32 vcc_lo, 0xffff0000")
    a("s_mov_b32 vcc_hi, 0xffff0000")
    idle(NB + 1 - nb)
    c("y = o x wo, 64 rows per barrier; every row of the A operand is o")
    oacc = blk(6)
    for i in range(3):
        a("s_barrier")
        if i == 2:
            stamp(5)
        a("ds_read_b128 v[8:11], v1 offset:%d" % (128 * i))
        a("ds_read_b128 v[12:15], v1 offset:%d" % (128 * i + 64))
        for kk in range(2):
            ks = 2 * i + kk
            a("s_waitcnt lgkmcnt(%d)" % (1 - kk))
            for col in range(8):
                d = oacc + 4 * col
                a("%s %s, %s, %s, %s" % (MFMA, q4(d), q4(8 + 4 * kk), q4(blk(ks) + 4 * col), "0" if ks == 0 else q4(d)))
    a("s_nop %d" % (3 if own else 4))
    if own:
        a("s_cmp_lg_u32 s%d, s%d" % (sHj, sTry))
    for r in range(4):
        a("v_cndmask_b32 v%d, v%d, v%d, vcc" % (20 + r, oacc + 4 * r, oacc + 16 + 4 * r))
    if own:
        a("s_cbranch_scc1 L_h_notown")
        a("s_mov_b64 exec, s[%d:%d]" % (sPlo, sPhi))
        a("ds_write_b128 v2, v[20:23]")
        a("s_mov_b64 exec, -1")
        lab("L_h_notown")
    for r in range(4):
        a("v_perm_b32 v%d, v%d, v%d, s%d" % (24 + r, 20 + r, vTag, t0 + r))
    a("s_mov_b32 exec_hi, 0")
    if not dbg & 16384:
        a("buffer_store_dwordx4 v[24:27], v%d, %s, 0 offen %s" % (vY, s4(YS), ypol))
    stamp(6)
    if own:
        a("s_waitcnt lgkmcnt(0)")
        a("s_barrier")
    elif ybar:
        if ybar == 1:
            a("s_waitcnt vmcnt(0)")
        a("s_barrier")
    if stamps:
        a("s_cmp_lg_u32 s%d, 0" % sHj)
        a("s_cbranch_scc1 L_h_st")
        flush_stamps([4, 5, 14])
        lab("L_h_st")
        a("s_cmp_lg_u32 s%d, 4" % sHj)
        a("s_cbranch_scc1 L_end")
        flush_stamps([6])
    lab("L_end")
    a("s_endpgm")
    return HEADER.format(lds=LDS, name=NAME) + "\n".join(L) + FOOTER.format(name=NAME)


if __name__ == "__main__":
    spec = json.loads(sys.argv[1])
    names = []
    for cfg in spec:
        cfg = dict(cfg)
        out = cfg.pop("out", None)
        name = out or ("work/k_" + "_".join("%s%s" % (k, str(v).replace(" ", "")) for k, v in cfg.items()) + ".s")
        open("code/" + name, "w").write(gen(**cfg))
        names.append(name)
    print(" ".join(names))
```
